```python
import torch

def _softmax(x, axis=-1):
    return torch.softmax(x, dim=axis)
def _gelu(x):
    return torch.nn.functional.gelu(x, approximate="tanh")
def _silu(x):
    return torch.nn.functional.silu(x)
def _sigmoid(x):
    return torch.sigmoid(x)
def _layernorm(x, axis=-1, eps=1e-5):
    m = x.mean(dim=axis, keepdim=True)
    v = x.var(dim=axis, keepdim=True, unbiased=False)
    return (x - m) / torch.sqrt(v + eps)
def _scatter_add(tgt, idx, src, axis=0):
    return tgt.clone().index_add_(axis, idx, src)
def _segment_sum(src, seg, n):
    out = torch.zeros((n,) + src.shape[1:], dtype=src.dtype)
    return out.index_add_(0, seg, src)
def _pad(x, pw):
    flat = tuple(v for pair in reversed(pw) for v in pair)
    return torch.nn.functional.pad(x, flat)

kernel_name = 'concat_heads__mha_block_cached__sliding_block_cached__decode'

def setup_inputs():

    _w = (lambda a: (lambda t: t.to(torch.bfloat16) if t.is_floating_point() else t)(torch.as_tensor(a)))
    def _A_setup():
        B, Sq, D = 1, 1, 512
        H, Sk, Dh = 32, 32768, 128
        return {
            "x": _w((lambda *s: torch.randn(*s, dtype=torch.bfloat16) * 0.8)(B, Sq, D)),
            "k_cache": _w((lambda *s: torch.randn(*s, dtype=torch.bfloat16) * 1.6)(B, H, Sk, Dh)),
            "v_cache": _w((lambda *s: torch.randn(*s, dtype=torch.bfloat16) * 0.2)(B, H, Sk, Dh)),
            "wq": _w((lambda *s: torch.randn(*s, dtype=torch.bfloat16) * 1.6)(D, H * Dh) * (D ** -0.5)),
            "wo": _w((lambda *s: torch.randn(*s, dtype=torch.bfloat16) * 0.2)(H * Dh, D) * ((H * Dh) ** -0.5)),
        }
    _A_in = _A_setup()

    def _B_setup():
        B, Sq, D = 1, 1, 512
        Hq, Hkv, Sk, Dh = 32, 8, 32768, 128
        assert Hq % Hkv == 0, (Hq, Hkv)
        return {
            "x": _w((lambda *s: torch.randn(*s, dtype=torch.bfloat16) * 0.8)(B, Sq, D)),
            "k_cache": _w((lambda *s: torch.randn(*s, dtype=torch.bfloat16) * 1.6)(B, Hkv, Sk, Dh)),
            "v_cache": _w((lambda *s: torch.randn(*s, dtype=torch.bfloat16) * 0.2)(B, Hkv, Sk, Dh)),
            "wq": _w((lambda *s: torch.randn(*s, dtype=torch.bfloat16) * 1.6)(D, Hq * Dh) * (D ** -0.5)),
            "wo": _w((lambda *s: torch.randn(*s, dtype=torch.bfloat16) * 0.2)(Hq * Dh, D) * ((Hq * Dh) ** -0.5)),
        }
    _B_in = _B_setup()

    return {
        "A_x": _A_in["x"],
        "A_k_cache": _A_in["k_cache"],
        "A_v_cache": _A_in["v_cache"],
        "A_wq": _A_in["wq"],
        "A_wo": _A_in["wo"],
        "B_x": _B_in["x"],
        "B_k_cache": _B_in["k_cache"],
        "B_v_cache": _B_in["v_cache"],
        "B_wq": _B_in["wq"],
        "B_wo": _B_in["wo"],
    }

def reference(A_x, A_k_cache, A_v_cache, A_wq, A_wo, B_x, B_k_cache, B_v_cache, B_wq, B_wo):
    def _A_ref(x, k_cache, v_cache, wq, wo):
        B, Sq, D = x.shape
        H, Dh = 32, 128
        q = (lambda x, *d: x.permute(*d))((x @ wq).reshape(B, Sq, H, Dh), 0, 2, 1, 3)
        scores = torch.einsum("bhqd,bhkd->bhqk", q, k_cache) * (Dh ** -0.5)
        p = _softmax(scores, axis=-1)
        o = torch.einsum("bhqk,bhkd->bhqd", p, v_cache)
        return (lambda x, *d: x.permute(*d))(o, 0, 2, 1, 3).reshape(B, Sq, H * Dh) @ wo

    def _B_ref(x, k_cache, v_cache, wq, wo):
        B, Sq, D = x.shape
        Hq, Dh = 32, 128
        Hkv, Sk = k_cache.shape[1], k_cache.shape[2]
        W = min(4096, max(256, Sk // 4))
        rep = Hq // Hkv
        q = (lambda x, *d: x.permute(*d))((x @ wq).reshape(B, Sq, Hq, Dh), 0, 2, 1, 3)
        k = (lambda x, n, axis: torch.repeat_interleave(x, n, dim=axis))(k_cache[:, :, Sk - W:, :], rep, axis=1)
        v = (lambda x, n, axis: torch.repeat_interleave(x, n, dim=axis))(v_cache[:, :, Sk - W:, :], rep, axis=1)
        scores = torch.einsum("bhqd,bhkd->bhqk", q, k) * (Dh ** -0.5)
        p = _softmax(scores, axis=-1)
        o = torch.einsum("bhqk,bhkd->bhqd", p, v)
        return (lambda x, *d: x.permute(*d))(o, 0, 2, 1, 3).reshape(B, Sq, Hq * Dh) @ wo

    a = _A_ref(A_x, A_k_cache, A_v_cache, A_wq, A_wo)
    b = _B_ref(B_x, B_k_cache, B_v_cache, B_wq, B_wo)
    return torch.concatenate([a, b], axis=-1)
```

```python
import sys, json, math
KNAME = "concat_heads__mha_block_cached__sliding_block_cached__decode_kernel"

HEADER = """; Kernarg layout for this problem (104 bytes, ptrs only, base s[0:1]):
"""

WS_EPOCH = 0
WS_QB   = 0x100000
WS_PB   = 0x200000
WS_MLB  = 0x300000
WS_PA   = 0x340000
WS_MLA  = 0x380000
WS_YB   = 0x400000
WS_YA   = 0x480000
WS_TS   = 0x800000
WS_SIZE = 0x1000000

L_QPART = 0
L_QBF   = 4096
L_OPART = 6144
L_ML    = 10240
L_QBB   = 10496
LDS_SIZE = 12288

CSCALE = (128 ** -0.5) * math.log2(math.e)
import struct
def f2u(x): return struct.unpack("<I", struct.pack("<f", x))[0]

class G:
    def __init__(s): s.L = []; s.nl = 0
    def __call__(s, x): s.L.append("  " + x)
    def label(s, x): s.L.append(x + ":")
    def newlabel(s, p="L"): s.nl += 1; return f"{p}_{s.nl}"
    def c(s, x): s.L.append("  ; " + x)

def vr(a, n): return f"v[{a}:{a+n-1}]"

def gen(D=6, NSW=7, ts=False, pre=1, kflags="nt", sleep=2):
    A = G()
    NT = 256
    sWG, sWAVE = "s2", "s3"
    SK, SV, SW, SWS, SX, SDBG, SOUT = "s[4:7]", "s[8:11]", "s[12:15]", "s[16:19]", "s[20:23]", "s[24:27]", "s[28:31]"
    sC, sNC = "s58", "s59"
    sH, sS = "s60", "s61"
    sKOFF, sCNT, sISS = "s62", "s63", "s64"
    sT0, sT1, sT2, sT3 = "s65", "s66", "s67", "s68"
    sE = "s69"
    sSELLO, sSELHI = "s70", "s71"
    sHALF = "s[72:73]"
    sTO = "s74"
    sNREC = "s75"
    sRL = 76
    vLANE, vN, vG, vKO, vVO = 0, 1, 2, 3, 4
    vM = 5
    vT = 9
    vQ = 12; vO = 28; vS = 32; vP = 36; vB0 = 40; vB1 = 44; vm = 48; vl = 49
    vt0, vt1, vt2, vt3, vt4, vt5 = 50, 51, 52, 53, 54, 55
    vX = 56
    RING = 64
    def kreg(slot, i): return RING + slot * 32 + i * 4
    def vreg(slot, i): return RING + slot * 32 + 16 + i * 4
    WQ = RING + (D - 2) * 32

    def srd(dst, ptr_lo, nbytes):
        b = int(dst[2:].split(":")[0])
        A(f"s_mov_b32 s{b}, s{ptr_lo}"); A(f"s_mov_b32 s{b+1}, s{ptr_lo+1}")
        A(f"s_mov_b32 s{b+2}, {hex(nbytes)}"); A(f"s_mov_b32 s{b+3}, 0x00020000")

    def stamp(idx):
        if not ts: return
        A("s_memrealtime s[90:91]")
        A("s_lshl_b32 s92, s2, 3"); A("s_add_u32 s92, s92, s3"); A("s_lshl_b32 s92, s92, 6")
        A(f"s_add_u32 s92, s92, {WS_TS + idx*4}")
        A("s_waitcnt lgkmcnt(0)")
        A(f"v_mov_b32 v{vT+2}, s90"); A(f"v_mov_b32 v{vT+1}, 0")
        A(f"buffer_store_dword v{vT+2}, v{vT+1}, {SWS}, s92 offen")

    def xgroup_reduce(op, v, tmp):
        A(f"v_mov_b32 v{tmp}, v{v}"); A("s_nop 1")
        A(f"v_permlane16_swap_b32 v{v}, v{tmp}")
        A(f"{op} v{v}, v{v}, v{tmp}")
        A(f"v_mov_b32 v{tmp}, v{v}"); A("s_nop 1")
        A(f"v_permlane32_swap_b32 v{v}, v{tmp}")
        A(f"{op} v{v}, v{v}, v{tmp}")

    def mfma(d, a, b, c):
        cs = "0" if c is None else vr(c, 4)
        A(f"v_mfma_f32_16x16x32_bf16 {vr(d,4)}, {vr(a,4)}, {vr(b,4)}, {cs}")

    def proj_issue(rowbase_s, colbyte_s, xs_off_s):
        A(f"v_lshlrev_b32 v{vT}, 17, v{vG}"); A(f"v_lshl_add_u32 v{vT}, v{vN}, 4, v{vT}")
        A(f"v_lshlrev_b32 v{vT+1}, 5, v{vG}")
        A(f"buffer_load_dwordx4 {vr(vX,4)}, v{vT+1}, {SX}, {xs_off_s} offen")
        A(f"buffer_load_dwordx4 {vr(vX+4,4)}, v{vT+1}, {SX}, {xs_off_s} offen offset:16")
        A(f"s_lshl_b32 {sT0}, {rowbase_s}, 13"); A(f"s_add_u32 {sT0}, {sT0}, {colbyte_s}")
        for t in range(16):
            A(f"buffer_load_dwordx4 {vr(WQ+4*t,4)}, v{vT}, {SW}, {sT0} offen")
            if t < 15: A(f"s_add_u32 {sT0}, {sT0}, 8192")

    def proj_compute(dst):
        for t in range(16):
            B = vB0 if t % 2 == 0 else vB1
            sel = sSELLO if t % 2 == 0 else sSELHI
            A(f"v_perm_b32 v{vt0}, v{vX+t//2}, v{vX+t//2}, {sel}")
            for r in range(4): A(f"v_and_b32 v{B+r}, v{vt0}, v{vM+r}")
            A("s_nop 1")
            mfma(dst, WQ + 4 * t, B, None if t == 0 else dst)

    def softmax_update(S, P, m, l, O, t0, t1, t2):
        A(f"v_max_f32 v{t0}, v{S}, v{S+1}")
        A(f"v_max3_f32 v{t0}, v{S+2}, v{S+3}, v{t0}")
        A(f"v_mov_b32 v{t1}, v{t0}"); A("s_nop 1")
        A(f"v_permlane16_swap_b32 v{t0}, v{t1}")
        A(f"v_max_f32 v{t0}, v{t0}, v{t1}")
        A(f"v_mov_b32 v{t1}, v{t0}"); A("s_nop 1")
        A(f"v_permlane32_swap_b32 v{t0}, v{t1}")
        A(f"v_max3_f32 v{t0}, v{t0}, v{t1}, v{m}")
        A(f"v_mul_f32 v{t1}, {sC}, v{t0}")
        A(f"v_fma_f32 v{t2}, v{m}, {sC}, -v{t1}")
        for r in range(4): A(f"v_fma_f32 v{P+r}, v{S+r}, {sC}, -v{t1}")
        A(f"v_exp_f32 v{t2}, v{t2}")
        for r in range(4): A(f"v_exp_f32 v{P+r}, v{P+r}")
        A(f"v_mov_b32 v{m}, v{t0}")
        A(f"v_fma_f32 v{l}, v{l}, v{t2}, v{P}")
        A(f"v_add_f32 v{t1}, v{P+1}, v{P+2}")
        for r in range(4): A(f"v_mul_f32 v{O+r}, v{O+r}, v{t2}")
        A(f"v_add_f32 v{l}, v{l}, v{P+3}")
        A(f"v_add_f32 v{l}, v{l}, v{t1}")

    def pv(O, P, vbase_fn):
        for t in range(4):
            B = vB0 if t % 2 == 0 else vB1
            A(f"v_cvt_pk_bf16_f32 v{vt0}, v{P+t}, v{P+t}")
            for r in range(4): A(f"v_and_b32 v{B+r}, v{vt0}, v{vM+r}")
            A("s_nop 1")
            mfma(O, vbase_fn(t), B, O)

    def issue_k(slot, soff):
        for i in range(4):
            A(f"buffer_load_dwordx4 {vr(kreg(slot,i),4)}, v{vKO}, {SK}, {soff} offen offset:{i*64} {kflags}")
    def issue_v(slot, soff):
        for i in range(4):
            A(f"buffer_load_dwordx4 {vr(vreg(slot,i),4)}, v{vVO}, {SV}, {soff} offen offset:{i*256} {kflags}")

    def poll_begin():
        lab = A.newlabel("L_poll")
        A(f"s_mov_b32 {sTO}, 0x200000")
        A.label(lab)
        return lab
    def poll_end(lab, tagregs):
        done = A.newlabel("L_pdone")
        A("s_waitcnt vmcnt(0)")
        A(f"v_xor_b32 v{vt0}, {sE}, v{tagregs[0]}")
        for tr in tagregs[1:]:
            A(f"v_xor_b32 v{vt1}, {sE}, v{tr}")
            A(f"v_or_b32 v{vt0}, v{vt0}, v{vt1}")
        A(f"v_cmp_ne_u32 vcc, 0, v{vt0}")
        A("s_nop 4")
        A(f"s_cbranch_vccz {done}")
        A(f"s_sleep {sleep}")
        A(f"s_sub_u32 {sTO}, {sTO}, 1")
        A(f"s_cmp_lg_u32 {sTO}, 0")
        A(f"s_cbranch_scc1 {lab}")
        A.label(done)

    A(f"s_cmp_ge_u32 {sWG}, 256"); A("s_cbranch_scc1 L_end")
    A("s_load_dwordx16 s[32:47], s[0:1], 0")
    A("s_load_dwordx8 s[48:55], s[0:1], 64")
    A("s_load_dwordx2 s[56:57], s[0:1], 96")
    A(f"v_lshrrev_b32 v1, 6, v0"); A("v_and_b32 v0, 63, v0"); A("s_nop 0")
    A(f"v_readfirstlane_b32 {sWAVE}, v1")
    A(f"v_and_b32 v{vN}, 15, v0"); A(f"v_lshrrev_b32 v{vG}, 4, v0")
    A(f"v_lshlrev_b32 v{vKO}, 8, v{vN}"); A(f"v_lshl_add_u32 v{vKO}, v{vG}, 4, v{vKO}")
    A(f"v_lshlrev_b32 v{vVO}, 10, v{vG}"); A(f"v_lshl_add_u32 v{vVO}, v{vN}, 4, v{vVO}")
    A(f"v_and_b32 v{vT}, 1, v{vN}")
    A(f"v_mov_b32 v{vT+1}, 0xffff")
    A(f"v_lshlrev_b32 v{vT}, 4, v{vT}")
    A(f"v_lshlrev_b32 v{vT+1}, v{vT}, v{vT+1}")
    A(f"v_bfe_u32 v{vT}, v{vN}, 1, 2")
    for r in range(4):
        A(f"v_cmp_eq_u32 vcc, {r}, v{vT}"); A("s_nop 1")
        A(f"v_cndmask_b32 v{vM+r}, 0, v{vT+1}, vcc")
    A(f"v_cmp_lt_u32 {sHALF}, 7, v{vN}")
    A(f"s_mov_b32 {sC}, {hex(f2u(CSCALE))}")
    A(f"s_mov_b32 {sSELLO}, 0x01000100"); A(f"s_mov_b32 {sSELHI}, 0x03020302")
    A(f"s_and_b32 {sH}, {sWG}, 7"); A(f"s_lshl_b32 {sH}, {sH}, 2")
    A(f"s_bfe_u32 {sT0}, {sWG}, 0x20003"); A(f"s_add_u32 {sH}, {sH}, {sT0}")
    A(f"s_lshr_b32 {sS}, {sWG}, 5")
    A("s_waitcnt lgkmcnt(0)")
    srd(SW, 38, 0x400000); srd(SX, 32, 1024); srd(SWS, 56, WS_SIZE)
    stamp(0)
    A(f"s_cmp_eq_u32 {sWAVE}, {NSW}"); A("s_cbranch_scc1 L_service")

    srd(SK, 34, 0x10000000); srd(SV, 36, 0x10000000)
    A(f"s_lshl_b32 {sKOFF}, {sH}, 23"); A(f"s_lshl_b32 {sT0}, {sS}, 20"); A(f"s_add_u32 {sKOFF}, {sKOFF}, {sT0}")
    A(f"s_lshl_b32 {sT0}, {sWAVE}, 12"); A(f"s_add_u32 {sKOFF}, {sKOFF}, {sT0}")
    base_nt = NT // NSW; remw = NT % NSW
    A(f"s_cmp_lt_u32 {sWAVE}, {remw}"); A(f"s_cselect_b32 {sCNT}, {base_nt+1}, {base_nt}")
    A(f"s_sub_u32 {sISS}, {sCNT}, {D}")
    STR = NSW * 4096
    def issue_tile(slot):
        issue_k(slot, sKOFF); issue_v(slot, sKOFF); A(f"s_add_u32 {sKOFF}, {sKOFF}, {STR}")
    for s in range(pre): issue_tile(s)
    A(f"s_lshl_b32 {sT1}, {sWAVE}, 6"); A(f"s_lshl_b32 {sT2}, {sH}, 8"); A(f"s_lshl_b32 {sT3}, {sWAVE}, 7")
    proj_issue(sT1, sT2, sT3)
    for s in range(pre, D - 2): issue_tile(s)
    A(f"v_mov_b32 v{vm}, 0xff800000"); A(f"v_mov_b32 v{vl}, 0")
    for r in range(4): A(f"v_mov_b32 v{vO+r}, 0")
    A(f"s_waitcnt vmcnt({(D-2-pre)*8})")
    proj_compute(vS)
    for s in range(D - 2, D): issue_tile(s)
    def qpart_write():
        A(f"v_and_b32 v{vt1}, 7, v{vN}"); A(f"v_lshl_add_u32 v{vt1}, v{vG}, 3, v{vt1}"); A(f"v_lshlrev_b32 v{vt1}, 4, v{vt1}")
        A(f"s_lshl_b32 {sT0}, {sWAVE}, 9"); A(f"v_add_u32 v{vt1}, {sT0}, v{vt1}")
        A("s_nop 7")
        A(f"ds_write_b128 v{vt1}, {vr(vS,4)} offset:{L_QPART}")
        A("s_waitcnt lgkmcnt(0)")
        A("s_barrier")
    qpart_write()
    A(f"v_lshlrev_b32 v{vt1}, 3, v{vLANE}")
    for w in range(8): A(f"ds_read_b64 {vr(vQ+2*w,2)}, v{vt1} offset:{L_QPART + w*512}")
    A(f"v_lshrrev_b32 v{vt2}, 4, v{vLANE}"); A(f"v_lshlrev_b32 v{vt2}, 5, v{vt2}")
    A(f"v_bfe_u32 v{vt3}, v{vLANE}, 1, 3"); A(f"v_add_u32 v{vt2}, v{vt2}, v{vt3}")
    A(f"v_and_b32 v{vt3}, 1, v{vLANE}"); A(f"v_lshl_add_u32 v{vt2}, v{vt3}, 4, v{vt2}")
    A(f"v_lshlrev_b32 v{vt2}, 1, v{vt2}")
    A(f"s_lshl_b32 {sT0}, {sWAVE}, 8"); A(f"v_add_u32 v{vt2}, {sT0}, v{vt2}")
    A(f"v_lshlrev_b32 v{vt3}, 4, v{vG}"); A(f"v_add_u32 v{vt3}, {sT0}, v{vt3}")
    A("s_waitcnt lgkmcnt(0)")
    for w in range(1, 8):
        A(f"v_add_f32 v{vQ}, v{vQ}, v{vQ+2*w}"); A(f"v_add_f32 v{vQ+1}, v{vQ+1}, v{vQ+2*w+1}")
    A(f"v_cvt_pk_bf16_f32 v{vt0}, v{vQ}, v{vQ+1}")
    A(f"ds_write_b16 v{vt2}, v{vt0} offset:{L_QBF}")
    A(f"ds_write_b16_d16_hi v{vt2}, v{vt0} offset:{L_QBF+16}")
    A("s_waitcnt lgkmcnt(0)")
    for i in range(4): A(f"ds_read_b128 {vr(vQ+4*i,4)}, v{vt3} offset:{L_QBF + i*64}")
    A(f"s_mov_b32 {sNREC}, 0x10000000")
    A("s_waitcnt lgkmcnt(0)")
    stamp(1)
    A.label("L_loop")
    for s in range(D):
        A(f"s_waitcnt vmcnt({8*D-4 + (1 if ts and False else 0)})")
        for i in range(4): mfma(vS, kreg(s, i), vQ + 4 * i, None if i == 0 else vS)
        A(f"s_cmp_gt_i32 {sISS}, 0"); A(f"s_cselect_b32 s6, {sNREC}, 0"); A(f"s_cselect_b32 s10, {sNREC}, 0")
        issue_k(s, sKOFF)
        A("s_nop 1")
        softmax_update(vS, vP, vm, vl, vO, vt0, vt1, vt2)
        A(f"s_waitcnt vmcnt({8*D-4})")
        pv(vO, vP, lambda t: vreg(s, t))
        issue_v(s, sKOFF)
        A(f"s_add_u32 {sKOFF}, {sKOFF}, {STR}")
        A(f"s_sub_u32 {sISS}, {sISS}, 1")
        A(f"s_sub_u32 {sCNT}, {sCNT}, 1")
        A(f"s_cmp_eq_u32 {sCNT}, 0")
        if s < D - 1: A("s_cbranch_scc1 L_sdone")
        else: A("s_cbranch_scc0 L_loop")
    A.label("L_sdone")
    xgroup_reduce("v_add_f32", vl, vt0)
    A(f"v_and_b32 v{vt1}, 7, v{vN}"); A(f"v_lshl_add_u32 v{vt1}, v{vG}, 3, v{vt1}"); A(f"v_lshlrev_b32 v{vt1}, 4, v{vt1}")
    A(f"s_lshl_b32 {sT0}, {sWAVE}, 9"); A(f"v_add_u32 v{vt1}, {sT0}, v{vt1}")
    A(f"s_lshl_b32 {sT0}, {sWAVE}, 3"); A(f"v_mov_b32 v{vt2}, {sT0}")
    A("s_nop 3")
    A(f"ds_write_b128 v{vt1}, {vr(vO,4)} offset:{L_OPART}")
    A(f"ds_write_b64 v{vt2}, {vr(vm,2)} offset:{L_ML}")
    A("s_waitcnt lgkmcnt(0)")
    stamp(2)
    A("s_barrier")
    A("s_endpgm")

    A.label("L_service")
    srd(SDBG, 54, 256); srd(SOUT, 52, 2048)
    srd(SK, 44, 0x4000000); srd(SV, 46, 0x4000000)
    A(f"s_lshl_b32 {sT1}, {sWAVE}, 6"); A(f"s_lshl_b32 {sT2}, {sH}, 8"); A(f"s_lshl_b32 {sT3}, {sWAVE}, 7")
    proj_issue(sT1, sT2, sT3)
    A(f"s_lshr_b32 {sT0}, {sWG}, 5"); A(f"s_lshl_b32 {sKOFF}, {sT0}, 23")
    A(f"s_and_b32 {sT0}, {sWG}, 31"); A(f"s_lshl_b32 {sT0}, {sT0}, 15"); A(f"s_add_u32 {sKOFF}, {sKOFF}, {sT0}")
    A(f"s_add_u32 {sKOFF}, {sKOFF}, {28672*256}")
    def issue_btile(slot):
        issue_k(slot, sKOFF); issue_v(slot, sKOFF); A(f"s_add_u32 {sKOFF}, {sKOFF}, 4096")
    for s in range(4): issue_btile(s)
    A("s_waitcnt vmcnt(32)")
    proj_compute(vS)
    qpart_write()
    srd(SW, 48, 0x400000); srd(SX, 42, 1024)
    A(f"s_and_b32 {sT1}, {sWG}, 7"); A(f"s_lshl_b32 {sT3}, {sT1}, 7"); A(f"s_lshl_b32 {sT1}, {sT1}, 6")
    A(f"s_lshr_b32 {sT2}, {sWG}, 3"); A(f"s_lshl_b32 {sT2}, {sT2}, 8")
    proj_issue(sT1, sT2, sT3)
    A(f"v_mov_b32 v{vt1}, 0")
    A(f"s_cmp_lg_u32 {sWG}, 0"); A("s_cbranch_scc1 L_ep_poll")
    A(f"buffer_load_dword v{vt0}, v{vt1}, {SWS}, 0 offen sc1")
    A("s_waitcnt vmcnt(0)")
    A(f"v_readfirstlane_b32 {sT0}, v{vt0}")
    A("s_nop 3")
    A(f"s_mul_i32 {sE}, {sT0}, 0x9E3779B1"); A(f"s_add_u32 {sE}, {sE}, 0x7F4A7C15")
    A(f"s_xor_b32 {sT1}, {sE}, 0x55555555")
    A(f"s_cmp_eq_u32 {sE}, {sT0}"); A(f"s_cselect_b32 {sE}, {sT1}, {sE}")
    A(f"s_cmp_eq_u32 {sT0}, 1"); A(f"s_cselect_b32 {sT1}, 2, 1")
    A(f"s_cmp_eq_u32 {sE}, 0"); A(f"s_cselect_b32 {sE}, {sT1}, {sE}")
    A(f"v_mov_b32 v{vt0}, {sE}")
    A("s_mov_b64 exec, 1")
    A(f"buffer_store_dword v{vt0}, v{vt1}, {SDBG}, 0 offen sc1")
    A(f"buffer_store_dword v{vt0}, v{vt1}, {SWS}, 0 offen sc1")
    A("s_mov_b64 exec, -1")
    A("s_branch L_ep_done")
    A.label("L_ep_poll")
    A(f"s_mov_b32 {sTO}, 0x200000")
    A.label("L_ep_loop")
    A(f"buffer_load_dword v{vt0}, v{vt1}, {SDBG}, 0 offen sc1")
    A("s_waitcnt vmcnt(0)")
    A(f"v_readfirstlane_b32 {sE}, v{vt0}")
    A("s_nop 3")
    A(f"s_cmp_lg_u32 {sE}, 0"); A("s_cbranch_scc1 L_ep_done")
    A(f"s_sleep {sleep}")
    A(f"s_sub_u32 {sTO}, {sTO}, 1"); A(f"s_cmp_lg_u32 {sTO}, 0"); A("s_cbranch_scc1 L_ep_loop")
    A.label("L_ep_done")
    A("s_waitcnt vmcnt(0)")
    proj_compute(vS)
    vPOS = vt5
    A(f"v_and_b32 v{vPOS}, 7, v{vN}"); A(f"v_lshl_add_u32 v{vPOS}, v{vG}, 3, v{vPOS}"); A(f"v_lshlrev_b32 v{vPOS}, 2, v{vPOS}")
    A(f"v_lshrrev_b32 v{vt1}, 3, v{vN}"); A(f"v_lshl_add_u32 v{vPOS}, v{vt1}, 1, v{vPOS}"); A(f"v_lshlrev_b32 v{vPOS}, 3, v{vPOS}")
    def publish_half(Dreg, voff, soff):
        A(f"v_cndmask_b32 v{vB0}, v{Dreg}, v{Dreg+2}, {sHALF}")
        A(f"v_mov_b32 v{vB0+1}, {sE}")
        A(f"v_cndmask_b32 v{vB0+2}, v{Dreg+1}, v{Dreg+3}, {sHALF}")
        A(f"v_mov_b32 v{vB0+3}, {sE}")
        A(f"buffer_store_dwordx4 {vr(vB0,4)}, v{voff}, {SWS}, {soff} offen sc1")
    A(f"s_lshr_b32 {sT0}, {sWG}, 5"); A(f"s_lshl_b32 {sT0}, {sT0}, 15")
    A(f"s_and_b32 {sT1}, {sWG}, 7"); A(f"s_lshl_b32 {sT1}, {sT1}, 12"); A(f"s_add_u32 {sT0}, {sT0}, {sT1}")
    A(f"s_bfe_u32 {sT1}, {sWG}, 0x20003"); A(f"s_lshl_b32 {sT1}, {sT1}, 10"); A(f"s_add_u32 {sT0}, {sT0}, {sT1}")
    A(f"s_add_u32 {sT0}, {sT0}, {WS_QB}")
    A("s_nop 7")
    publish_half(vS, vPOS, sT0)
    stamp(3)
    vLO16 = vt4
    A(f"v_lshlrev_b32 v{vLO16}, 4, v{vLANE}")
    for rnd in range(2):
        lab = poll_begin()
        A(f"s_lshr_b32 {sT0}, {sWG}, 5"); A(f"s_lshl_b32 {sT0}, {sT0}, 15"); A(f"s_add_u32 {sT0}, {sT0}, {WS_QB + rnd*16384}")
        for k in range(16):
            if k % 4 == 0 and k: A(f"s_add_u32 {sT0}, {sT0}, 4096")
            A(f"buffer_load_dwordx4 {vr(WQ+4*k,4)}, v{vLO16}, {SWS}, {sT0} offen offset:{(k%4)*1024} sc1")
        poll_end(lab, [WQ + 4 * k + o for k in range(16) for o in (1, 3)])
        for k in range(16):
            hh = k % 4
            if rnd == 0 and k < 4:
                A(f"v_mov_b32 v{vQ+2*hh}, v{WQ+4*k}"); A(f"v_mov_b32 v{vQ+2*hh+1}, v{WQ+4*k+2}")
            else:
                A(f"v_add_f32 v{vQ+2*hh}, v{vQ+2*hh}, v{WQ+4*k}"); A(f"v_add_f32 v{vQ+2*hh+1}, v{vQ+2*hh+1}, v{WQ+4*k+2}")
    A(f"v_lshrrev_b32 v{vt2}, 4, v{vLANE}"); A(f"v_lshlrev_b32 v{vt2}, 5, v{vt2}")
    A(f"v_bfe_u32 v{vt3}, v{vLANE}, 1, 3"); A(f"v_add_u32 v{vt2}, v{vt2}, v{vt3}")
    A(f"v_and_b32 v{vt3}, 1, v{vLANE}"); A(f"v_lshl_add_u32 v{vt2}, v{vt3}, 4, v{vt2}")
    A(f"v_lshlrev_b32 v{vt2}, 1, v{vt2}")
    for hh in range(4):
        A(f"v_cvt_pk_bf16_f32 v{vt0}, v{vQ+2*hh}, v{vQ+2*hh+1}")
        A(f"ds_write_b16 v{vt2}, v{vt0} offset:{L_QBB + hh*256}")
        A(f"ds_write_b16_d16_hi v{vt2}, v{vt0} offset:{L_QBB + hh*256 + 16}")
    A("s_waitcnt lgkmcnt(0)")
    QBp = [vQ, WQ]
    stO = [vO, WQ + 16]; stS = [vS, WQ + 20]; stP = [vP, WQ + 24]; stm = [vm, WQ + 28]; stl = [vl, WQ + 29]
    A(f"v_lshrrev_b32 v{vt3}, 3, v{vN}"); A(f"v_lshlrev_b32 v{vt3}, 8, v{vt3}"); A(f"v_lshl_add_u32 v{vt3}, v{vG}, 4, v{vt3}")
    for pp in range(2):
        for i in range(4): A(f"ds_read_b128 {vr(QBp[pp]+4*i,4)}, v{vt3} offset:{L_QBB + pp*512 + i*64}")
        A(f"v_mov_b32 v{stm[pp]}, 0xff800000"); A(f"v_mov_b32 v{stl[pp]}, 0")
        for r in range(4): A(f"v_mov_b32 v{stO[pp]+r}, 0")
    A("s_waitcnt lgkmcnt(0)")
    stamp(4)
    for tl in range(8):
        s = tl % 4
        if tl >= 4:
            A(f"s_waitcnt vmcnt({(7-tl)*8 + 4})")
        for pp in range(2):
            for i in range(4): mfma(stS[pp], kreg(s, i), QBp[pp] + 4 * i, None if i == 0 else stS[pp])
        if tl < 4: issue_k(s, sKOFF)
        A("s_nop 7")
        for pp in range(2):
            softmax_update(stS[pp], stP[pp], stm[pp], stl[pp], stO[pp], vt0, vt1, vt2)
        if tl >= 4:
            A(f"s_waitcnt vmcnt({(7-tl)*8})")
        for pp in range(2):
            pv(stO[pp], stP[pp], lambda t: vreg(s, t))
        if tl < 4:
            issue_v(s, sKOFF); A(f"s_add_u32 {sKOFF}, {sKOFF}, 4096")
    A(f"v_and_b32 v{vt1}, 7, v{vN}"); A(f"v_lshl_add_u32 v{vt1}, v{vG}, 3, v{vt1}"); A(f"v_lshlrev_b32 v{vt1}, 5, v{vt1}")
    A(f"v_lshrrev_b32 v{vt2}, 3, v{vN}"); A(f"v_lshl_add_u32 v{vt1}, v{vt2}, 15, v{vt1}")
    A(f"v_lshlrev_b32 v{vt3}, 9, v{vt2}")
    A(f"s_lshr_b32 {sT0}, {sWG}, 5"); A(f"s_lshl_b32 {sT0}, {sT0}, 17")
    A(f"s_and_b32 {sT1}, {sWG}, 31"); A(f"s_lshl_b32 {sT2}, {sT1}, 10"); A(f"s_add_u32 {sT0}, {sT0}, {sT2}")
    A(f"s_add_u32 {sT0}, {sT0}, {WS_PB}")
    A(f"s_lshr_b32 {sT2}, {sWG}, 5"); A(f"s_lshl_b32 {sT2}, {sT2}, 11"); A(f"s_lshl_b32 {sT1}, {sT1}, 4"); A(f"s_add_u32 {sT2}, {sT2}, {sT1}")
    A(f"s_add_u32 {sT2}, {sT2}, {WS_MLB}")
    A("s_nop 7")
    for pp in range(2):
        xgroup_reduce("v_add_f32", stl[pp], vt0)
        for hf in range(2):
            A(f"v_mov_b32 v{vB0}, v{stO[pp]+2*hf}"); A(f"v_mov_b32 v{vB0+1}, {sE}")
            A(f"v_mov_b32 v{vB0+2}, v{stO[pp]+2*hf+1}"); A(f"v_mov_b32 v{vB0+3}, {sE}")
            A(f"buffer_store_dwordx4 {vr(vB0,4)}, v{vt1}, {SWS}, {sT0} offen offset:{hf*16} sc1")
            A("s_nop 1")
        A(f"v_mov_b32 v{vB1}, v{stm[pp]}"); A(f"v_mov_b32 v{vB1+1}, {sE}"); A(f"v_mov_b32 v{vB1+2}, v{stl[pp]}"); A(f"v_mov_b32 v{vB1+3}, {sE}")
        A("s_mov_b64 exec, 0x101")
        A(f"buffer_store_dwordx4 {vr(vB1,4)}, v{vt3}, {SWS}, {sT2} offen sc1")
        A("s_mov_b64 exec, -1")
        A("s_nop 1")
        if pp == 0:
            A(f"s_add_u32 {sT0}, {sT0}, 0x10000"); A(f"s_add_u32 {sT2}, {sT2}, 1024")
    stamp(5)

    WO = RING
    PO = RING + 64
    vML = RING + 128
    def wo_issue(ptr_lo, head_s, piece_s):
        srd(SW, ptr_lo, 0x400000)
        A(f"v_lshrrev_b32 v{vt1}, 1, v{vG}"); A(f"v_lshlrev_b32 v{vt1}, 15, v{vt1}")
        A(f"v_and_b32 v{vt2}, 1, v{vG}"); A(f"v_lshl_add_u32 v{vt1}, v{vt2}, 12, v{vt1}")
        A(f"v_lshl_add_u32 v{vt1}, v{vN}, 4, v{vt1}")
        A(f"s_lshl_b32 {sT0}, {head_s}, 17")
        A(f"s_lshr_b32 {sT1}, {piece_s}, 2"); A(f"s_lshl_b32 {sT1}, {sT1}, 16"); A(f"s_add_u32 {sT0}, {sT0}, {sT1}")
        A(f"s_and_b32 {sT1}, {piece_s}, 3"); A(f"s_lshl_b32 {sT1}, {sT1}, 8"); A(f"s_add_u32 {sT0}, {sT0}, {sT1}")
        for a in range(4):
            if a: A(f"s_add_u32 {sT0}, {sT0}, 8192")
            for b in range(4):
                t = b * 4 + a
                A(f"buffer_load_dwordx4 {vr(WO+4*t,4)}, v{vt1}, {SW}, {sT0} offen offset:{b*1024} {kflags}")
    def stage2(NP, ws_p, ws_ml, ws_y, head_s, piece_s):
        A(f"v_and_b32 v{vt2}, {NP-1}, v{vLANE}"); A(f"v_lshlrev_b32 v{vt2}, 4, v{vt2}")
        A(f"v_lshlrev_b32 v{vt3}, 3, v{vLANE}")
        lab = poll_begin()
        A(f"s_mul_i32 {sT0}, {head_s}, {NP*16}"); A(f"s_add_u32 {sT0}, {sT0}, {ws_ml}")
        A(f"buffer_load_dwordx4 {vr(vML,4)}, v{vt2}, {SWS}, {sT0} offen sc1")
        A(f"s_mul_i32 {sT0}, {head_s}, {NP*1024}"); A(f"s_lshr_b32 {sT1}, {piece_s}, 2"); A(f"s_lshl_b32 {sT1}, {sT1}, 9")
        A(f"s_add_u32 {sT0}, {sT0}, {sT1}"); A(f"s_add_u32 {sT0}, {sT0}, {ws_p}")
        for p in range(NP):
            if p % 4 == 0 and p: A(f"s_add_u32 {sT0}, {sT0}, 4096")
            A(f"buffer_load_dwordx2 {vr(PO+2*p,2)}, v{vt3}, {SWS}, {sT0} offen offset:{(p%4)*1024} sc1")
        poll_end(lab, [vML + 1, vML + 3] + [PO + 2 * p + 1 for p in range(NP)])
        A(f"v_mov_b32 v{vt0}, v{vML}")
        for p0 in range(0, NP, 8):
            for p in range(8): A(f"v_readlane_b32 s{sRL+p}, v{vML}, {p0+p}")
            A("s_nop 1")
            for p in range(8): A(f"v_max_f32 v{vt0}, s{sRL+p}, v{vt0}")
        A(f"v_sub_f32 v{vt1}, v{vML}, v{vt0}"); A(f"v_mul_f32 v{vt1}, {sC}, v{vt1}"); A(f"v_exp_f32 v{vt1}, v{vt1}")
        A("s_nop 0")
        A(f"v_mul_f32 v{vt2}, v{vt1}, v{vML+2}")
        A(f"v_mov_b32 v{vt3}, 0"); A(f"v_mov_b32 v{vt4}, 0")
        for p0 in range(0, NP, 8):
            for p in range(8):
                A(f"v_readlane_b32 s{sRL+p}, v{vt1}, {p0+p}")
                A(f"v_readlane_b32 s{sRL+8+p}, v{vt2}, {p0+p}")
            A("s_nop 1")
            for p in range(8):
                A(f"v_fma_f32 v{vt3}, v{PO+2*(p0+p)}, s{sRL+p}, v{vt3}")
                A(f"v_add_f32 v{vt4}, s{sRL+8+p}, v{vt4}")
        A(f"v_rcp_f32 v{vt4}, v{vt4}"); A("s_nop 0")
        A(f"v_mul_f32 v{vt3}, v{vt3}, v{vt4}")
        A(f"v_cvt_pk_bf16_f32 v{vt3}, v{vt3}, v{vt3}")
        A("s_nop 1")
        for t in range(16):
            B = vB0 if t % 2 == 0 else vB1
            for r in range(4): A(f"v_and_b32_dpp v{B+r}, v{vt3}, v{vM+r} row_newbcast:{t} row_mask:0xf bank_mask:0xf")
            A("s_nop 1")
            mfma(vS, WO + 4 * t, B, None if t == 0 else vS)
        A(f"v_and_b32 v{vt1}, 7, v{vN}"); A(f"v_lshlrev_b32 v{vt1}, 5, v{vt1}")
        A(f"v_lshrrev_b32 v{vt2}, 3, v{vN}"); A(f"v_lshl_add_u32 v{vt1}, v{vt2}, 4, v{vt1}")
        A(f"v_lshl_add_u32 v{vt1}, v{vG}, 14, v{vt1}")
        A(f"s_and_b32 {sT0}, {piece_s}, 3"); A(f"s_lshl_b32 {sT0}, {sT0}, 16")
        A(f"s_lshl_b32 {sT1}, {head_s}, 1"); A(f"s_lshr_b32 {sT2}, {piece_s}, 2"); A(f"s_add_u32 {sT1}, {sT1}, {sT2}"); A(f"s_lshl_b32 {sT1}, {sT1}, 8")
        A(f"s_add_u32 {sT0}, {sT0}, {sT1}"); A(f"s_add_u32 {sT0}, {sT0}, {ws_y}")
        A("s_nop 3")
        publish_half(vS, vt1, sT0)
    def stage3(ws_y, outbyte, sel):
        skip = A.newlabel("L_noreduce")
        A(f"s_lshr_b32 {sT3}, {sWG}, 4"); A(f"s_and_b32 {sT0}, {sT3}, 7"); A(f"s_add_u32 {sT0}, {sT0}, {sel}")
        A(f"s_and_b32 {sT1}, {sWG}, 15"); A(f"s_cmp_lg_u32 {sT0}, {sT1}"); A(f"s_cbranch_scc1 {skip}")
        A(f"v_lshlrev_b32 v{vt4}, 4, v{vLANE}")
        lab = poll_begin()
        A(f"s_lshl_b32 {sT0}, {sT3}, 14"); A(f"s_add_u32 {sT0}, {sT0}, {ws_y}")
        for u in range(16):
            if u % 4 == 0 and u: A(f"s_add_u32 {sT0}, {sT0}, 4096")
            A(f"buffer_load_dwordx4 {vr(PO+4*u,4)}, v{vt4}, {SWS}, {sT0} offen offset:{(u%4)*1024} sc1")
        poll_end(lab, [PO + 4 * u + o for u in range(16) for o in (1, 3)])
        for u in range(1, 16):
            A(f"v_add_f32 v{PO}, v{PO}, v{PO+4*u}"); A(f"v_add_f32 v{PO+2}, v{PO+2}, v{PO+4*u+2}")
        xgroup_reduce("v_add_f32", PO, vt0)
        xgroup_reduce("v_add_f32", PO + 2, vt0)
        A(f"v_cvt_pk_bf16_f32 v{vt0}, v{PO}, v{PO+2}")
        A(f"v_lshrrev_b32 v{vt1}, 1, v{vN}"); A(f"v_and_b32 v{vt2}, 1, v{vN}"); A(f"v_lshl_add_u32 v{vt1}, v{vt2}, 4, v{vt1}")
        A(f"v_lshlrev_b32 v{vt1}, 1, v{vt1}")
        A(f"s_lshl_b32 {sT0}, {sT3}, 6"); A(f"s_add_u32 {sT0}, {sT0}, {outbyte}")
        A("s_mov_b64 exec, 0xffff")
        A(f"buffer_store_short v{vt0}, v{vt1}, {SOUT}, {sT0} offen")
        A(f"buffer_store_short_d16_hi v{vt0}, v{vt1}, {SOUT}, {sT0} offen offset:16")
        A("s_mov_b64 exec, -1")
        A.label(skip)

    sHB, sPC = "s93", "s94"
    A(f"s_lshr_b32 {sHB}, {sWG}, 3"); A(f"s_and_b32 {sPC}, {sWG}, 7")
    wo_issue(50, sHB, sPC)
    stage2(32, WS_PB, WS_MLB, WS_YB, sHB, sPC)
    stamp(6)
    stage3(WS_YB, 1024, 8)
    stamp(7)
    wo_issue(40, sH, sS)
    A("s_barrier")
    stamp(8)
    A(f"v_lshlrev_b32 v{vt1}, 3, v{vLANE}"); A(f"v_mov_b32 v{vt2}, 0")
    MLW = PO + 16
    for w in range(NSW):
        A(f"ds_read_b64 {vr(PO+2*w,2)}, v{vt1} offset:{L_OPART + w*512}")
        A(f"ds_read_b64 {vr(MLW+2*w,2)}, v{vt2} offset:{L_ML + w*8}")
    A("s_waitcnt lgkmcnt(0)")
    A(f"v_mov_b32 v{vt0}, v{MLW}")
    for w in range(1, NSW): A(f"v_max_f32 v{vt0}, v{vt0}, v{MLW+2*w}")
    for w in range(NSW):
        A(f"v_sub_f32 v{MLW+2*w}, v{MLW+2*w}, v{vt0}"); A(f"v_mul_f32 v{MLW+2*w}, {sC}, v{MLW+2*w}"); A(f"v_exp_f32 v{MLW+2*w}, v{MLW+2*w}")
    A("s_nop 0")
    A(f"v_mul_f32 v{vB0}, v{PO}, v{MLW}"); A(f"v_mul_f32 v{vB0+2}, v{PO+1}, v{MLW}"); A(f"v_mul_f32 v{vB1+2}, v{MLW+1}, v{MLW}")
    for w in range(1, NSW):
        A(f"v_fma_f32 v{vB0}, v{PO+2*w}, v{MLW+2*w}, v{vB0}"); A(f"v_fma_f32 v{vB0+2}, v{PO+2*w+1}, v{MLW+2*w}, v{vB0+2}")
        A(f"v_fma_f32 v{vB1+2}, v{MLW+2*w+1}, v{MLW+2*w}, v{vB1+2}")
    A(f"v_mov_b32 v{vB0+1}, {sE}"); A(f"v_mov_b32 v{vB0+3}, {sE}")
    A(f"v_mov_b32 v{vB1}, v{vt0}"); A(f"v_mov_b32 v{vB1+1}, {sE}"); A(f"v_mov_b32 v{vB1+3}, {sE}")
    A(f"v_lshlrev_b32 v{vt1}, 4, v{vLANE}")
    A(f"s_lshl_b32 {sT0}, {sH}, 3"); A(f"s_add_u32 {sT0}, {sT0}, {sS}"); A(f"s_lshl_b32 {sT1}, {sT0}, 4"); A(f"s_lshl_b32 {sT0}, {sT0}, 10")
    A(f"s_add_u32 {sT0}, {sT0}, {WS_PA}"); A(f"s_add_u32 {sT1}, {sT1}, {WS_MLA}")
    A(f"buffer_store_dwordx4 {vr(vB0,4)}, v{vt1}, {SWS}, {sT0} offen sc1")
    A("s_mov_b64 exec, 1")
    A(f"buffer_store_dwordx4 {vr(vB1,4)}, v{vt2}, {SWS}, {sT1} offen sc1")
    A("s_mov_b64 exec, -1")
    A("s_nop 1")
    stage2(8, WS_PA, WS_MLA, WS_YA, sH, sS)
    stamp(9)
    stage3(WS_YA, 0, 0)
    stamp(10)
    A.label("L_end")
    A("s_endpgm")

    out = HEADER + f"; @launch grid=(256,1,1) block=({(NSW+1)*64},1,1) lds={LDS_SIZE}\n"
    out += '.amdgcn_target "amdgcn-amd-amdhsa--gfx950"\n.text\n' + f".globl {KNAME}\n.p2align 8\n.type {KNAME},@function\n{KNAME}:\n"
    out += "\n".join(A.L) + "\n"
    nv = RING + D * 32
    out += f""".section .rodata,"a"
.p2align 6
.amdhsa_kernel {KNAME}
  .amdhsa_next_free_vgpr {nv}
  .amdhsa_next_free_sgpr 102
  .amdhsa_accum_offset {nv}
  .amdhsa_group_segment_fixed_size 0
  .amdhsa_kernarg_size 104
  .amdhsa_user_sgpr_count 2
  .amdhsa_user_sgpr_kernarg_segment_ptr 1
  .amdhsa_system_sgpr_workgroup_id_x 1
.end_amdhsa_kernel
"""
    return out

if __name__ == "__main__":
    cfg = json.loads(sys.argv[2]) if len(sys.argv) > 2 else {}
    open(sys.argv[1], "w").write(gen(**cfg))
```

```python
import sys, json, math
KNAME = "concat_heads__mha_block_cached__sliding_block_cached__decode_kernel"

HEADER = """; Kernarg layout for this problem (104 bytes, ptrs only, base s[0:1]):
;   offset  96: d_ws      1073741824 bytes workspace (unspecified values whenever your kernel or launch list starts; a list's later launches find what earlier ones wrote)
; grid=ceil(out_elems/256), lds=0). Harness parses it; keep it on one line.
"""

WS_EPOCH = 0
WS_QB   = 0x100000
WS_PB   = 0x200000
WS_MLB  = 0x300000
WS_PA   = 0x340000
WS_MLA  = 0x380000
WS_QBF  = 0x3C0000
WS_OBF  = 0x3D0000
WS_YB   = 0x400000
WS_YA   = 0x480000
WS_TS   = 0x800000
WS_SIZE = 0x1000000

L_QPART = 0
L_QBF   = 4096
L_OPART = 6144
L_ML    = 10240
L_EP    = 10312
L_CNT   = 10304
L_QBB   = 10496
LDS_SIZE = 12288

CSCALE = (128 ** -0.5) * math.log2(math.e)
import struct
def f2u(x): return struct.unpack("<I", struct.pack("<f", x))[0]

class G:
    def __init__(s): s.L = []; s.nl = 0
    def __call__(s, x): s.L.append("  " + x)
    def label(s, x): s.L.append(x + ":")
    def newlabel(s, p="L"): s.nl += 1; return f"{p}_{s.nl}"
    def c(s, x): s.L.append("  ; " + x)

def vr(a, n): return f"v[{a}:{a+n-1}]"

def gen(D=6, NSW=7, ts=False, pre=1, kflags="nt", sleep=2, wqflags="", dyn=True, prio=True, dp=4, noB=False, nocomp=False, stopat=0, nopoll=False, nostore=False, nogather=False, noW=False, noKV=False, probe=None, sprio=3, skip=(), bperm=1, arot=0, stflags=None, ldflags=None, tsleep=1, presleep=0, il=0, early=4, hmap=0, mlfirst=True):
    A = G()
    _emit = A.__call__
    phase = ["main"]
    def filt(x):
        if nostore and x.startswith("buffer_store") and "sc1" in x: return
        if nogather and x.startswith("buffer_load") and "sc1" in x: return
        if x.startswith("buffer_load") and "sc1" not in x and phase[0] in skip: return
        if x.startswith("buffer_store") and phase[0] + "_st" in skip: return
        if x.startswith("buffer_store") and "sc1" in x and stflags is not None and phase[0] != "woA": x = x.replace("sc1", stflags)
        if x.startswith("buffer_load") and "sc1" in x and ldflags is not None and phase[0] != "woA": x = x.replace("sc1", ldflags)
        A.L.append("  " + x)
    A.__class__.__call__ = lambda self, x: filt(x)
    NT = 256
    sWG, sWAVE = "s2", "s3"
    SK, SV, SW, SWS, SX, SDBG, SOUT = "s[4:7]", "s[8:11]", "s[12:15]", "s[16:19]", "s[20:23]", "s[24:27]", "s[28:31]"
    sC, sNC = "s58", "s59"
    sH, sS = "s60", "s61"
    sKOFF, sCNT, sISS = "s62", "s63", "s64"
    sT0, sT1, sT2, sT3 = "s65", "s66", "s67", "s68"
    sE = "s69"
    sSELLO, sSELHI = "s70", "s71"
    sHALF = "s[72:73]"
    sTO = "s74"
    sNREC = "s75"
    sRL = 76
    vLANE, vN, vG, vKO, vVO = 0, 1, 2, 3, 4
    vM = 5
    vT = 9
    vQ = 12; vO = 28; vS = 32; vP = 36; vB0 = 40; vB1 = 44; vm = 48; vl = 49
    vt0, vt1, vt2, vt3, vt4, vt5 = 50, 51, 52, 53, 54, 55
    vX = 56
    RING = 64
    def kreg(slot, i): return RING + slot * 32 + i * 4
    def vreg(slot, i): return RING + slot * 32 + 16 + i * 4
    WQ = RING + 128
    DP = max(min(D, dp), pre + il)

    def srd(dst, ptr_lo, nbytes):
        b = int(dst[2:].split(":")[0])
        A(f"s_mov_b32 s{b}, s{ptr_lo}"); A(f"s_mov_b32 s{b+1}, s{ptr_lo+1}")
        A(f"s_mov_b32 s{b+2}, {hex(nbytes)}"); A(f"s_mov_b32 s{b+3}, 0x00020000")

    def stamp(idx):
        if not ts: return
        A("s_memrealtime s[90:91]")
        A("s_lshl_b32 s92, s2, 3"); A("s_add_u32 s92, s92, s3"); A("s_lshl_b32 s92, s92, 6")
        A(f"s_add_u32 s92, s92, {WS_TS + idx*4}")
        A("s_waitcnt lgkmcnt(0)")
        A(f"v_mov_b32 v{vT+2}, s90"); A(f"v_mov_b32 v{vT+1}, 0")
        A(f"buffer_store_dword v{vT+2}, v{vT+1}, {SWS}, s92 offen")

    def xgroup_reduce(op, v, tmp):
        A(f"v_mov_b32 v{tmp}, v{v}"); A("s_nop 1")
        A(f"v_permlane16_swap_b32 v{v}, v{tmp}")
        A(f"{op} v{v}, v{v}, v{tmp}")
        A(f"v_mov_b32 v{tmp}, v{v}"); A("s_nop 1")
        A(f"v_permlane32_swap_b32 v{v}, v{tmp}")
        A(f"{op} v{v}, v{v}, v{tmp}")

    def mfma(d, a, b, c):
        cs = "0" if c is None else vr(c, 4)
        A(f"v_mfma_f32_16x16x32_bf16 {vr(d,4)}, {vr(a,4)}, {vr(b,4)}, {cs}")

    def proj_issue(rowbase_s, colbyte_s, xs_off_s, inter=None):
        A(f"v_lshlrev_b32 v{vT}, 17, v{vG}"); A(f"v_lshl_add_u32 v{vT}, v{vN}, 4, v{vT}")
        A(f"v_lshlrev_b32 v{vT+1}, 5, v{vG}")
        A(f"buffer_load_dwordx4 {vr(vX,4)}, v{vT+1}, {SX}, {xs_off_s} offen")
        A(f"buffer_load_dwordx4 {vr(vX+4,4)}, v{vT+1}, {SX}, {xs_off_s} offen offset:16")
        A(f"s_lshl_b32 {sT0}, {rowbase_s}, 13"); A(f"s_add_u32 {sT0}, {sT0}, {colbyte_s}")
        for t in range(16):
            A(f"buffer_load_dwordx4 {vr(WQ+4*t,4)}, v{vT}, {SW}, {sT0} offen {wqflags}")
            if t < 15: A(f"s_add_u32 {sT0}, {sT0}, 8192")
            if inter and t < 15:
                k = len(inter) * (t + 1) // 15 - len(inter) * t // 15
                for _ in range(k):
                    if inter_pos[0] < len(inter): A(inter[inter_pos[0]]); inter_pos[0] += 1
    inter_pos = [0]

    def proj_compute(dst):
        for t in range(16):
            B = vB0 if t % 2 == 0 else vB1
            sel = sSELLO if t % 2 == 0 else sSELHI
            A(f"v_perm_b32 v{vt0}, v{vX+t//2}, v{vX+t//2}, {sel}")
            for r in range(4): A(f"v_and_b32 v{B+r}, v{vt0}, v{vM+r}")
            A("s_nop 1")
            mfma(dst, WQ + 4 * t, B, None if t == 0 else dst)

    def softmax_update(S, P, m, l, O, t0, t1, t2):
        A(f"v_max_f32 v{t0}, v{S}, v{S+1}")
        A(f"v_max3_f32 v{t0}, v{S+2}, v{S+3}, v{t0}")
        A(f"v_mov_b32 v{t1}, v{t0}"); A("s_nop 1")
        A(f"v_permlane16_swap_b32 v{t0}, v{t1}")
        A(f"v_max_f32 v{t0}, v{t0}, v{t1}")
        A(f"v_mov_b32 v{t1}, v{t0}"); A("s_nop 1")
        A(f"v_permlane32_swap_b32 v{t0}, v{t1}")
        A(f"v_max3_f32 v{t0}, v{t0}, v{t1}, v{m}")
        A(f"v_mul_f32 v{t1}, {sC}, v{t0}")
        A(f"v_fma_f32 v{t2}, v{m}, {sC}, -v{t1}")
        for r in range(4): A(f"v_fma_f32 v{P+r}, v{S+r}, {sC}, -v{t1}")
        A(f"v_exp_f32 v{t2}, v{t2}")
        for r in range(4): A(f"v_exp_f32 v{P+r}, v{P+r}")
        A(f"v_mov_b32 v{m}, v{t0}")
        A(f"v_fma_f32 v{l}, v{l}, v{t2}, v{P}")
        A(f"v_add_f32 v{t1}, v{P+1}, v{P+2}")
        for r in range(4): A(f"v_mul_f32 v{O+r}, v{O+r}, v{t2}")
        A(f"v_add_f32 v{l}, v{l}, v{P+3}")
        A(f"v_add_f32 v{l}, v{l}, v{t1}")

    def pv(O, P, vbase_fn):
        for t in range(4):
            B = vB0 if t % 2 == 0 else vB1
            A(f"v_cvt_pk_bf16_f32 v{vt0}, v{P+t}, v{P+t}")
            for r in range(4): A(f"v_and_b32 v{B+r}, v{vt0}, v{vM+r}")
            A("s_nop 1")
            mfma(O, vbase_fn(t), B, O)

    def issue_k(slot, soff):
        for i in range(4):
            A(f"buffer_load_dwordx4 {vr(kreg(slot,i),4)}, v{vKO}, {SK}, {soff} offen offset:{i*64} {kflags}")
    def issue_v(slot, soff):
        for i in range(4):
            A(f"buffer_load_dwordx4 {vr(vreg(slot,i),4)}, v{vVO}, {SV}, {soff} offen offset:{i*256} {kflags}")

    def poll_begin():
        lab = A.newlabel("L_poll")
        if phase[0] != "woA":
            sl = presleep
            while sl > 0:
                A(f"s_sleep {min(sl,127)}"); sl -= 127
        A(f"s_mov_b32 {sTO}, 0x200000")
        A.label(lab)
        return lab
    pollidx = [0]
    def poll_end(lab, tagregs):
        done = A.newlabel("L_pdone")
        A("s_waitcnt vmcnt(0)")
        A(f"v_xor_b32 v{vt0}, {sE}, v{tagregs[0]}")
        for tr in tagregs[1:]:
            A(f"v_xor_b32 v{vt1}, {sE}, v{tr}")
            A(f"v_or_b32 v{vt0}, v{vt0}, v{vt1}")
        A(f"v_cmp_ne_u32 vcc, 0, v{vt0}")
        A("s_nop 4")
        A(f"s_cbranch_vccz {done}")
        if nopoll: A(f"s_branch {done}")
        sl = tsleep if phase[0] == "woA" else sleep
        while sl > 0:
            A(f"s_sleep {min(sl,127)}"); sl -= 127
        A(f"s_sub_u32 {sTO}, {sTO}, 1")
        A(f"s_cmp_lg_u32 {sTO}, 0")
        A(f"s_cbranch_scc1 {lab}")
        A.label(done)
        if ts:
            A(f"s_sub_u32 s92, 0x200000, {sTO}"); A(f"v_mov_b32 v{vT+2}, s92"); A(f"v_mov_b32 v{vT+1}, 0")
            A(f"s_lshl_b32 s92, s2, 6"); A(f"s_add_u32 s92, s92, {WS_TS + 0x200000 + pollidx[0]*4}")
            A(f"buffer_store_dword v{vT+2}, v{vT+1}, {SWS}, s92 offen")
        pollidx[0] += 1

    def publish_half(Dreg, voff, soff):
        A(f"v_cndmask_b32 v{vB0}, v{Dreg}, v{Dreg+2}, {sHALF}")
        A(f"v_mov_b32 v{vB0+1}, {sE}")
        A(f"v_cndmask_b32 v{vB0+2}, v{Dreg+1}, v{Dreg+3}, {sHALF}")
        A(f"v_mov_b32 v{vB0+3}, {sE}")
        A(f"buffer_store_dwordx4 {vr(vB0,4)}, v{voff}, {SWS}, {soff} offen sc1")
    WO = RING
    PO = RING + 64
    vML = 60
    def wo_issue(ptr_lo, head_s, piece_s):
        srd(SW, ptr_lo, 0x400000)
        A(f"v_lshlrev_b32 v{vt1}, 14, v{vG}")
        A(f"v_lshl_add_u32 v{vt1}, v{vN}, 4, v{vt1}")
        A(f"s_lshl_b32 {sT0}, {head_s}, 17")
        A(f"s_lshr_b32 {sT1}, {piece_s}, 2"); A(f"s_lshl_b32 {sT1}, {sT1}, 16"); A(f"s_add_u32 {sT0}, {sT0}, {sT1}")
        A(f"s_and_b32 {sT1}, {piece_s}, 3"); A(f"s_lshl_b32 {sT1}, {sT1}, 8"); A(f"s_add_u32 {sT0}, {sT0}, {sT1}")
        for a in range(4):
            if a: A(f"s_add_u32 {sT0}, {sT0}, 4096")
            for b in range(4):
                t = a * 4 + b
                A(f"buffer_load_dwordx4 {vr(WO+4*t,4)}, v{vt1}, {SW}, {sT0} offen offset:{b*1024} {kflags}")
    def weights(NP):
        A(f"v_mov_b32 v{vt0}, v{vML}")
        for p0 in range(0, NP, 8):
            for p in range(8): A(f"v_readlane_b32 s{sRL+p}, v{vML}, {p0+p}")
            A("s_nop 1")
            for p in range(8): A(f"v_max_f32 v{vt0}, s{sRL+p}, v{vt0}")
        A(f"v_sub_f32 v{vt1}, v{vML}, v{vt0}"); A(f"v_mul_f32 v{vt1}, {sC}, v{vt1}"); A(f"v_exp_f32 v{vt1}, v{vt1}")
        A("s_nop 0")
        A(f"v_mul_f32 v{vt2}, v{vt1}, v{vML+2}")
        A(f"v_mov_b32 v{vt4}, 0"); A("s_nop 0")
        for p0 in range(0, NP, 8):
            for p in range(8): A(f"v_readlane_b32 s{sRL+p}, v{vt2}, {p0+p}")
            A("s_nop 1")
            for p in range(8): A(f"v_add_f32 v{vt4}, s{sRL+p}, v{vt4}")
        A(f"v_rcp_f32 v{vt4}, v{vt4}")
    def combine_direct(NP, ws_p, ws_ml, head_s, piece_s):
        A(f"v_and_b32 v{vt2}, {NP-1}, v{vLANE}"); A(f"v_lshlrev_b32 v{vt2}, 4, v{vt2}")
        A(f"v_lshlrev_b32 v{vt3}, 3, v{vLANE}")
        lab = poll_begin()
        A(f"s_mul_i32 {sT0}, {head_s}, {NP*16}"); A(f"s_add_u32 {sT0}, {sT0}, {ws_ml}")
        A(f"buffer_load_dwordx4 {vr(vML,4)}, v{vt2}, {SWS}, {sT0} offen sc1")
        A(f"s_mul_i32 {sT0}, {head_s}, {NP*1024}"); A(f"s_lshr_b32 {sT1}, {piece_s}, 2"); A(f"s_lshl_b32 {sT1}, {sT1}, 9")
        A(f"s_add_u32 {sT0}, {sT0}, {sT1}"); A(f"s_add_u32 {sT0}, {sT0}, {ws_p}")
        for p in range(NP):
            if p % 4 == 0 and p: A(f"s_add_u32 {sT0}, {sT0}, 4096")
            A(f"buffer_load_dwordx2 {vr(PO+2*p,2)}, v{vt3}, {SWS}, {sT0} offen offset:{(p%4)*1024} sc1")
        poll_end(lab, [vML + 1, vML + 3] + [PO + 2 * p + 1 for p in range(NP)])
        weights(NP)
        A(f"v_mov_b32 v{vt3}, 0")
        for p0 in range(0, NP, 8):
            for p in range(8): A(f"v_readlane_b32 s{sRL+p}, v{vt1}, {p0+p}")
            A("s_nop 1")
            for p in range(8): A(f"v_fma_f32 v{vt3}, v{PO+2*(p0+p)}, s{sRL+p}, v{vt3}")
        A(f"v_mul_f32 v{vt3}, v{vt3}, v{vt4}")
        A(f"v_cvt_pk_bf16_f32 v{vt3}, v{vt3}, v{vt3}")
    def combine_directB(NP, ws_p, ws_ml, head_s, piece_s):
        A(f"v_and_b32 v{vt2}, {NP-1}, v{vLANE}"); A(f"v_lshlrev_b32 v{vt2}, 4, v{vt2}")
        A(f"v_and_b32 v{vt3}, 1, v{vG}"); A(f"v_lshlrev_b32 v{vt3}, 10, v{vt3}")
        A(f"v_lshrrev_b32 v{vt1}, 1, v{vG}"); A(f"v_lshl_add_u32 v{vt3}, v{vt1}, 8, v{vt3}")
        A(f"v_and_b32 v{vt1}, 7, v{vN}"); A(f"v_lshl_add_u32 v{vt3}, v{vt1}, 4, v{vt3}")
        A(f"v_lshrrev_b32 v{vt1}, 3, v{vN}"); A(f"v_lshl_add_u32 v{vt3}, v{vt1}, 3, v{vt3}")
        lab = poll_begin()
        A(f"s_mul_i32 {sT0}, {head_s}, {NP*16}"); A(f"s_add_u32 {sT0}, {sT0}, {ws_ml}")
        A(f"buffer_load_dwordx4 {vr(vML,4)}, v{vt2}, {SWS}, {sT0} offen sc1")
        if mlfirst:
            poll_end(lab, [vML + 1, vML + 3])
            lab = poll_begin()
        A(f"s_lshr_b32 {sT0}, {head_s}, 1"); A(f"s_mul_i32 {sT0}, {sT0}, {NP*2048}"); A(f"s_add_u32 {sT0}, {sT0}, {ws_p}")
        A(f"s_and_b32 {sT1}, {head_s}, 1"); A(f"s_lshl_b32 {sT1}, {sT1}, 7"); A(f"s_add_u32 {sT0}, {sT0}, {sT1}")
        A(f"s_lshr_b32 {sT1}, {piece_s}, 2"); A(f"s_lshl_b32 {sT1}, {sT1}, 9"); A(f"s_add_u32 {sT0}, {sT0}, {sT1}")
        for p in range(NP):
            if p % 2 == 0 and p: A(f"s_add_u32 {sT0}, {sT0}, 4096")
            A(f"buffer_load_dwordx2 {vr(PO+2*p,2)}, v{vt3}, {SWS}, {sT0} offen offset:{(p%2)*2048} sc1")
        poll_end(lab, ([] if mlfirst else [vML + 1, vML + 3]) + [PO + 2 * p + 1 for p in range(NP)])
        weights(NP)
        A(f"v_mov_b32 v{vt3}, 0")
        for p0 in range(0, NP, 8):
            for p in range(8): A(f"v_readlane_b32 s{sRL+p}, v{vt1}, {p0+p}")
            A("s_nop 1")
            for p in range(8): A(f"v_fma_f32 v{vt3}, v{PO+2*(p0+p)}, s{sRL+p}, v{vt3}")
        A(f"v_mul_f32 v{vt3}, v{vt3}, v{vt4}")
        A(f"v_cvt_pk_bf16_f32 v{vt3}, v{vt3}, v{vt3}")
    def combine_full(NP, ws_p, ws_ml, ws_of, head_s):
        PF = 128; vMLs = vML
        A(f"v_and_b32 v{vt2}, {NP-1}, v{vLANE}"); A(f"v_lshlrev_b32 v{vt2}, 4, v{vt2}")
        A(f"v_lshrrev_b32 v{vt3}, 5, v{vLANE}"); A(f"v_lshlrev_b32 v{vt3}, 10, v{vt3}")
        A(f"v_bfe_u32 v{vt1}, v{vLANE}, 3, 2"); A(f"v_lshl_add_u32 v{vt3}, v{vt1}, 8, v{vt3}")
        A(f"v_and_b32 v{vt1}, 7, v{vLANE}"); A(f"v_lshl_add_u32 v{vt3}, v{vt1}, 4, v{vt3}")
        lab = poll_begin()
        A(f"s_mul_i32 {sT0}, {head_s}, {NP*16}"); A(f"s_add_u32 {sT0}, {sT0}, {ws_ml}")
        A(f"buffer_load_dwordx4 {vr(vML,4)}, v{vt2}, {SWS}, {sT0} offen sc1")
        poll_end(lab, [vML + 1, vML + 3])
        stamp(14)
        lab = poll_begin()
        A(f"s_lshr_b32 {sT0}, {head_s}, 1"); A(f"s_mul_i32 {sT0}, {sT0}, {NP*2048}"); A(f"s_add_u32 {sT0}, {sT0}, {ws_p}")
        A(f"s_and_b32 {sT1}, {head_s}, 1"); A(f"s_lshl_b32 {sT1}, {sT1}, 7"); A(f"s_add_u32 {sT0}, {sT0}, {sT1}")
        for p in range(NP):
            if p % 2 == 0 and p: A(f"s_add_u32 {sT0}, {sT0}, 4096")
            A(f"buffer_load_dwordx4 {vr(PF+4*p,4)}, v{vt3}, {SWS}, {sT0} offen offset:{(p%2)*2048} sc1")
        poll_end(lab, [PF + 4 * p + o for p in range(NP) for o in (1, 3)])
        stamp(15)
        weights(NP)
        A(f"v_mov_b32 v{vB0}, 0"); A(f"v_mov_b32 v{vB0+1}, 0")
        for p0 in range(0, NP, 8):
            for p in range(8): A(f"v_readlane_b32 s{sRL+p}, v{vt1}, {p0+p}")
            A("s_nop 1")
            for p in range(8):
                A(f"v_fma_f32 v{vB0}, v{PF+4*(p0+p)}, s{sRL+p}, v{vB0}")
                A(f"v_fma_f32 v{vB0+1}, v{PF+4*(p0+p)+2}, s{sRL+p}, v{vB0+1}")
        A(f"v_mul_f32 v{vB0}, v{vB0}, v{vt4}"); A(f"v_mul_f32 v{vB0+1}, v{vB0+1}, v{vt4}")
        A(f"v_cvt_pk_bf16_f32 v{vB0}, v{vB0}, v{vB0+1}"); A(f"v_mov_b32 v{vB0+1}, {sE}")
        A(f"v_lshlrev_b32 v{vt3}, 3, v{vLANE}")
        A(f"s_lshl_b32 {sT0}, {head_s}, 9"); A(f"s_add_u32 {sT0}, {sT0}, {ws_of}")
        A(f"buffer_store_dwordx2 {vr(vB0,2)}, v{vt3}, {SWS}, {sT0} offen sc1")
    def gather_final(ws_of, head_s, piece_s):
        A(f"v_and_b32 v{vt2}, 1, v{vG}"); A(f"v_lshlrev_b32 v{vt2}, 5, v{vt2}")
        A(f"v_lshrrev_b32 v{vt1}, 1, v{vG}"); A(f"v_lshl_add_u32 v{vt2}, v{vt1}, 3, v{vt2}")
        A(f"v_and_b32 v{vt1}, 7, v{vN}"); A(f"v_add_u32 v{vt2}, v{vt2}, v{vt1}"); A(f"v_lshlrev_b32 v{vt2}, 3, v{vt2}")
        lab = poll_begin()
        A(f"s_lshl_b32 {sT0}, {head_s}, 9"); A(f"s_lshr_b32 {sT1}, {piece_s}, 2"); A(f"s_lshl_b32 {sT1}, {sT1}, 7")
        A(f"s_add_u32 {sT0}, {sT0}, {sT1}"); A(f"s_add_u32 {sT0}, {sT0}, {ws_of}")
        A(f"buffer_load_dwordx2 {vr(vB0,2)}, v{vt2}, {SWS}, {sT0} offen sc1")
        poll_end(lab, [vB0 + 1])
        A(f"v_mov_b32 v{vt1}, {sSELLO}"); A(f"v_mov_b32 v{vt2}, {sSELHI}")
        A(f"v_cndmask_b32 v{vt1}, v{vt1}, v{vt2}, {sHALF}")
        A(f"v_perm_b32 v{vt3}, v{vB0}, v{vB0}, v{vt1}")
    def project(ws_y, head_s, piece_s):
        A("s_nop 1")
        for t in range(16):
            B = vB0 if t % 2 == 0 else vB1
            for r in range(4): A(f"v_and_b32_dpp v{B+r}, v{vt3}, v{vM+r} row_newbcast:{t} row_mask:0xf bank_mask:0xf")
            A("s_nop 1")
            mfma(vS, WO + 4 * t, B, None if t == 0 else vS)
        A(f"v_lshlrev_b32 v{vt1}, 4, v{vN}")
        A(f"v_lshl_add_u32 v{vt1}, v{vG}, 14, v{vt1}")
        A(f"s_and_b32 {sT0}, {piece_s}, 3"); A(f"s_lshl_b32 {sT0}, {sT0}, 16")
        A(f"s_lshl_b32 {sT1}, {head_s}, 1"); A(f"s_lshr_b32 {sT2}, {piece_s}, 2"); A(f"s_add_u32 {sT1}, {sT1}, {sT2}"); A(f"s_lshl_b32 {sT1}, {sT1}, 8")
        A(f"s_add_u32 {sT0}, {sT0}, {sT1}"); A(f"s_add_u32 {sT0}, {sT0}, {ws_y}")
        A("s_nop 3")
        publish_half(vS, vt1, sT0)
    def stage3(ws_y, outbyte, sel):
        skip = A.newlabel("L_noreduce")
        A(f"s_lshr_b32 {sT3}, {sWG}, 4"); A(f"s_and_b32 {sT0}, {sT3}, 7"); A(f"s_add_u32 {sT0}, {sT0}, {sel}")
        A(f"s_and_b32 {sT1}, {sWG}, 15"); A(f"s_cmp_lg_u32 {sT0}, {sT1}"); A(f"s_cbranch_scc1 {skip}")
        A(f"v_lshlrev_b32 v{vt4}, 4, v{vLANE}")
        lab = poll_begin()
        A(f"s_lshl_b32 {sT0}, {sT3}, 14"); A(f"s_add_u32 {sT0}, {sT0}, {ws_y}")
        for u in range(16):
            if u % 4 == 0 and u: A(f"s_add_u32 {sT0}, {sT0}, 4096")
            A(f"buffer_load_dwordx4 {vr(PO+4*u,4)}, v{vt4}, {SWS}, {sT0} offen offset:{(u%4)*1024} sc1")
        poll_end(lab, [PO + 4 * u + o for u in range(16) for o in (1, 3)])
        for u in range(1, 16):
            A(f"v_add_f32 v{PO}, v{PO}, v{PO+4*u}"); A(f"v_add_f32 v{PO+2}, v{PO+2}, v{PO+4*u+2}")
        xgroup_reduce("v_add_f32", PO, vt0)
        xgroup_reduce("v_add_f32", PO + 2, vt0)
        A(f"v_cvt_pk_bf16_f32 v{vt0}, v{PO}, v{PO+2}")
        A(f"v_and_b32 v{vt1}, 7, v{vN}"); A(f"v_lshrrev_b32 v{vt2}, 3, v{vN}"); A(f"v_lshl_add_u32 v{vt1}, v{vt2}, 4, v{vt1}")
        A(f"v_lshlrev_b32 v{vt1}, 1, v{vt1}")
        A(f"s_lshl_b32 {sT0}, {sT3}, 6"); A(f"s_add_u32 {sT0}, {sT0}, {outbyte}")
        A("s_mov_b64 exec, 0xffff")
        A(f"buffer_store_short v{vt0}, v{vt1}, {SOUT}, {sT0} offen")
        A(f"buffer_store_short_d16_hi v{vt0}, v{vt1}, {SOUT}, {sT0} offen offset:16")
        A("s_mov_b64 exec, -1")
        A.label(skip)

    A(f"s_cmp_ge_u32 {sWG}, 256"); A("s_cbranch_scc1 L_end")
    A("s_load_dwordx16 s[32:47], s[0:1], 0")
    A("s_load_dwordx8 s[48:55], s[0:1], 64")
    A("s_load_dwordx2 s[56:57], s[0:1], 96")
    A(f"v_lshrrev_b32 v1, 6, v0"); A("v_and_b32 v0, 63, v0"); A("s_nop 0")
    A(f"v_readfirstlane_b32 {sWAVE}, v1")
    A(f"v_and_b32 v{vN}, 15, v0"); A(f"v_lshrrev_b32 v{vG}, 4, v0")
    A(f"v_lshlrev_b32 v{vKO}, 8, v{vN}"); A(f"v_lshl_add_u32 v{vKO}, v{vG}, 4, v{vKO}")
    A(f"v_lshlrev_b32 v{vVO}, 10, v{vG}"); A(f"v_lshl_add_u32 v{vVO}, v{vN}, 4, v{vVO}")
    A(f"v_and_b32 v{vT}, 1, v{vN}")
    A(f"v_mov_b32 v{vT+1}, 0xffff")
    A(f"v_lshlrev_b32 v{vT}, 4, v{vT}")
    A(f"v_lshlrev_b32 v{vT+1}, v{vT}, v{vT+1}")
    A(f"v_bfe_u32 v{vT}, v{vN}, 1, 2")
    for r in range(4):
        A(f"v_cmp_eq_u32 vcc, {r}, v{vT}"); A("s_nop 1")
        A(f"v_cndmask_b32 v{vM+r}, 0, v{vT+1}, vcc")
    A(f"v_cmp_lt_u32 {sHALF}, 7, v{vN}")
    A(f"s_mov_b32 {sC}, {hex(f2u(CSCALE))}")
    A(f"s_mov_b32 {sSELLO}, 0x01000100"); A(f"s_mov_b32 {sSELHI}, 0x03020302")
    A(f"s_and_b32 {sH}, {sWG}, 7"); A(f"s_lshl_b32 {sH}, {sH}, 2")
    A(f"s_bfe_u32 {sT0}, {sWG}, 0x20003"); A(f"s_add_u32 {sH}, {sH}, {sT0}")
    A(f"s_lshr_b32 {sS}, {sWG}, 5")
    if hmap == 1:
        A(f"s_lshr_b32 {sH}, {sWG}, 3"); A(f"s_and_b32 {sS}, {sWG}, 7")
    A("s_waitcnt lgkmcnt(0)")
    srd(SW, 38, 0x400000); srd(SX, 32, 1024); srd(SWS, 56, WS_SIZE)
    stamp(0)
    A(f"s_cmp_eq_u32 {sWAVE}, {NSW}"); A("s_cbranch_scc1 L_service")

    srd(SK, 34, 0x10000000); srd(SV, 36, 0x10000000)
    sBASE = "s95"; sVAL = 76
    vNEXT = vT + 2; vCA = vT + 1; vONE = vT
    A(f"s_lshl_b32 {sBASE}, {sH}, 23"); A(f"s_lshl_b32 {sT0}, {sS}, 20"); A(f"s_add_u32 {sBASE}, {sBASE}, {sT0}")
    sROT = "s96"; sIDX = "s97"
    A(f"s_mul_i32 {sROT}, {sWG}, {arot}")
    A(f"s_mov_b32 {sIDX}, {sWAVE}")
    base_nt = NT // NSW; remw = NT % NSW
    A(f"s_cmp_lt_u32 {sWAVE}, {remw}"); A(f"s_cselect_b32 {sCNT}, {base_nt+1}, {base_nt}")
    A(f"s_sub_u32 {sISS}, {sCNT}, {D}")
    STR = NSW * 4096
    def aoff(idx):
        A(f"s_add_u32 {sKOFF}, {idx}, {sROT}"); A(f"s_and_b32 {sKOFF}, {sKOFF}, 255"); A(f"s_lshl_b32 {sKOFF}, {sKOFF}, 12"); A(f"s_add_u32 {sKOFF}, {sKOFF}, {sBASE}")
    assert dyn
    def issue_tile(slot):
        aoff(sIDX); issue_k(slot, sKOFF); issue_v(slot, sKOFF); A(f"s_add_u32 {sIDX}, {sIDX}, {NSW}")
    if prio: A("s_setprio 3")
    for s in range(pre): issue_tile(s)
    A(f"s_lshl_b32 {sT1}, {sWAVE}, 6"); A(f"s_lshl_b32 {sT2}, {sH}, 8"); A(f"s_lshl_b32 {sT3}, {sWAVE}, 7")
    n0 = len(A.L)
    for s in range(pre, pre + il): issue_tile(s)
    inter = [x.strip() for x in A.L[n0:]]; del A.L[n0:]
    phase[0] = "wqA"
    proj_issue(sT1, sT2, sT3, inter)
    phase[0] = "main"
    if prio: A("s_setprio 0")
    for s in range(pre + il, DP): issue_tile(s)
    A(f"v_mov_b32 v{vm}, 0xff800000"); A(f"v_mov_b32 v{vl}, 0")
    for r in range(4): A(f"v_mov_b32 v{vO+r}, 0")
    for s in range(D): A(f"s_mov_b32 s{sVAL+s}, 1")
    if prio: A("s_setprio 3")
    stamp(11)
    A(f"s_waitcnt vmcnt({(DP-pre-il)*8 + (1 if ts else 0)})")
    stamp(12)
    EP = max(DP, min(early, D, 4))
    for s in range(DP, EP): issue_tile(s)
    proj_compute(vS)
    def qpart_write():
        A(f"v_and_b32 v{vt1}, 7, v{vN}"); A(f"v_lshl_add_u32 v{vt1}, v{vG}, 3, v{vt1}"); A(f"v_lshlrev_b32 v{vt1}, 4, v{vt1}")
        A(f"s_lshl_b32 {sT0}, {sWAVE}, 9"); A(f"v_add_u32 v{vt1}, {sT0}, v{vt1}")
        A("s_nop 7")
        A(f"ds_write_b128 v{vt1}, {vr(vS,4)} offset:{L_QPART}")
        A("s_waitcnt lgkmcnt(0)")
        A("s_barrier")
    qpart_write()
    stamp(13)
    A(f"v_lshlrev_b32 v{vt1}, 3, v{vLANE}")
    for w in range(8): A(f"ds_read_b64 {vr(vQ+2*w,2)}, v{vt1} offset:{L_QPART + w*512}")
    A(f"v_lshrrev_b32 v{vt2}, 4, v{vLANE}"); A(f"v_lshlrev_b32 v{vt2}, 5, v{vt2}")
    A(f"v_bfe_u32 v{vt3}, v{vLANE}, 1, 3"); A(f"v_add_u32 v{vt2}, v{vt2}, v{vt3}")
    A(f"v_and_b32 v{vt3}, 1, v{vLANE}"); A(f"v_lshl_add_u32 v{vt2}, v{vt3}, 4, v{vt2}")
    A(f"v_lshlrev_b32 v{vt2}, 1, v{vt2}")
    A(f"s_lshl_b32 {sT0}, {sWAVE}, 8"); A(f"v_add_u32 v{vt2}, {sT0}, v{vt2}")
    A(f"v_lshlrev_b32 v{vt3}, 4, v{vG}"); A(f"v_add_u32 v{vt3}, {sT0}, v{vt3}")
    A("s_waitcnt lgkmcnt(0)")
    for w in range(1, 8):
        A(f"v_add_f32 v{vQ}, v{vQ}, v{vQ+2*w}"); A(f"v_add_f32 v{vQ+1}, v{vQ+1}, v{vQ+2*w+1}")
    A(f"v_cvt_pk_bf16_f32 v{vt0}, v{vQ}, v{vQ+1}")
    A(f"ds_write_b16 v{vt2}, v{vt0} offset:{L_QBF}")
    A(f"ds_write_b16_d16_hi v{vt2}, v{vt0} offset:{L_QBF+16}")
    A("s_waitcnt lgkmcnt(0)")
    for i in range(4): A(f"ds_read_b128 {vr(vQ+4*i,4)}, v{vt3} offset:{L_QBF + i*64}")
    A(f"s_mov_b32 {sNREC}, 0x10000000")
    A("s_waitcnt lgkmcnt(0)")
    stamp(1)
    if prio: A("s_setprio 0")
    for s in range(EP, D): issue_tile(s)
    def grab():
        A("s_mov_b64 exec, 1")
        A(f"ds_add_rtn_u32 v{vNEXT}, v{vCA}, v{vONE} offset:{L_CNT}")
        A("s_mov_b64 exec, -1")
    if dyn:
        A(f"v_mov_b32 v{vCA}, 0"); A(f"v_mov_b32 v{vONE}, 1")
        grab()
    A.label("L_loop")
    for s in range(D):
        if dyn:
            A(f"s_cmp_eq_u32 s{sVAL+s}, 0"); A("s_cbranch_scc1 L_sdone")
        A(f"s_waitcnt vmcnt({8*D-4})")
        for i in range(4): mfma(vS, kreg(s, i), vQ + 4 * i, None if i == 0 else vS)
        if dyn:
            A("s_waitcnt lgkmcnt(0)")
            A(f"v_readfirstlane_b32 {sT0}, v{vNEXT}")
            grab()
            aoff(sT0)
            if ts:
                lab = A.newlabel("L_nots")
                A(f"s_and_b32 s92, {sT0}, 15"); A("s_cmp_lg_u32 s92, 0"); A(f"s_cbranch_scc1 {lab}")
                A(f"s_cmp_gt_u32 {sT0}, 256"); A(f"s_cbranch_scc1 {lab}")
                A("s_memrealtime s[90:91]")
                A(f"s_lshl_b32 s92, s2, 7"); A(f"s_lshr_b32 s93, {sT0}, 2"); A("s_add_u32 s92, s92, s93"); A(f"s_add_u32 s92, s92, {WS_TS + 0x100000}")
                A("s_waitcnt lgkmcnt(0)")
                A(f"v_mov_b32 v{vt3}, s90")
                A(f"buffer_store_dword v{vt3}, v{vCA}, {SWS}, s92 offen")
                A.label(lab)
            A(f"s_cmp_lt_u32 {sT0}, {NT}"); A(f"s_cselect_b32 s{sVAL+s}, 1, 0")
        else:
            A(f"s_cmp_gt_i32 {sISS}, 0")
        A(f"s_cselect_b32 s6, {sNREC}, 0"); A(f"s_cselect_b32 s10, {sNREC}, 0")
        issue_k(s, sKOFF)
        A("s_nop 1")
        if not nocomp: softmax_update(vS, vP, vm, vl, vO, vt0, vt1, vt2)
        A(f"s_waitcnt vmcnt({8*D-4})")
        if not nocomp: pv(vO, vP, lambda t: vreg(s, t))
        issue_v(s, sKOFF)
        if not dyn:
            A(f"s_add_u32 {sKOFF}, {sKOFF}, {STR}")
            A(f"s_sub_u32 {sISS}, {sISS}, 1")
            A(f"s_sub_u32 {sCNT}, {sCNT}, 1")
            A(f"s_cmp_eq_u32 {sCNT}, 0")
            if s < D - 1: A("s_cbranch_scc1 L_sdone")
            else: A("s_cbranch_scc0 L_loop")
    if dyn: A("s_branch L_loop")
    A.label("L_sdone")
    xgroup_reduce("v_add_f32", vl, vt0)
    A(f"v_and_b32 v{vt1}, 7, v{vN}"); A(f"v_lshl_add_u32 v{vt1}, v{vG}, 5, v{vt1}"); A(f"v_lshlrev_b32 v{vt1}, 2, v{vt1}")
    A(f"s_lshl_b32 {sT0}, {sWAVE}, 9"); A(f"v_add_u32 v{vt1}, {sT0}, v{vt1}")
    A(f"s_lshl_b32 {sT0}, {sWAVE}, 3"); A(f"v_mov_b32 v{vt2}, {sT0}")
    A("s_nop 3")
    for r in range(4): A(f"ds_write_b32 v{vt1}, v{vO+r} offset:{L_OPART + r*32}")
    A(f"ds_write_b64 v{vt2}, {vr(vm,2)} offset:{L_ML}")
    A("s_waitcnt lgkmcnt(0)")
    stamp(2)
    if noB:
        A("s_barrier"); A("s_endpgm")
    else:
        A(f"s_cmp_eq_u32 {sWAVE}, 0"); A("s_cbranch_scc1 L_btail")
        A("s_barrier"); A("s_endpgm")
        A.label("L_btail")
        phase[0] = "woB"
        A("s_setprio 3")
        srd(SOUT, 52, 2048)
        A(f"s_lshr_b32 s93, {sWG}, 3"); A(f"s_and_b32 s94, {sWG}, 7")
        wo_issue(50, "s93", "s94")
        A("s_barrier")
        phase[0] = "woA"
        A(f"v_mov_b32 v{vt1}, 0")
        A(f"ds_read_b32 v{vt0}, v{vt1} offset:{L_EP}")
        A("s_waitcnt lgkmcnt(0)")
        A(f"v_readfirstlane_b32 {sE}, v{vt0}")
        A("s_nop 3")
        combine_directB(32, WS_PB, WS_MLB, "s93", "s94")
        stamp(5)
        project(WS_YB, "s93", "s94")
        stamp(6)
        stage3(WS_YB, 1024, 8)
        stamp(7)
        A("s_endpgm")
        phase[0] = "main"

    A.label("L_service")
    if sprio: A(f"s_setprio {sprio}")
    A(f"v_mov_b32 v{vt0}, {D*NSW}"); A(f"v_mov_b32 v{vt1}, 0")
    A(f"ds_write_b32 v{vt1}, v{vt0} offset:{L_CNT}")
    srd(SDBG, 54, 256); srd(SOUT, 52, 2048)
    srd(SK, 44, 0x4000000); srd(SV, 46, 0x4000000)
    A(f"s_lshl_b32 {sT1}, {sWAVE}, 6"); A(f"s_lshl_b32 {sT2}, {sH}, 8"); A(f"s_lshl_b32 {sT3}, {sWAVE}, 7")
    proj_issue(sT1, sT2, sT3)
    sBB, sKC = "s97", "s98"
    A(f"s_lshr_b32 {sT0}, {sWG}, 5"); A(f"s_lshl_b32 {sBB}, {sT0}, 23"); A(f"s_add_u32 {sBB}, {sBB}, {28672*256}")
    A(f"s_and_b32 {sKC}, {sWG}, 31")
    def boff(tl):
        if bperm == 0:
            A(f"s_lshl_b32 {sKOFF}, {sKC}, 15"); A(f"s_add_u32 {sKOFF}, {sKOFF}, {tl*4096}")
        elif bperm == 1:
            A(f"s_add_u32 {sKOFF}, {sKC}, {tl}"); A(f"s_and_b32 {sKOFF}, {sKOFF}, 7"); A(f"s_lshl_b32 {sKOFF}, {sKOFF}, 5")
            A(f"s_add_u32 {sKOFF}, {sKOFF}, {sKC}"); A(f"s_lshl_b32 {sKOFF}, {sKOFF}, 12")
        elif bperm == 2:
            A(f"s_add_u32 {sKOFF}, {sKC}, {tl}"); A(f"s_and_b32 {sKOFF}, {sKOFF}, 7"); A(f"s_lshl_b32 {sT0}, {sKC}, 3")
            A(f"s_add_u32 {sKOFF}, {sKOFF}, {sT0}"); A(f"s_lshl_b32 {sKOFF}, {sKOFF}, 12")
        A(f"s_add_u32 {sKOFF}, {sKOFF}, {sBB}")
    def issue_btile(slot):
        boff(slot); issue_k(slot, sKOFF); issue_v(slot, sKOFF)
    phase[0] = "Bkv"
    if not noB:
        for s in range(4): issue_btile(s)
    phase[0] = "main"
    A("s_waitcnt vmcnt(0)" if (noB or "Bkv" in skip) else "s_waitcnt vmcnt(32)")
    proj_compute(vS)
    qpart_write()
    if noB:
        if probe:
            P = probe
            A(f"v_lshlrev_b32 v{vt1}, 4, v{vLANE}")
            srdx = SWS if P["buf"] == "ws" else SK
            A(f"s_mov_b32 s18, 0x40000000")
            A(f"s_and_b32 {sT1}, {sWG}, {P['mask']}"); A(f"s_cmp_lg_u32 {sT1}, 0"); A("s_cbranch_scc1 L_noprobe")
            A(f"s_mul_i32 {sT0}, {sWG}, {P['perwg']}"); A(f"s_add_u32 {sT0}, {sT0}, {P['base']}")
            for r in range(P["rounds"]):
                for z in range(P.get("sl", 3)): A("s_sleep 127")
                if r == 1: stamp(14)
                A(f"s_mov_b32 {sT1}, {sT0}")
                for k in range(P["nload"]):
                    if k % 4 == 0 and k: A(f"s_add_u32 {sT1}, {sT1}, 4096")
                    if P["kind"] == "ld":
                        A(f"buffer_load_dwordx4 v[{64+4*k}:{67+4*k}], v{vt1}, {srdx}, {sT1} offen offset:{(k%4)*1024} {P['flags']}")
                    else:
                        A(f"buffer_store_dwordx4 v[64:67], v{vt1}, {srdx}, {sT1} offen offset:{(k%4)*1024} {P['flags']}")
                A("s_waitcnt vmcnt(0)")
                if r == 1: stamp(15)
                A(f"s_add_u32 {sT0}, {sT0}, {P['rstride']}")
            A.label("L_noprobe")
        A("s_barrier"); A("s_endpgm")
    srd(SW, 48, 0x400000); srd(SX, 42, 1024)
    A(f"s_and_b32 {sT1}, {sWG}, 7"); A(f"s_lshl_b32 {sT3}, {sT1}, 7"); A(f"s_lshl_b32 {sT1}, {sT1}, 6")
    A(f"s_lshr_b32 {sT2}, {sWG}, 3"); A(f"s_lshl_b32 {sT2}, {sT2}, 8")
    phase[0] = "wqB"
    proj_issue(sT1, sT2, sT3)
    phase[0] = "Bkv2"
    A(f"v_mov_b32 v{vt1}, 0")
    A(f"s_cmp_lg_u32 {sWG}, 0"); A("s_cbranch_scc1 L_ep_poll")
    A(f"buffer_load_dword v{vt0}, v{vt1}, {SWS}, 0 offen sc1")
    A(f"buffer_load_dword v{vt2}, v{vt1}, {SDBG}, 0 offen sc1")
    A("s_waitcnt vmcnt(0)")
    A(f"v_readfirstlane_b32 {sT0}, v{vt0}")
    A(f"v_readfirstlane_b32 {sE}, v{vt2}")
    A("s_nop 3")
    A(f"s_cmp_lg_u32 {sE}, 0"); A("s_cbranch_scc1 L_ep_done")
    A(f"s_mul_i32 {sE}, {sT0}, 0x9E3779B1"); A(f"s_add_u32 {sE}, {sE}, 0x7F4A7C15")
    A(f"s_xor_b32 {sT1}, {sE}, 0x55555555")
    A(f"s_cmp_eq_u32 {sE}, {sT0}"); A(f"s_cselect_b32 {sE}, {sT1}, {sE}")
    A(f"s_cmp_eq_u32 {sT0}, 1"); A(f"s_cselect_b32 {sT1}, 2, 1")
    A(f"s_cmp_eq_u32 {sE}, 0"); A(f"s_cselect_b32 {sE}, {sT1}, {sE}")
    A(f"v_mov_b32 v{vt0}, {sE}")
    A("s_mov_b64 exec, 1")
    A(f"buffer_store_dword v{vt0}, v{vt1}, {SDBG}, 0 offen sc1")
    A(f"buffer_store_dword v{vt0}, v{vt1}, {SWS}, 0 offen sc1")
    A("s_mov_b64 exec, -1")
    A("s_branch L_ep_done")
    A.label("L_ep_poll")
    A(f"s_mov_b32 {sTO}, 0x200000")
    A.label("L_ep_loop")
    A(f"buffer_load_dword v{vt0}, v{vt1}, {SDBG}, 0 offen sc1")
    A("s_waitcnt vmcnt(0)")
    A(f"v_readfirstlane_b32 {sE}, v{vt0}")
    A("s_nop 3")
    A(f"s_cmp_lg_u32 {sE}, 0"); A("s_cbranch_scc1 L_ep_done")
    if nopoll: A("s_branch L_ep_done")
    A(f"s_sleep {sleep}")
    A(f"s_sub_u32 {sTO}, {sTO}, 1"); A(f"s_cmp_lg_u32 {sTO}, 0"); A("s_cbranch_scc1 L_ep_loop")
    A.label("L_ep_done")
    A("s_waitcnt vmcnt(0)")
    proj_compute(vS)
    vPOS = vt5
    A(f"v_lshlrev_b32 v{vPOS}, 4, v{vLANE}")
    A(f"s_lshl_b32 {sT0}, {sWG}, 10"); A(f"s_add_u32 {sT0}, {sT0}, {WS_QB}")
    A("s_nop 7")
    publish_half(vS, vPOS, sT0)
    stamp(3)
    if stopat == 3:
        A("s_waitcnt vmcnt(0)"); A("s_barrier"); A("s_endpgm")
    vLO16 = vt4; vLO8 = vt5
    A(f"v_lshlrev_b32 v{vLO16}, 4, v{vLANE}"); A(f"v_lshlrev_b32 v{vLO8}, 3, v{vLANE}")
    sCOMB = "s96"
    A(f"s_bfe_u32 {sT0}, {sWG}, 0x30003"); A(f"s_and_b32 {sT1}, {sWG}, 7"); A(f"s_cmp_eq_u32 {sT0}, {sT1}"); A(f"s_cselect_b32 {sCOMB}, 1, 0")
    A("s_cbranch_scc0 L_noqcomb")
    lab = poll_begin()
    A(f"s_lshr_b32 {sT0}, {sWG}, 3"); A(f"s_lshl_b32 {sT0}, {sT0}, 13"); A(f"s_add_u32 {sT0}, {sT0}, {WS_QB}")
    for k in range(8):
        if k % 4 == 0 and k: A(f"s_add_u32 {sT0}, {sT0}, 4096")
        A(f"buffer_load_dwordx4 {vr(WQ+4*k,4)}, v{vLO16}, {SWS}, {sT0} offen offset:{(k%4)*1024} sc1")
    poll_end(lab, [WQ + 4 * k + o for k in range(8) for o in (1, 3)])
    for k in range(1, 8):
        A(f"v_add_f32 v{WQ}, v{WQ}, v{WQ+4*k}"); A(f"v_add_f32 v{WQ+2}, v{WQ+2}, v{WQ+4*k+2}")
    A(f"v_cvt_pk_bf16_f32 v{vB0}, v{WQ}, v{WQ+2}"); A(f"v_mov_b32 v{vB0+1}, {sE}")
    A(f"s_lshr_b32 {sT0}, {sWG}, 3"); A(f"s_lshl_b32 {sT0}, {sT0}, 9"); A(f"s_add_u32 {sT0}, {sT0}, {WS_QBF}")
    A(f"buffer_store_dwordx2 {vr(vB0,2)}, v{vLO8}, {SWS}, {sT0} offen sc1")
    A.label("L_noqcomb")
    lab = poll_begin()
    A(f"s_lshr_b32 {sT0}, {sWG}, 5"); A(f"s_lshl_b32 {sT0}, {sT0}, 11"); A(f"s_add_u32 {sT0}, {sT0}, {WS_QBF}")
    for hh in range(4):
        A(f"buffer_load_dwordx2 {vr(vQ+2*hh,2)}, v{vLO8}, {SWS}, {sT0} offen offset:{hh*512} sc1")
    poll_end(lab, [vQ + 2 * hh + 1 for hh in range(4)])
    A(f"v_lshlrev_b32 v{vt2}, 5, v{vG}")
    A(f"v_lshrrev_b32 v{vt3}, 3, v{vN}"); A(f"v_lshl_add_u32 v{vt2}, v{vt3}, 4, v{vt2}")
    A(f"v_and_b32 v{vt3}, 7, v{vN}"); A(f"v_add_u32 v{vt2}, v{vt2}, v{vt3}")
    A(f"v_lshlrev_b32 v{vt2}, 1, v{vt2}")
    for hh in range(4):
        A(f"ds_write_b16 v{vt2}, v{vQ+2*hh} offset:{L_QBB + hh*256}")
        A(f"ds_write_b16_d16_hi v{vt2}, v{vQ+2*hh} offset:{L_QBB + hh*256 + 16}")
    A("s_waitcnt lgkmcnt(0)")
    QBp = [vQ, WQ]
    stO = [vO, WQ + 16]; stS = [vS, WQ + 20]; stP = [vP, WQ + 24]; stm = [vm, WQ + 28]; stl = [vl, WQ + 29]
    A(f"v_lshrrev_b32 v{vt3}, 3, v{vN}"); A(f"v_lshlrev_b32 v{vt3}, 8, v{vt3}"); A(f"v_lshl_add_u32 v{vt3}, v{vG}, 4, v{vt3}")
    for pp in range(2):
        for i in range(4): A(f"ds_read_b128 {vr(QBp[pp]+4*i,4)}, v{vt3} offset:{L_QBB + pp*512 + i*64}")
        A(f"v_mov_b32 v{stm[pp]}, 0xff800000"); A(f"v_mov_b32 v{stl[pp]}, 0")
        for r in range(4): A(f"v_mov_b32 v{stO[pp]+r}, 0")
    A("s_waitcnt lgkmcnt(0)")
    stamp(4)
    if stopat == 4:
        A("s_waitcnt vmcnt(0)"); A("s_barrier"); A("s_endpgm")
    for tl in range(8):
        s = tl % 4
        if tl >= 4:
            A(f"s_waitcnt vmcnt({(7-tl)*8 + 4})")
        for pp in range(2):
            for i in range(4): mfma(stS[pp], kreg(s, i), QBp[pp] + 4 * i, None if i == 0 else stS[pp])
        if tl < 4:
            boff(tl + 4); issue_k(s, sKOFF)
        A("s_nop 7")
        for pp in range(2):
            softmax_update(stS[pp], stP[pp], stm[pp], stl[pp], stO[pp], vt0, vt1, vt2)
        if tl >= 4:
            A(f"s_waitcnt vmcnt({(7-tl)*8})")
        for pp in range(2):
            pv(stO[pp], stP[pp], lambda t: vreg(s, t))
        if tl < 4:
            issue_v(s, sKOFF)
    phase[0] = "woA"
    wo_issue(40, sH, sS)
    A(f"v_mov_b32 v{vt0}, {sE}"); A(f"v_mov_b32 v{vt1}, 0")
    A(f"ds_write_b32 v{vt1}, v{vt0} offset:{L_EP}")
    A("s_waitcnt lgkmcnt(0)")
    A("s_barrier")
    stamp(8)
    phase[0] = "woA"
    A(f"v_lshlrev_b32 v{vt1}, 4, v{vLANE}")
    A(f"v_lshrrev_b32 v{vt2}, 3, v{vN}")
    A(f"v_lshlrev_b32 v{vt3}, 9, v{vt2}")
    A(f"s_lshr_b32 {sT0}, {sWG}, 5"); A(f"s_lshl_b32 {sT0}, {sT0}, 17")
    A(f"s_and_b32 {sT1}, {sWG}, 31"); A(f"s_lshl_b32 {sT2}, {sT1}, 11"); A(f"s_add_u32 {sT0}, {sT0}, {sT2}")
    A(f"s_add_u32 {sT0}, {sT0}, {WS_PB}")
    A(f"s_lshr_b32 {sT2}, {sWG}, 5"); A(f"s_lshl_b32 {sT2}, {sT2}, 11"); A(f"s_lshl_b32 {sT1}, {sT1}, 4"); A(f"s_add_u32 {sT2}, {sT2}, {sT1}")
    A(f"s_add_u32 {sT2}, {sT2}, {WS_MLB}")
    A("s_nop 7")
    for pp in range(2):
        xgroup_reduce("v_add_f32", stl[pp], vt0)
        for hf in range(2):
            A(f"v_mov_b32 v{vB0}, v{stO[pp]+2*hf}"); A(f"v_mov_b32 v{vB0+1}, {sE}")
            A(f"v_mov_b32 v{vB0+2}, v{stO[pp]+2*hf+1}"); A(f"v_mov_b32 v{vB0+3}, {sE}")
            A(f"buffer_store_dwordx4 {vr(vB0,4)}, v{vt1}, {SWS}, {sT0} offen offset:{hf*1024} sc1")
            A("s_nop 1")
        A(f"v_mov_b32 v{vB1}, v{stm[pp]}"); A(f"v_mov_b32 v{vB1+1}, {sE}"); A(f"v_mov_b32 v{vB1+2}, v{stl[pp]}"); A(f"v_mov_b32 v{vB1+3}, {sE}")
        pass
        A("s_mov_b64 exec, 0x101")
        A(f"buffer_store_dwordx4 {vr(vB1,4)}, v{vt3}, {SWS}, {sT2} offen sc1")
        A("s_mov_b64 exec, -1")
        phase[0] = "woA"
        A("s_nop 1")
        if pp == 0:
            A(f"s_add_u32 {sT0}, {sT0}, 0x10000"); A(f"s_add_u32 {sT2}, {sT2}, 1024")
    A(f"v_lshlrev_b32 v{vt1}, 3, v{vLANE}"); A(f"v_mov_b32 v{vt2}, 0")
    MLW = PO + 16
    for w in range(NSW):
        A(f"ds_read_b64 {vr(PO+2*w,2)}, v{vt1} offset:{L_OPART + w*512}")
        A(f"ds_read_b64 {vr(MLW+2*w,2)}, v{vt2} offset:{L_ML + w*8}")
    A("s_waitcnt lgkmcnt(0)")
    A(f"v_mov_b32 v{vt0}, v{MLW}")
    for w in range(1, NSW): A(f"v_max_f32 v{vt0}, v{vt0}, v{MLW+2*w}")
    for w in range(NSW):
        A(f"v_sub_f32 v{MLW+2*w}, v{MLW+2*w}, v{vt0}"); A(f"v_mul_f32 v{MLW+2*w}, {sC}, v{MLW+2*w}"); A(f"v_exp_f32 v{MLW+2*w}, v{MLW+2*w}")
    A("s_nop 0")
    A(f"v_mul_f32 v{vB0}, v{PO}, v{MLW}"); A(f"v_mul_f32 v{vB0+2}, v{PO+1}, v{MLW}"); A(f"v_mul_f32 v{vB1+2}, v{MLW+1}, v{MLW}")
    for w in range(1, NSW):
        A(f"v_fma_f32 v{vB0}, v{PO+2*w}, v{MLW+2*w}, v{vB0}"); A(f"v_fma_f32 v{vB0+2}, v{PO+2*w+1}, v{MLW+2*w}, v{vB0+2}")
        A(f"v_fma_f32 v{vB1+2}, v{MLW+2*w+1}, v{MLW+2*w}, v{vB1+2}")
    A(f"v_mov_b32 v{vB0+1}, {sE}"); A(f"v_mov_b32 v{vB0+3}, {sE}")
    A(f"v_mov_b32 v{vB1}, v{vt0}"); A(f"v_mov_b32 v{vB1+1}, {sE}"); A(f"v_mov_b32 v{vB1+3}, {sE}")
    A(f"v_lshlrev_b32 v{vt1}, 4, v{vLANE}")
    A(f"s_lshl_b32 {sT0}, {sH}, 3"); A(f"s_add_u32 {sT0}, {sT0}, {sS}"); A(f"s_lshl_b32 {sT1}, {sT0}, 4"); A(f"s_lshl_b32 {sT0}, {sT0}, 10")
    A(f"s_add_u32 {sT0}, {sT0}, {WS_PA}"); A(f"s_add_u32 {sT1}, {sT1}, {WS_MLA}")
    A(f"buffer_store_dwordx4 {vr(vB0,4)}, v{vt1}, {SWS}, {sT0} offen sc1")
    A("s_mov_b64 exec, 1")
    A(f"buffer_store_dwordx4 {vr(vB1,4)}, v{vt2}, {SWS}, {sT1} offen sc1")
    A("s_mov_b64 exec, -1")
    A("s_nop 1")
    combine_direct(8, WS_PA, WS_MLA, sH, sS)
    project(WS_YA, sH, sS)
    stamp(9)
    stage3(WS_YA, 0, 0)
    stamp(10)
    A.label("L_end")
    A("s_endpgm")

    out = HEADER + f"; @launch grid=(256,1,1) block=({(NSW+1)*64},1,1) lds={LDS_SIZE}\n"
    out += '.amdgcn_target "amdgcn-amd-amdhsa--gfx950"\n.text\n' + f".globl {KNAME}\n.p2align 8\n.type {KNAME},@function\n{KNAME}:\n"
    out += "\n".join(A.L) + "\n"
    nv = 256
    out += f""".section .rodata,"a"
.p2align 6
.amdhsa_kernel {KNAME}
  .amdhsa_next_free_vgpr {nv}
  .amdhsa_next_free_sgpr 102
  .amdhsa_accum_offset {nv}
  .amdhsa_group_segment_fixed_size 0
  .amdhsa_kernarg_size 104
  .amdhsa_user_sgpr_count 2
  .amdhsa_user_sgpr_kernarg_segment_ptr 1
  .amdhsa_system_sgpr_workgroup_id_x 1
.end_amdhsa_kernel
"""
    return out

if __name__ == "__main__":
    cfg = json.loads(sys.argv[2]) if len(sys.argv) > 2 else {}
    open(sys.argv[1], "w").write(gen(**cfg))
```

```python
import sys, json, math
KNAME = "concat_heads__mha_block_cached__sliding_block_cached__decode_kernel"

HEADER = """; Kernarg layout for this problem (104 bytes, ptrs only, base s[0:1]):
;   offset  96: d_ws      1073741824 bytes workspace (unspecified values whenever your kernel or launch list starts; a list's later launches find what earlier ones wrote)
; grid=ceil(out_elems/256), lds=0). Harness parses it; keep it on one line.
"""

WS_EPOCH = 0
WS_QB   = 0x100000
WS_PB   = 0x200000
WS_MLB  = 0x300000
WS_PA   = 0x340000
WS_MLA  = 0x380000
WS_QBF  = 0x3C0000
WS_OBF  = 0x3D0000
WS_YB   = 0x400000
WS_YA   = 0x480000
WS_TS   = 0x800000
WS_SIZE = 0x1000000

L_QPART = 0
L_QBF   = 4096
L_OPART = 6144
L_ML    = 10240
L_EP    = 10312
L_CNT   = 10304
L_QBB   = 10496
LDS_SIZE = 12288

CSCALE = (128 ** -0.5) * math.log2(math.e)
import struct
def f2u(x): return struct.unpack("<I", struct.pack("<f", x))[0]

class G:
    def __init__(s): s.L = []; s.nl = 0
    def __call__(s, x): s.L.append("  " + x)
    def label(s, x): s.L.append(x + ":")
    def newlabel(s, p="L"): s.nl += 1; return f"{p}_{s.nl}"
    def c(s, x): s.L.append("  ; " + x)

def vr(a, n): return f"v[{a}:{a+n-1}]"

def gen(D=6, NSW=7, ts=False, pre=1, kflags="nt", sleep=2, wqflags="", dyn=True, prio=True, dp=4, noB=False, nocomp=False, stopat=0, nopoll=False, nostore=False, nogather=False, noW=False, noKV=False, probe=None, sprio=3, skip=(), bperm=1, arot=0, stflags=None, ldflags=None, tsleep=1, presleep=0, il=0, early=4, hmap=0, mlfirst=True, dts=False):
    A = G()
    _emit = A.__call__
    phase = ["main"]
    def filt(x):
        if nostore and x.startswith("buffer_store") and "sc1" in x: return
        if nogather and x.startswith("buffer_load") and "sc1" in x: return
        if x.startswith("buffer_load") and "sc1" not in x and phase[0] in skip: return
        if x.startswith("buffer_store") and phase[0] + "_st" in skip: return
        if x.startswith("buffer_store") and "sc1" in x and stflags is not None and phase[0] != "woA": x = x.replace("sc1", stflags)
        if x.startswith("buffer_load") and "sc1" in x and ldflags is not None and phase[0] != "woA": x = x.replace("sc1", ldflags)
        A.L.append("  " + x)
    A.__class__.__call__ = lambda self, x: filt(x)
    NT = 256
    sWG, sWAVE = "s2", "s3"
    SK, SV, SW, SWS, SX, SDBG, SOUT = "s[4:7]", "s[8:11]", "s[12:15]", "s[16:19]", "s[20:23]", "s[24:27]", "s[28:31]"
    sC, sNC = "s58", "s59"
    sH, sS = "s60", "s61"
    sKOFF, sCNT, sISS = "s62", "s63", "s64"
    sT0, sT1, sT2, sT3 = "s65", "s66", "s67", "s68"
    sE = "s69"
    sSELLO, sSELHI = "s70", "s71"
    sHALF = "s[72:73]"
    sTO = "s74"
    sNREC = "s75"
    sRL = 76
    vLANE, vN, vG, vKO, vVO = 0, 1, 2, 3, 4
    vM = 5
    vT = 9
    vQ = 12; vO = 28; vS = 32; vP = 36; vB0 = 40; vB1 = 44; vm = 48; vl = 49
    vt0, vt1, vt2, vt3, vt4, vt5 = 50, 51, 52, 53, 54, 55
    vX = 56
    RING = 64
    def kreg(slot, i): return RING + slot * 32 + i * 4
    def vreg(slot, i): return RING + slot * 32 + 16 + i * 4
    WQ = RING + 128
    DP = max(min(D, dp), pre + il)

    def srd(dst, ptr_lo, nbytes):
        b = int(dst[2:].split(":")[0])
        A(f"s_mov_b32 s{b}, s{ptr_lo}"); A(f"s_mov_b32 s{b+1}, s{ptr_lo+1}")
        A(f"s_mov_b32 s{b+2}, {hex(nbytes)}"); A(f"s_mov_b32 s{b+3}, 0x00020000")

    def stamp(idx):
        if dts:
            m = {0: 0, 1: 1, 2: 2, 10: 3, 7: 4, 8: 5}
            if idx not in m: return
            k = m[idx]
            A("s_memrealtime s[90:91]")
            A("s_waitcnt lgkmcnt(0)")
            A("s_not_b32 s91, s90")
            A(f"v_mov_b32 v{vT+2}, s90"); A(f"v_mov_b32 v{vT+1}, 0"); A(f"v_mov_b32 v{vT}, s91")
            A("s_mov_b64 exec, 1")
            A(f"buffer_atomic_umax v{vT+2}, v{vT+1}, {SDBG}, 0 offen offset:{4+8*k} sc1")
            A(f"buffer_atomic_umax v{vT}, v{vT+1}, {SDBG}, 0 offen offset:{8+8*k} sc1")
            A("s_mov_b64 exec, -1")
            return
        if not ts: return
        A("s_memrealtime s[90:91]")
        A("s_lshl_b32 s92, s2, 3"); A("s_add_u32 s92, s92, s3"); A("s_lshl_b32 s92, s92, 6")
        A(f"s_add_u32 s92, s92, {WS_TS + idx*4}")
        A("s_waitcnt lgkmcnt(0)")
        A(f"v_mov_b32 v{vT+2}, s90"); A(f"v_mov_b32 v{vT+1}, 0")
        A(f"buffer_store_dword v{vT+2}, v{vT+1}, {SWS}, s92 offen")

    def xgroup_reduce(op, v, tmp):
        A(f"v_mov_b32 v{tmp}, v{v}"); A("s_nop 1")
        A(f"v_permlane16_swap_b32 v{v}, v{tmp}")
        A(f"{op} v{v}, v{v}, v{tmp}")
        A(f"v_mov_b32 v{tmp}, v{v}"); A("s_nop 1")
        A(f"v_permlane32_swap_b32 v{v}, v{tmp}")
        A(f"{op} v{v}, v{v}, v{tmp}")

    def mfma(d, a, b, c):
        cs = "0" if c is None else vr(c, 4)
        A(f"v_mfma_f32_16x16x32_bf16 {vr(d,4)}, {vr(a,4)}, {vr(b,4)}, {cs}")

    def proj_issue(rowbase_s, colbyte_s, xs_off_s, inter=None):
        A(f"v_lshlrev_b32 v{vT}, 17, v{vG}"); A(f"v_lshl_add_u32 v{vT}, v{vN}, 4, v{vT}")
        A(f"v_lshlrev_b32 v{vT+1}, 5, v{vG}")
        A(f"buffer_load_dwordx4 {vr(vX,4)}, v{vT+1}, {SX}, {xs_off_s} offen")
        A(f"buffer_load_dwordx4 {vr(vX+4,4)}, v{vT+1}, {SX}, {xs_off_s} offen offset:16")
        A(f"s_lshl_b32 {sT0}, {rowbase_s}, 13"); A(f"s_add_u32 {sT0}, {sT0}, {colbyte_s}")
        for t in range(16):
            A(f"buffer_load_dwordx4 {vr(WQ+4*t,4)}, v{vT}, {SW}, {sT0} offen {wqflags}")
            if t < 15: A(f"s_add_u32 {sT0}, {sT0}, 8192")
            if inter and t < 15:
                k = len(inter) * (t + 1) // 15 - len(inter) * t // 15
                for _ in range(k):
                    if inter_pos[0] < len(inter): A(inter[inter_pos[0]]); inter_pos[0] += 1
    inter_pos = [0]

    def proj_compute(dst):
        for t in range(16):
            B = vB0 if t % 2 == 0 else vB1
            sel = sSELLO if t % 2 == 0 else sSELHI
            A(f"v_perm_b32 v{vt0}, v{vX+t//2}, v{vX+t//2}, {sel}")
            for r in range(4): A(f"v_and_b32 v{B+r}, v{vt0}, v{vM+r}")
            A("s_nop 1")
            mfma(dst, WQ + 4 * t, B, None if t == 0 else dst)

    def softmax_update(S, P, m, l, O, t0, t1, t2):
        A(f"v_max_f32 v{t0}, v{S}, v{S+1}")
        A(f"v_max3_f32 v{t0}, v{S+2}, v{S+3}, v{t0}")
        A(f"v_mov_b32 v{t1}, v{t0}"); A("s_nop 1")
        A(f"v_permlane16_swap_b32 v{t0}, v{t1}")
        A(f"v_max_f32 v{t0}, v{t0}, v{t1}")
        A(f"v_mov_b32 v{t1}, v{t0}"); A("s_nop 1")
        A(f"v_permlane32_swap_b32 v{t0}, v{t1}")
        A(f"v_max3_f32 v{t0}, v{t0}, v{t1}, v{m}")
        A(f"v_mul_f32 v{t1}, {sC}, v{t0}")
        A(f"v_fma_f32 v{t2}, v{m}, {sC}, -v{t1}")
        for r in range(4): A(f"v_fma_f32 v{P+r}, v{S+r}, {sC}, -v{t1}")
        A(f"v_exp_f32 v{t2}, v{t2}")
        for r in range(4): A(f"v_exp_f32 v{P+r}, v{P+r}")
        A(f"v_mov_b32 v{m}, v{t0}")
        A(f"v_fma_f32 v{l}, v{l}, v{t2}, v{P}")
        A(f"v_add_f32 v{t1}, v{P+1}, v{P+2}")
        for r in range(4): A(f"v_mul_f32 v{O+r}, v{O+r}, v{t2}")
        A(f"v_add_f32 v{l}, v{l}, v{P+3}")
        A(f"v_add_f32 v{l}, v{l}, v{t1}")

    def pv(O, P, vbase_fn):
        for t in range(4):
            B = vB0 if t % 2 == 0 else vB1
            A(f"v_cvt_pk_bf16_f32 v{vt0}, v{P+t}, v{P+t}")
            for r in range(4): A(f"v_and_b32 v{B+r}, v{vt0}, v{vM+r}")
            A("s_nop 1")
            mfma(O, vbase_fn(t), B, O)

    def issue_k(slot, soff):
        for i in range(4):
            A(f"buffer_load_dwordx4 {vr(kreg(slot,i),4)}, v{vKO}, {SK}, {soff} offen offset:{i*64} {kflags}")
    def issue_v(slot, soff):
        for i in range(4):
            A(f"buffer_load_dwordx4 {vr(vreg(slot,i),4)}, v{vVO}, {SV}, {soff} offen offset:{i*256} {kflags}")

    def poll_begin():
        lab = A.newlabel("L_poll")
        if phase[0] != "woA":
            sl = presleep
            while sl > 0:
                A(f"s_sleep {min(sl,127)}"); sl -= 127
        A(f"s_mov_b32 {sTO}, 0x200000")
        A.label(lab)
        return lab
    pollidx = [0]
    def poll_end(lab, tagregs):
        done = A.newlabel("L_pdone")
        A("s_waitcnt vmcnt(0)")
        A(f"v_xor_b32 v{vt0}, {sE}, v{tagregs[0]}")
        for tr in tagregs[1:]:
            A(f"v_xor_b32 v{vt1}, {sE}, v{tr}")
            A(f"v_or_b32 v{vt0}, v{vt0}, v{vt1}")
        A(f"v_cmp_ne_u32 vcc, 0, v{vt0}")
        A("s_nop 4")
        A(f"s_cbranch_vccz {done}")
        if nopoll: A(f"s_branch {done}")
        sl = tsleep if phase[0] == "woA" else sleep
        while sl > 0:
            A(f"s_sleep {min(sl,127)}"); sl -= 127
        A(f"s_sub_u32 {sTO}, {sTO}, 1")
        A(f"s_cmp_lg_u32 {sTO}, 0")
        A(f"s_cbranch_scc1 {lab}")
        A.label(done)
        if ts:
            A(f"s_sub_u32 s92, 0x200000, {sTO}"); A(f"v_mov_b32 v{vT+2}, s92"); A(f"v_mov_b32 v{vT+1}, 0")
            A(f"s_lshl_b32 s92, s2, 6"); A(f"s_add_u32 s92, s92, {WS_TS + 0x200000 + pollidx[0]*4}")
            A(f"buffer_store_dword v{vT+2}, v{vT+1}, {SWS}, s92 offen")
        pollidx[0] += 1

    def publish_half(Dreg, voff, soff):
        A(f"v_cndmask_b32 v{vB0}, v{Dreg}, v{Dreg+2}, {sHALF}")
        A(f"v_mov_b32 v{vB0+1}, {sE}")
        A(f"v_cndmask_b32 v{vB0+2}, v{Dreg+1}, v{Dreg+3}, {sHALF}")
        A(f"v_mov_b32 v{vB0+3}, {sE}")
        A(f"buffer_store_dwordx4 {vr(vB0,4)}, v{voff}, {SWS}, {soff} offen sc1")
    WO = RING
    PO = RING + 64
    vML = 60
    def wo_issue(ptr_lo, head_s, piece_s):
        srd(SW, ptr_lo, 0x400000)
        A(f"v_lshlrev_b32 v{vt1}, 14, v{vG}")
        A(f"v_lshl_add_u32 v{vt1}, v{vN}, 4, v{vt1}")
        A(f"s_lshl_b32 {sT0}, {head_s}, 17")
        A(f"s_lshr_b32 {sT1}, {piece_s}, 2"); A(f"s_lshl_b32 {sT1}, {sT1}, 16"); A(f"s_add_u32 {sT0}, {sT0}, {sT1}")
        A(f"s_and_b32 {sT1}, {piece_s}, 3"); A(f"s_lshl_b32 {sT1}, {sT1}, 8"); A(f"s_add_u32 {sT0}, {sT0}, {sT1}")
        for a in range(4):
            if a: A(f"s_add_u32 {sT0}, {sT0}, 4096")
            for b in range(4):
                t = a * 4 + b
                A(f"buffer_load_dwordx4 {vr(WO+4*t,4)}, v{vt1}, {SW}, {sT0} offen offset:{b*1024} {kflags}")
    def weights(NP):
        A(f"v_mov_b32 v{vt0}, v{vML}")
        for p0 in range(0, NP, 8):
            for p in range(8): A(f"v_readlane_b32 s{sRL+p}, v{vML}, {p0+p}")
            A("s_nop 1")
            for p in range(8): A(f"v_max_f32 v{vt0}, s{sRL+p}, v{vt0}")
        A(f"v_sub_f32 v{vt1}, v{vML}, v{vt0}"); A(f"v_mul_f32 v{vt1}, {sC}, v{vt1}"); A(f"v_exp_f32 v{vt1}, v{vt1}")
        A("s_nop 0")
        A(f"v_mul_f32 v{vt2}, v{vt1}, v{vML+2}")
        A(f"v_mov_b32 v{vt4}, 0"); A("s_nop 0")
        for p0 in range(0, NP, 8):
            for p in range(8): A(f"v_readlane_b32 s{sRL+p}, v{vt2}, {p0+p}")
            A("s_nop 1")
            for p in range(8): A(f"v_add_f32 v{vt4}, s{sRL+p}, v{vt4}")
        A(f"v_rcp_f32 v{vt4}, v{vt4}")
    def combine_direct(NP, ws_p, ws_ml, head_s, piece_s):
        A(f"v_and_b32 v{vt2}, {NP-1}, v{vLANE}"); A(f"v_lshlrev_b32 v{vt2}, 4, v{vt2}")
        A(f"v_lshlrev_b32 v{vt3}, 3, v{vLANE}")
        lab = poll_begin()
        A(f"s_mul_i32 {sT0}, {head_s}, {NP*16}"); A(f"s_add_u32 {sT0}, {sT0}, {ws_ml}")
        A(f"buffer_load_dwordx4 {vr(vML,4)}, v{vt2}, {SWS}, {sT0} offen sc1")
        A(f"s_mul_i32 {sT0}, {head_s}, {NP*1024}"); A(f"s_lshr_b32 {sT1}, {piece_s}, 2"); A(f"s_lshl_b32 {sT1}, {sT1}, 9")
        A(f"s_add_u32 {sT0}, {sT0}, {sT1}"); A(f"s_add_u32 {sT0}, {sT0}, {ws_p}")
        for p in range(NP):
            if p % 4 == 0 and p: A(f"s_add_u32 {sT0}, {sT0}, 4096")
            A(f"buffer_load_dwordx2 {vr(PO+2*p,2)}, v{vt3}, {SWS}, {sT0} offen offset:{(p%4)*1024} sc1")
        poll_end(lab, [vML + 1, vML + 3] + [PO + 2 * p + 1 for p in range(NP)])
        weights(NP)
        A(f"v_mov_b32 v{vt3}, 0")
        for p0 in range(0, NP, 8):
            for p in range(8): A(f"v_readlane_b32 s{sRL+p}, v{vt1}, {p0+p}")
            A("s_nop 1")
            for p in range(8): A(f"v_fma_f32 v{vt3}, v{PO+2*(p0+p)}, s{sRL+p}, v{vt3}")
        A(f"v_mul_f32 v{vt3}, v{vt3}, v{vt4}")
        A(f"v_cvt_pk_bf16_f32 v{vt3}, v{vt3}, v{vt3}")
    def combine_directB(NP, ws_p, ws_ml, head_s, piece_s):
        A(f"v_and_b32 v{vt2}, {NP-1}, v{vLANE}"); A(f"v_lshlrev_b32 v{vt2}, 4, v{vt2}")
        A(f"v_and_b32 v{vt3}, 1, v{vG}"); A(f"v_lshlrev_b32 v{vt3}, 10, v{vt3}")
        A(f"v_lshrrev_b32 v{vt1}, 1, v{vG}"); A(f"v_lshl_add_u32 v{vt3}, v{vt1}, 8, v{vt3}")
        A(f"v_and_b32 v{vt1}, 7, v{vN}"); A(f"v_lshl_add_u32 v{vt3}, v{vt1}, 4, v{vt3}")
        A(f"v_lshrrev_b32 v{vt1}, 3, v{vN}"); A(f"v_lshl_add_u32 v{vt3}, v{vt1}, 3, v{vt3}")
        lab = poll_begin()
        A(f"s_mul_i32 {sT0}, {head_s}, {NP*16}"); A(f"s_add_u32 {sT0}, {sT0}, {ws_ml}")
        A(f"buffer_load_dwordx4 {vr(vML,4)}, v{vt2}, {SWS}, {sT0} offen sc1")
        if mlfirst:
            poll_end(lab, [vML + 1, vML + 3])
            lab = poll_begin()
        A(f"s_lshr_b32 {sT0}, {head_s}, 1"); A(f"s_mul_i32 {sT0}, {sT0}, {NP*2048}"); A(f"s_add_u32 {sT0}, {sT0}, {ws_p}")
        A(f"s_and_b32 {sT1}, {head_s}, 1"); A(f"s_lshl_b32 {sT1}, {sT1}, 7"); A(f"s_add_u32 {sT0}, {sT0}, {sT1}")
        A(f"s_lshr_b32 {sT1}, {piece_s}, 2"); A(f"s_lshl_b32 {sT1}, {sT1}, 9"); A(f"s_add_u32 {sT0}, {sT0}, {sT1}")
        for p in range(NP):
            if p % 2 == 0 and p: A(f"s_add_u32 {sT0}, {sT0}, 4096")
            A(f"buffer_load_dwordx2 {vr(PO+2*p,2)}, v{vt3}, {SWS}, {sT0} offen offset:{(p%2)*2048} sc1")
        poll_end(lab, ([] if mlfirst else [vML + 1, vML + 3]) + [PO + 2 * p + 1 for p in range(NP)])
        weights(NP)
        A(f"v_mov_b32 v{vt3}, 0")
        for p0 in range(0, NP, 8):
            for p in range(8): A(f"v_readlane_b32 s{sRL+p}, v{vt1}, {p0+p}")
            A("s_nop 1")
            for p in range(8): A(f"v_fma_f32 v{vt3}, v{PO+2*(p0+p)}, s{sRL+p}, v{vt3}")
        A(f"v_mul_f32 v{vt3}, v{vt3}, v{vt4}")
        A(f"v_cvt_pk_bf16_f32 v{vt3}, v{vt3}, v{vt3}")
    def combine_full(NP, ws_p, ws_ml, ws_of, head_s):
        PF = 128; vMLs = vML
        A(f"v_and_b32 v{vt2}, {NP-1}, v{vLANE}"); A(f"v_lshlrev_b32 v{vt2}, 4, v{vt2}")
        A(f"v_lshrrev_b32 v{vt3}, 5, v{vLANE}"); A(f"v_lshlrev_b32 v{vt3}, 10, v{vt3}")
        A(f"v_bfe_u32 v{vt1}, v{vLANE}, 3, 2"); A(f"v_lshl_add_u32 v{vt3}, v{vt1}, 8, v{vt3}")
        A(f"v_and_b32 v{vt1}, 7, v{vLANE}"); A(f"v_lshl_add_u32 v{vt3}, v{vt1}, 4, v{vt3}")
        lab = poll_begin()
        A(f"s_mul_i32 {sT0}, {head_s}, {NP*16}"); A(f"s_add_u32 {sT0}, {sT0}, {ws_ml}")
        A(f"buffer_load_dwordx4 {vr(vML,4)}, v{vt2}, {SWS}, {sT0} offen sc1")
        poll_end(lab, [vML + 1, vML + 3])
        stamp(14)
        lab = poll_begin()
        A(f"s_lshr_b32 {sT0}, {head_s}, 1"); A(f"s_mul_i32 {sT0}, {sT0}, {NP*2048}"); A(f"s_add_u32 {sT0}, {sT0}, {ws_p}")
        A(f"s_and_b32 {sT1}, {head_s}, 1"); A(f"s_lshl_b32 {sT1}, {sT1}, 7"); A(f"s_add_u32 {sT0}, {sT0}, {sT1}")
        for p in range(NP):
            if p % 2 == 0 and p: A(f"s_add_u32 {sT0}, {sT0}, 4096")
            A(f"buffer_load_dwordx4 {vr(PF+4*p,4)}, v{vt3}, {SWS}, {sT0} offen offset:{(p%2)*2048} sc1")
        poll_end(lab, [PF + 4 * p + o for p in range(NP) for o in (1, 3)])
        stamp(15)
        weights(NP)
        A(f"v_mov_b32 v{vB0}, 0"); A(f"v_mov_b32 v{vB0+1}, 0")
        for p0 in range(0, NP, 8):
            for p in range(8): A(f"v_readlane_b32 s{sRL+p}, v{vt1}, {p0+p}")
            A("s_nop 1")
            for p in range(8):
                A(f"v_fma_f32 v{vB0}, v{PF+4*(p0+p)}, s{sRL+p}, v{vB0}")
                A(f"v_fma_f32 v{vB0+1}, v{PF+4*(p0+p)+2}, s{sRL+p}, v{vB0+1}")
        A(f"v_mul_f32 v{vB0}, v{vB0}, v{vt4}"); A(f"v_mul_f32 v{vB0+1}, v{vB0+1}, v{vt4}")
        A(f"v_cvt_pk_bf16_f32 v{vB0}, v{vB0}, v{vB0+1}"); A(f"v_mov_b32 v{vB0+1}, {sE}")
        A(f"v_lshlrev_b32 v{vt3}, 3, v{vLANE}")
        A(f"s_lshl_b32 {sT0}, {head_s}, 9"); A(f"s_add_u32 {sT0}, {sT0}, {ws_of}")
        A(f"buffer_store_dwordx2 {vr(vB0,2)}, v{vt3}, {SWS}, {sT0} offen sc1")
    def gather_final(ws_of, head_s, piece_s):
        A(f"v_and_b32 v{vt2}, 1, v{vG}"); A(f"v_lshlrev_b32 v{vt2}, 5, v{vt2}")
        A(f"v_lshrrev_b32 v{vt1}, 1, v{vG}"); A(f"v_lshl_add_u32 v{vt2}, v{vt1}, 3, v{vt2}")
        A(f"v_and_b32 v{vt1}, 7, v{vN}"); A(f"v_add_u32 v{vt2}, v{vt2}, v{vt1}"); A(f"v_lshlrev_b32 v{vt2}, 3, v{vt2}")
        lab = poll_begin()
        A(f"s_lshl_b32 {sT0}, {head_s}, 9"); A(f"s_lshr_b32 {sT1}, {piece_s}, 2"); A(f"s_lshl_b32 {sT1}, {sT1}, 7")
        A(f"s_add_u32 {sT0}, {sT0}, {sT1}"); A(f"s_add_u32 {sT0}, {sT0}, {ws_of}")
        A(f"buffer_load_dwordx2 {vr(vB0,2)}, v{vt2}, {SWS}, {sT0} offen sc1")
        poll_end(lab, [vB0 + 1])
        A(f"v_mov_b32 v{vt1}, {sSELLO}"); A(f"v_mov_b32 v{vt2}, {sSELHI}")
        A(f"v_cndmask_b32 v{vt1}, v{vt1}, v{vt2}, {sHALF}")
        A(f"v_perm_b32 v{vt3}, v{vB0}, v{vB0}, v{vt1}")
    def project(ws_y, head_s, piece_s):
        A("s_nop 1")
        for t in range(16):
            B = vB0 if t % 2 == 0 else vB1
            for r in range(4): A(f"v_and_b32_dpp v{B+r}, v{vt3}, v{vM+r} row_newbcast:{t} row_mask:0xf bank_mask:0xf")
            A("s_nop 1")
            mfma(vS, WO + 4 * t, B, None if t == 0 else vS)
        A(f"v_lshlrev_b32 v{vt1}, 4, v{vN}")
        A(f"v_lshl_add_u32 v{vt1}, v{vG}, 14, v{vt1}")
        A(f"s_and_b32 {sT0}, {piece_s}, 3"); A(f"s_lshl_b32 {sT0}, {sT0}, 16")
        A(f"s_lshl_b32 {sT1}, {head_s}, 1"); A(f"s_lshr_b32 {sT2}, {piece_s}, 2"); A(f"s_add_u32 {sT1}, {sT1}, {sT2}"); A(f"s_lshl_b32 {sT1}, {sT1}, 8")
        A(f"s_add_u32 {sT0}, {sT0}, {sT1}"); A(f"s_add_u32 {sT0}, {sT0}, {ws_y}")
        A("s_nop 3")
        publish_half(vS, vt1, sT0)
    def stage3(ws_y, outbyte, sel):
        skip = A.newlabel("L_noreduce")
        A(f"s_lshr_b32 {sT3}, {sWG}, 4"); A(f"s_and_b32 {sT0}, {sT3}, 7"); A(f"s_add_u32 {sT0}, {sT0}, {sel}")
        A(f"s_and_b32 {sT1}, {sWG}, 15"); A(f"s_cmp_lg_u32 {sT0}, {sT1}"); A(f"s_cbranch_scc1 {skip}")
        A(f"v_lshlrev_b32 v{vt4}, 4, v{vLANE}")
        lab = poll_begin()
        A(f"s_lshl_b32 {sT0}, {sT3}, 14"); A(f"s_add_u32 {sT0}, {sT0}, {ws_y}")
        for u in range(16):
            if u % 4 == 0 and u: A(f"s_add_u32 {sT0}, {sT0}, 4096")
            A(f"buffer_load_dwordx4 {vr(PO+4*u,4)}, v{vt4}, {SWS}, {sT0} offen offset:{(u%4)*1024} sc1")
        poll_end(lab, [PO + 4 * u + o for u in range(16) for o in (1, 3)])
        for u in range(1, 16):
            A(f"v_add_f32 v{PO}, v{PO}, v{PO+4*u}"); A(f"v_add_f32 v{PO+2}, v{PO+2}, v{PO+4*u+2}")
        xgroup_reduce("v_add_f32", PO, vt0)
        xgroup_reduce("v_add_f32", PO + 2, vt0)
        A(f"v_cvt_pk_bf16_f32 v{vt0}, v{PO}, v{PO+2}")
        A(f"v_and_b32 v{vt1}, 7, v{vN}"); A(f"v_lshrrev_b32 v{vt2}, 3, v{vN}"); A(f"v_lshl_add_u32 v{vt1}, v{vt2}, 4, v{vt1}")
        A(f"v_lshlrev_b32 v{vt1}, 1, v{vt1}")
        A(f"s_lshl_b32 {sT0}, {sT3}, 6"); A(f"s_add_u32 {sT0}, {sT0}, {outbyte}")
        A("s_mov_b64 exec, 0xffff")
        A(f"buffer_store_short v{vt0}, v{vt1}, {SOUT}, {sT0} offen")
        A(f"buffer_store_short_d16_hi v{vt0}, v{vt1}, {SOUT}, {sT0} offen offset:16")
        A("s_mov_b64 exec, -1")
        A.label(skip)

    A(f"s_cmp_ge_u32 {sWG}, 256"); A("s_cbranch_scc1 L_end")
    A("s_load_dwordx16 s[32:47], s[0:1], 0")
    A("s_load_dwordx8 s[48:55], s[0:1], 64")
    A("s_load_dwordx2 s[56:57], s[0:1], 96")
    A(f"v_lshrrev_b32 v1, 6, v0"); A("v_and_b32 v0, 63, v0"); A("s_nop 0")
    A(f"v_readfirstlane_b32 {sWAVE}, v1")
    A(f"v_and_b32 v{vN}, 15, v0"); A(f"v_lshrrev_b32 v{vG}, 4, v0")
    A(f"v_lshlrev_b32 v{vKO}, 8, v{vN}"); A(f"v_lshl_add_u32 v{vKO}, v{vG}, 4, v{vKO}")
    A(f"v_lshlrev_b32 v{vVO}, 10, v{vG}"); A(f"v_lshl_add_u32 v{vVO}, v{vN}, 4, v{vVO}")
    A(f"v_and_b32 v{vT}, 1, v{vN}")
    A(f"v_mov_b32 v{vT+1}, 0xffff")
    A(f"v_lshlrev_b32 v{vT}, 4, v{vT}")
    A(f"v_lshlrev_b32 v{vT+1}, v{vT}, v{vT+1}")
    A(f"v_bfe_u32 v{vT}, v{vN}, 1, 2")
    for r in range(4):
        A(f"v_cmp_eq_u32 vcc, {r}, v{vT}"); A("s_nop 1")
        A(f"v_cndmask_b32 v{vM+r}, 0, v{vT+1}, vcc")
    A(f"v_cmp_lt_u32 {sHALF}, 7, v{vN}")
    A(f"s_mov_b32 {sC}, {hex(f2u(CSCALE))}")
    A(f"s_mov_b32 {sSELLO}, 0x01000100"); A(f"s_mov_b32 {sSELHI}, 0x03020302")
    A(f"s_and_b32 {sH}, {sWG}, 7"); A(f"s_lshl_b32 {sH}, {sH}, 2")
    A(f"s_bfe_u32 {sT0}, {sWG}, 0x20003"); A(f"s_add_u32 {sH}, {sH}, {sT0}")
    A(f"s_lshr_b32 {sS}, {sWG}, 5")
    if hmap == 1:
        A(f"s_lshr_b32 {sH}, {sWG}, 3"); A(f"s_and_b32 {sS}, {sWG}, 7")
    A("s_waitcnt lgkmcnt(0)")
    srd(SW, 38, 0x400000); srd(SX, 32, 1024); srd(SWS, 56, WS_SIZE); srd(SDBG, 54, 256)
    stamp(0)
    A(f"s_cmp_eq_u32 {sWAVE}, {NSW}"); A("s_cbranch_scc1 L_service")

    srd(SK, 34, 0x10000000); srd(SV, 36, 0x10000000)
    sBASE = "s95"; sVAL = 76
    vNEXT = vT + 2; vCA = vT + 1; vONE = vT
    A(f"s_lshl_b32 {sBASE}, {sH}, 23"); A(f"s_lshl_b32 {sT0}, {sS}, 20"); A(f"s_add_u32 {sBASE}, {sBASE}, {sT0}")
    sROT = "s96"; sIDX = "s97"
    A(f"s_mul_i32 {sROT}, {sWG}, {arot}")
    A(f"s_mov_b32 {sIDX}, {sWAVE}")
    base_nt = NT // NSW; remw = NT % NSW
    A(f"s_cmp_lt_u32 {sWAVE}, {remw}"); A(f"s_cselect_b32 {sCNT}, {base_nt+1}, {base_nt}")
    A(f"s_sub_u32 {sISS}, {sCNT}, {D}")
    STR = NSW * 4096
    def aoff(idx):
        A(f"s_add_u32 {sKOFF}, {idx}, {sROT}"); A(f"s_and_b32 {sKOFF}, {sKOFF}, 255"); A(f"s_lshl_b32 {sKOFF}, {sKOFF}, 12"); A(f"s_add_u32 {sKOFF}, {sKOFF}, {sBASE}")
    assert dyn
    def issue_tile(slot):
        aoff(sIDX); issue_k(slot, sKOFF); issue_v(slot, sKOFF); A(f"s_add_u32 {sIDX}, {sIDX}, {NSW}")
    if prio: A("s_setprio 3")
    for s in range(pre): issue_tile(s)
    A(f"s_lshl_b32 {sT1}, {sWAVE}, 6"); A(f"s_lshl_b32 {sT2}, {sH}, 8"); A(f"s_lshl_b32 {sT3}, {sWAVE}, 7")
    n0 = len(A.L)
    for s in range(pre, pre + il): issue_tile(s)
    inter = [x.strip() for x in A.L[n0:]]; del A.L[n0:]
    phase[0] = "wqA"
    proj_issue(sT1, sT2, sT3, inter)
    phase[0] = "main"
    if prio: A("s_setprio 0")
    for s in range(pre + il, DP): issue_tile(s)
    A(f"v_mov_b32 v{vm}, 0xff800000"); A(f"v_mov_b32 v{vl}, 0")
    for r in range(4): A(f"v_mov_b32 v{vO+r}, 0")
    for s in range(D): A(f"s_mov_b32 s{sVAL+s}, 1")
    if prio: A("s_setprio 3")
    stamp(11)
    A(f"s_waitcnt vmcnt({(DP-pre-il)*8 + (1 if ts else 0)})")
    stamp(12)
    EP = max(DP, min(early, D, 4))
    for s in range(DP, EP): issue_tile(s)
    proj_compute(vS)
    def qpart_write():
        A(f"v_and_b32 v{vt1}, 7, v{vN}"); A(f"v_lshl_add_u32 v{vt1}, v{vG}, 3, v{vt1}"); A(f"v_lshlrev_b32 v{vt1}, 4, v{vt1}")
        A(f"s_lshl_b32 {sT0}, {sWAVE}, 9"); A(f"v_add_u32 v{vt1}, {sT0}, v{vt1}")
        A("s_nop 7")
        A(f"ds_write_b128 v{vt1}, {vr(vS,4)} offset:{L_QPART}")
        A("s_waitcnt lgkmcnt(0)")
        A("s_barrier")
    qpart_write()
    stamp(13)
    A(f"v_lshlrev_b32 v{vt1}, 3, v{vLANE}")
    for w in range(8): A(f"ds_read_b64 {vr(vQ+2*w,2)}, v{vt1} offset:{L_QPART + w*512}")
    A(f"v_lshrrev_b32 v{vt2}, 4, v{vLANE}"); A(f"v_lshlrev_b32 v{vt2}, 5, v{vt2}")
    A(f"v_bfe_u32 v{vt3}, v{vLANE}, 1, 3"); A(f"v_add_u32 v{vt2}, v{vt2}, v{vt3}")
    A(f"v_and_b32 v{vt3}, 1, v{vLANE}"); A(f"v_lshl_add_u32 v{vt2}, v{vt3}, 4, v{vt2}")
    A(f"v_lshlrev_b32 v{vt2}, 1, v{vt2}")
    A(f"s_lshl_b32 {sT0}, {sWAVE}, 8"); A(f"v_add_u32 v{vt2}, {sT0}, v{vt2}")
    A(f"v_lshlrev_b32 v{vt3}, 4, v{vG}"); A(f"v_add_u32 v{vt3}, {sT0}, v{vt3}")
    A("s_waitcnt lgkmcnt(0)")
    for w in range(1, 8):
        A(f"v_add_f32 v{vQ}, v{vQ}, v{vQ+2*w}"); A(f"v_add_f32 v{vQ+1}, v{vQ+1}, v{vQ+2*w+1}")
    A(f"v_cvt_pk_bf16_f32 v{vt0}, v{vQ}, v{vQ+1}")
    A(f"ds_write_b16 v{vt2}, v{vt0} offset:{L_QBF}")
    A(f"ds_write_b16_d16_hi v{vt2}, v{vt0} offset:{L_QBF+16}")
    A("s_waitcnt lgkmcnt(0)")
    for i in range(4): A(f"ds_read_b128 {vr(vQ+4*i,4)}, v{vt3} offset:{L_QBF + i*64}")
    A(f"s_mov_b32 {sNREC}, 0x10000000")
    A("s_waitcnt lgkmcnt(0)")
    stamp(1)
    if prio: A("s_setprio 0")
    for s in range(EP, D): issue_tile(s)
    def grab():
        A("s_mov_b64 exec, 1")
        A(f"ds_add_rtn_u32 v{vNEXT}, v{vCA}, v{vONE} offset:{L_CNT}")
        A("s_mov_b64 exec, -1")
    if dyn:
        A(f"v_mov_b32 v{vCA}, 0"); A(f"v_mov_b32 v{vONE}, 1")
        grab()
    A.label("L_loop")
    for s in range(D):
        if dyn:
            A(f"s_cmp_eq_u32 s{sVAL+s}, 0"); A("s_cbranch_scc1 L_sdone")
        A(f"s_waitcnt vmcnt({8*D-4})")
        for i in range(4): mfma(vS, kreg(s, i), vQ + 4 * i, None if i == 0 else vS)
        if dyn:
            A("s_waitcnt lgkmcnt(0)")
            A(f"v_readfirstlane_b32 {sT0}, v{vNEXT}")
            grab()
            aoff(sT0)
            if ts:
                lab = A.newlabel("L_nots")
                A(f"s_and_b32 s92, {sT0}, 15"); A("s_cmp_lg_u32 s92, 0"); A(f"s_cbranch_scc1 {lab}")
                A(f"s_cmp_gt_u32 {sT0}, 256"); A(f"s_cbranch_scc1 {lab}")
                A("s_memrealtime s[90:91]")
                A(f"s_lshl_b32 s92, s2, 7"); A(f"s_lshr_b32 s93, {sT0}, 2"); A("s_add_u32 s92, s92, s93"); A(f"s_add_u32 s92, s92, {WS_TS + 0x100000}")
                A("s_waitcnt lgkmcnt(0)")
                A(f"v_mov_b32 v{vt3}, s90")
                A(f"buffer_store_dword v{vt3}, v{vCA}, {SWS}, s92 offen")
                A.label(lab)
            A(f"s_cmp_lt_u32 {sT0}, {NT}"); A(f"s_cselect_b32 s{sVAL+s}, 1, 0")
        else:
            A(f"s_cmp_gt_i32 {sISS}, 0")
        A(f"s_cselect_b32 s6, {sNREC}, 0"); A(f"s_cselect_b32 s10, {sNREC}, 0")
        issue_k(s, sKOFF)
        A("s_nop 1")
        if not nocomp: softmax_update(vS, vP, vm, vl, vO, vt0, vt1, vt2)
        A(f"s_waitcnt vmcnt({8*D-4})")
        if not nocomp: pv(vO, vP, lambda t: vreg(s, t))
        issue_v(s, sKOFF)
        if not dyn:
            A(f"s_add_u32 {sKOFF}, {sKOFF}, {STR}")
            A(f"s_sub_u32 {sISS}, {sISS}, 1")
            A(f"s_sub_u32 {sCNT}, {sCNT}, 1")
            A(f"s_cmp_eq_u32 {sCNT}, 0")
            if s < D - 1: A("s_cbranch_scc1 L_sdone")
            else: A("s_cbranch_scc0 L_loop")
    if dyn: A("s_branch L_loop")
    A.label("L_sdone")
    xgroup_reduce("v_add_f32", vl, vt0)
    A(f"v_and_b32 v{vt1}, 7, v{vN}"); A(f"v_lshl_add_u32 v{vt1}, v{vG}, 5, v{vt1}"); A(f"v_lshlrev_b32 v{vt1}, 2, v{vt1}")
    A(f"s_lshl_b32 {sT0}, {sWAVE}, 9"); A(f"v_add_u32 v{vt1}, {sT0}, v{vt1}")
    A(f"s_lshl_b32 {sT0}, {sWAVE}, 3"); A(f"v_mov_b32 v{vt2}, {sT0}")
    A("s_nop 3")
    for r in range(4): A(f"ds_write_b32 v{vt1}, v{vO+r} offset:{L_OPART + r*32}")
    A(f"ds_write_b64 v{vt2}, {vr(vm,2)} offset:{L_ML}")
    A("s_waitcnt lgkmcnt(0)")
    stamp(2)
    if noB:
        A("s_barrier"); A("s_endpgm")
    else:
        A(f"s_cmp_eq_u32 {sWAVE}, 0"); A("s_cbranch_scc1 L_btail")
        A("s_barrier"); A("s_endpgm")
        A.label("L_btail")
        phase[0] = "woB"
        A("s_setprio 3")
        srd(SOUT, 52, 2048)
        A(f"s_lshr_b32 s93, {sWG}, 3"); A(f"s_and_b32 s94, {sWG}, 7")
        wo_issue(50, "s93", "s94")
        A("s_barrier")
        phase[0] = "woA"
        A(f"v_mov_b32 v{vt1}, 0")
        A(f"ds_read_b32 v{vt0}, v{vt1} offset:{L_EP}")
        A("s_waitcnt lgkmcnt(0)")
        A(f"v_readfirstlane_b32 {sE}, v{vt0}")
        A("s_nop 3")
        combine_directB(32, WS_PB, WS_MLB, "s93", "s94")
        stamp(5)
        project(WS_YB, "s93", "s94")
        stamp(6)
        stage3(WS_YB, 1024, 8)
        stamp(7)
        A("s_endpgm")
        phase[0] = "main"

    A.label("L_service")
    if sprio: A(f"s_setprio {sprio}")
    A(f"v_mov_b32 v{vt0}, {D*NSW}"); A(f"v_mov_b32 v{vt1}, 0")
    A(f"ds_write_b32 v{vt1}, v{vt0} offset:{L_CNT}")
    srd(SDBG, 54, 256); srd(SOUT, 52, 2048)
    srd(SK, 44, 0x4000000); srd(SV, 46, 0x4000000)
    A(f"s_lshl_b32 {sT1}, {sWAVE}, 6"); A(f"s_lshl_b32 {sT2}, {sH}, 8"); A(f"s_lshl_b32 {sT3}, {sWAVE}, 7")
    proj_issue(sT1, sT2, sT3)
    sBB, sKC = "s97", "s98"
    A(f"s_lshr_b32 {sT0}, {sWG}, 5"); A(f"s_lshl_b32 {sBB}, {sT0}, 23"); A(f"s_add_u32 {sBB}, {sBB}, {28672*256}")
    A(f"s_and_b32 {sKC}, {sWG}, 31")
    def boff(tl):
        if bperm == 0:
            A(f"s_lshl_b32 {sKOFF}, {sKC}, 15"); A(f"s_add_u32 {sKOFF}, {sKOFF}, {tl*4096}")
        elif bperm == 1:
            A(f"s_add_u32 {sKOFF}, {sKC}, {tl}"); A(f"s_and_b32 {sKOFF}, {sKOFF}, 7"); A(f"s_lshl_b32 {sKOFF}, {sKOFF}, 5")
            A(f"s_add_u32 {sKOFF}, {sKOFF}, {sKC}"); A(f"s_lshl_b32 {sKOFF}, {sKOFF}, 12")
        elif bperm == 2:
            A(f"s_add_u32 {sKOFF}, {sKC}, {tl}"); A(f"s_and_b32 {sKOFF}, {sKOFF}, 7"); A(f"s_lshl_b32 {sT0}, {sKC}, 3")
            A(f"s_add_u32 {sKOFF}, {sKOFF}, {sT0}"); A(f"s_lshl_b32 {sKOFF}, {sKOFF}, 12")
        A(f"s_add_u32 {sKOFF}, {sKOFF}, {sBB}")
    def issue_btile(slot):
        boff(slot); issue_k(slot, sKOFF); issue_v(slot, sKOFF)
    phase[0] = "Bkv"
    if not noB:
        for s in range(4): issue_btile(s)
    phase[0] = "main"
    A("s_waitcnt vmcnt(0)" if (noB or "Bkv" in skip) else "s_waitcnt vmcnt(32)")
    proj_compute(vS)
    qpart_write()
    if noB:
        if probe:
            P = probe
            A(f"v_lshlrev_b32 v{vt1}, 4, v{vLANE}")
            srdx = SWS if P["buf"] == "ws" else SK
            A(f"s_mov_b32 s18, 0x40000000")
            A(f"s_and_b32 {sT1}, {sWG}, {P['mask']}"); A(f"s_cmp_lg_u32 {sT1}, 0"); A("s_cbranch_scc1 L_noprobe")
            A(f"s_mul_i32 {sT0}, {sWG}, {P['perwg']}"); A(f"s_add_u32 {sT0}, {sT0}, {P['base']}")
            for r in range(P["rounds"]):
                for z in range(P.get("sl", 3)): A("s_sleep 127")
                if r == 1: stamp(14)
                A(f"s_mov_b32 {sT1}, {sT0}")
                for k in range(P["nload"]):
                    if k % 4 == 0 and k: A(f"s_add_u32 {sT1}, {sT1}, 4096")
                    if P["kind"] == "ld":
                        A(f"buffer_load_dwordx4 v[{64+4*k}:{67+4*k}], v{vt1}, {srdx}, {sT1} offen offset:{(k%4)*1024} {P['flags']}")
                    else:
                        A(f"buffer_store_dwordx4 v[64:67], v{vt1}, {srdx}, {sT1} offen offset:{(k%4)*1024} {P['flags']}")
                A("s_waitcnt vmcnt(0)")
                if r == 1: stamp(15)
                A(f"s_add_u32 {sT0}, {sT0}, {P['rstride']}")
            A.label("L_noprobe")
        A("s_barrier"); A("s_endpgm")
    srd(SW, 48, 0x400000); srd(SX, 42, 1024)
    A(f"s_and_b32 {sT1}, {sWG}, 7"); A(f"s_lshl_b32 {sT3}, {sT1}, 7"); A(f"s_lshl_b32 {sT1}, {sT1}, 6")
    A(f"s_lshr_b32 {sT2}, {sWG}, 3"); A(f"s_lshl_b32 {sT2}, {sT2}, 8")
    phase[0] = "wqB"
    proj_issue(sT1, sT2, sT3)
    phase[0] = "Bkv2"
    A(f"v_mov_b32 v{vt1}, 0")
    A(f"s_cmp_lg_u32 {sWG}, 0"); A("s_cbranch_scc1 L_ep_poll")
    A(f"buffer_load_dword v{vt0}, v{vt1}, {SWS}, 0 offen sc1")
    A(f"buffer_load_dword v{vt2}, v{vt1}, {SDBG}, 0 offen sc1")
    A("s_waitcnt vmcnt(0)")
    A(f"v_readfirstlane_b32 {sT0}, v{vt0}")
    A(f"v_readfirstlane_b32 {sE}, v{vt2}")
    A("s_nop 3")
    A(f"s_cmp_lg_u32 {sE}, 0"); A("s_cbranch_scc1 L_ep_done")
    A(f"s_mul_i32 {sE}, {sT0}, 0x9E3779B1"); A(f"s_add_u32 {sE}, {sE}, 0x7F4A7C15")
    A(f"s_xor_b32 {sT1}, {sE}, 0x55555555")
    A(f"s_cmp_eq_u32 {sE}, {sT0}"); A(f"s_cselect_b32 {sE}, {sT1}, {sE}")
    A(f"s_cmp_eq_u32 {sT0}, 1"); A(f"s_cselect_b32 {sT1}, 2, 1")
    A(f"s_cmp_eq_u32 {sE}, 0"); A(f"s_cselect_b32 {sE}, {sT1}, {sE}")
    A(f"v_mov_b32 v{vt0}, {sE}")
    A("s_mov_b64 exec, 1")
    A(f"buffer_store_dword v{vt0}, v{vt1}, {SDBG}, 0 offen sc1")
    A(f"buffer_store_dword v{vt0}, v{vt1}, {SWS}, 0 offen sc1")
    A("s_mov_b64 exec, -1")
    A("s_branch L_ep_done")
    A.label("L_ep_poll")
    A(f"s_mov_b32 {sTO}, 0x200000")
    A.label("L_ep_loop")
    A(f"buffer_load_dword v{vt0}, v{vt1}, {SDBG}, 0 offen sc1")
    A("s_waitcnt vmcnt(0)")
    A(f"v_readfirstlane_b32 {sE}, v{vt0}")
    A("s_nop 3")
    A(f"s_cmp_lg_u32 {sE}, 0"); A("s_cbranch_scc1 L_ep_done")
    if nopoll: A("s_branch L_ep_done")
    A(f"s_sleep {sleep}")
    A(f"s_sub_u32 {sTO}, {sTO}, 1"); A(f"s_cmp_lg_u32 {sTO}, 0"); A("s_cbranch_scc1 L_ep_loop")
    A.label("L_ep_done")
    A("s_waitcnt vmcnt(0)")
    proj_compute(vS)
    vPOS = vt5
    A(f"v_lshlrev_b32 v{vPOS}, 4, v{vLANE}")
    A(f"s_lshl_b32 {sT0}, {sWG}, 10"); A(f"s_add_u32 {sT0}, {sT0}, {WS_QB}")
    A("s_nop 7")
    publish_half(vS, vPOS, sT0)
    stamp(3)
    if stopat == 3:
        A("s_waitcnt vmcnt(0)"); A("s_barrier"); A("s_endpgm")
    vLO16 = vt4; vLO8 = vt5
    A(f"v_lshlrev_b32 v{vLO16}, 4, v{vLANE}"); A(f"v_lshlrev_b32 v{vLO8}, 3, v{vLANE}")
    sCOMB = "s96"
    A(f"s_bfe_u32 {sT0}, {sWG}, 0x30003"); A(f"s_and_b32 {sT1}, {sWG}, 7"); A(f"s_cmp_eq_u32 {sT0}, {sT1}"); A(f"s_cselect_b32 {sCOMB}, 1, 0")
    A("s_cbranch_scc0 L_noqcomb")
    lab = poll_begin()
    A(f"s_lshr_b32 {sT0}, {sWG}, 3"); A(f"s_lshl_b32 {sT0}, {sT0}, 13"); A(f"s_add_u32 {sT0}, {sT0}, {WS_QB}")
    for k in range(8):
        if k % 4 == 0 and k: A(f"s_add_u32 {sT0}, {sT0}, 4096")
        A(f"buffer_load_dwordx4 {vr(WQ+4*k,4)}, v{vLO16}, {SWS}, {sT0} offen offset:{(k%4)*1024} sc1")
    poll_end(lab, [WQ + 4 * k + o for k in range(8) for o in (1, 3)])
    for k in range(1, 8):
        A(f"v_add_f32 v{WQ}, v{WQ}, v{WQ+4*k}"); A(f"v_add_f32 v{WQ+2}, v{WQ+2}, v{WQ+4*k+2}")
    A(f"v_cvt_pk_bf16_f32 v{vB0}, v{WQ}, v{WQ+2}"); A(f"v_mov_b32 v{vB0+1}, {sE}")
    A(f"s_lshr_b32 {sT0}, {sWG}, 3"); A(f"s_lshl_b32 {sT0}, {sT0}, 9"); A(f"s_add_u32 {sT0}, {sT0}, {WS_QBF}")
    A(f"buffer_store_dwordx2 {vr(vB0,2)}, v{vLO8}, {SWS}, {sT0} offen sc1")
    A.label("L_noqcomb")
    lab = poll_begin()
    A(f"s_lshr_b32 {sT0}, {sWG}, 5"); A(f"s_lshl_b32 {sT0}, {sT0}, 11"); A(f"s_add_u32 {sT0}, {sT0}, {WS_QBF}")
    for hh in range(4):
        A(f"buffer_load_dwordx2 {vr(vQ+2*hh,2)}, v{vLO8}, {SWS}, {sT0} offen offset:{hh*512} sc1")
    poll_end(lab, [vQ + 2 * hh + 1 for hh in range(4)])
    A(f"v_lshlrev_b32 v{vt2}, 5, v{vG}")
    A(f"v_lshrrev_b32 v{vt3}, 3, v{vN}"); A(f"v_lshl_add_u32 v{vt2}, v{vt3}, 4, v{vt2}")
    A(f"v_and_b32 v{vt3}, 7, v{vN}"); A(f"v_add_u32 v{vt2}, v{vt2}, v{vt3}")
    A(f"v_lshlrev_b32 v{vt2}, 1, v{vt2}")
    for hh in range(4):
        A(f"ds_write_b16 v{vt2}, v{vQ+2*hh} offset:{L_QBB + hh*256}")
        A(f"ds_write_b16_d16_hi v{vt2}, v{vQ+2*hh} offset:{L_QBB + hh*256 + 16}")
    A("s_waitcnt lgkmcnt(0)")
    QBp = [vQ, WQ]
    stO = [vO, WQ + 16]; stS = [vS, WQ + 20]; stP = [vP, WQ + 24]; stm = [vm, WQ + 28]; stl = [vl, WQ + 29]
    A(f"v_lshrrev_b32 v{vt3}, 3, v{vN}"); A(f"v_lshlrev_b32 v{vt3}, 8, v{vt3}"); A(f"v_lshl_add_u32 v{vt3}, v{vG}, 4, v{vt3}")
    for pp in range(2):
        for i in range(4): A(f"ds_read_b128 {vr(QBp[pp]+4*i,4)}, v{vt3} offset:{L_QBB + pp*512 + i*64}")
        A(f"v_mov_b32 v{stm[pp]}, 0xff800000"); A(f"v_mov_b32 v{stl[pp]}, 0")
        for r in range(4): A(f"v_mov_b32 v{stO[pp]+r}, 0")
    A("s_waitcnt lgkmcnt(0)")
    stamp(4)
    if stopat == 4:
        A("s_waitcnt vmcnt(0)"); A("s_barrier"); A("s_endpgm")
    for tl in range(8):
        s = tl % 4
        if tl >= 4:
            A(f"s_waitcnt vmcnt({(7-tl)*8 + 4})")
        for pp in range(2):
            for i in range(4): mfma(stS[pp], kreg(s, i), QBp[pp] + 4 * i, None if i == 0 else stS[pp])
        if tl < 4:
            boff(tl + 4); issue_k(s, sKOFF)
        A("s_nop 7")
        for pp in range(2):
            softmax_update(stS[pp], stP[pp], stm[pp], stl[pp], stO[pp], vt0, vt1, vt2)
        if tl >= 4:
            A(f"s_waitcnt vmcnt({(7-tl)*8})")
        for pp in range(2):
            pv(stO[pp], stP[pp], lambda t: vreg(s, t))
        if tl < 4:
            issue_v(s, sKOFF)
    phase[0] = "woA"
    wo_issue(40, sH, sS)
    A(f"v_mov_b32 v{vt0}, {sE}"); A(f"v_mov_b32 v{vt1}, 0")
    A(f"ds_write_b32 v{vt1}, v{vt0} offset:{L_EP}")
    A("s_waitcnt lgkmcnt(0)")
    A("s_barrier")
    stamp(8)
    phase[0] = "woA"
    A(f"v_lshlrev_b32 v{vt1}, 4, v{vLANE}")
    A(f"v_lshrrev_b32 v{vt2}, 3, v{vN}")
    A(f"v_lshlrev_b32 v{vt3}, 9, v{vt2}")
    A(f"s_lshr_b32 {sT0}, {sWG}, 5"); A(f"s_lshl_b32 {sT0}, {sT0}, 17")
    A(f"s_and_b32 {sT1}, {sWG}, 31"); A(f"s_lshl_b32 {sT2}, {sT1}, 11"); A(f"s_add_u32 {sT0}, {sT0}, {sT2}")
    A(f"s_add_u32 {sT0}, {sT0}, {WS_PB}")
    A(f"s_lshr_b32 {sT2}, {sWG}, 5"); A(f"s_lshl_b32 {sT2}, {sT2}, 11"); A(f"s_lshl_b32 {sT1}, {sT1}, 4"); A(f"s_add_u32 {sT2}, {sT2}, {sT1}")
    A(f"s_add_u32 {sT2}, {sT2}, {WS_MLB}")
    A("s_nop 7")
    for pp in range(2):
        xgroup_reduce("v_add_f32", stl[pp], vt0)
        for hf in range(2):
            A(f"v_mov_b32 v{vB0}, v{stO[pp]+2*hf}"); A(f"v_mov_b32 v{vB0+1}, {sE}")
            A(f"v_mov_b32 v{vB0+2}, v{stO[pp]+2*hf+1}"); A(f"v_mov_b32 v{vB0+3}, {sE}")
            A(f"buffer_store_dwordx4 {vr(vB0,4)}, v{vt1}, {SWS}, {sT0} offen offset:{hf*1024} sc1")
            A("s_nop 1")
        A(f"v_mov_b32 v{vB1}, v{stm[pp]}"); A(f"v_mov_b32 v{vB1+1}, {sE}"); A(f"v_mov_b32 v{vB1+2}, v{stl[pp]}"); A(f"v_mov_b32 v{vB1+3}, {sE}")
        pass
        A("s_mov_b64 exec, 0x101")
        A(f"buffer_store_dwordx4 {vr(vB1,4)}, v{vt3}, {SWS}, {sT2} offen sc1")
        A("s_mov_b64 exec, -1")
        phase[0] = "woA"
        A("s_nop 1")
        if pp == 0:
            A(f"s_add_u32 {sT0}, {sT0}, 0x10000"); A(f"s_add_u32 {sT2}, {sT2}, 1024")
    A(f"v_lshlrev_b32 v{vt1}, 3, v{vLANE}"); A(f"v_mov_b32 v{vt2}, 0")
    MLW = PO + 16
    for w in range(NSW):
        A(f"ds_read_b64 {vr(PO+2*w,2)}, v{vt1} offset:{L_OPART + w*512}")
        A(f"ds_read_b64 {vr(MLW+2*w,2)}, v{vt2} offset:{L_ML + w*8}")
    A("s_waitcnt lgkmcnt(0)")
    A(f"v_mov_b32 v{vt0}, v{MLW}")
    for w in range(1, NSW): A(f"v_max_f32 v{vt0}, v{vt0}, v{MLW+2*w}")
    for w in range(NSW):
        A(f"v_sub_f32 v{MLW+2*w}, v{MLW+2*w}, v{vt0}"); A(f"v_mul_f32 v{MLW+2*w}, {sC}, v{MLW+2*w}"); A(f"v_exp_f32 v{MLW+2*w}, v{MLW+2*w}")
    A("s_nop 0")
    A(f"v_mul_f32 v{vB0}, v{PO}, v{MLW}"); A(f"v_mul_f32 v{vB0+2}, v{PO+1}, v{MLW}"); A(f"v_mul_f32 v{vB1+2}, v{MLW+1}, v{MLW}")
    for w in range(1, NSW):
        A(f"v_fma_f32 v{vB0}, v{PO+2*w}, v{MLW+2*w}, v{vB0}"); A(f"v_fma_f32 v{vB0+2}, v{PO+2*w+1}, v{MLW+2*w}, v{vB0+2}")
        A(f"v_fma_f32 v{vB1+2}, v{MLW+2*w+1}, v{MLW+2*w}, v{vB1+2}")
    A(f"v_mov_b32 v{vB0+1}, {sE}"); A(f"v_mov_b32 v{vB0+3}, {sE}")
    A(f"v_mov_b32 v{vB1}, v{vt0}"); A(f"v_mov_b32 v{vB1+1}, {sE}"); A(f"v_mov_b32 v{vB1+3}, {sE}")
    A(f"v_lshlrev_b32 v{vt1}, 4, v{vLANE}")
    A(f"s_lshl_b32 {sT0}, {sH}, 3"); A(f"s_add_u32 {sT0}, {sT0}, {sS}"); A(f"s_lshl_b32 {sT1}, {sT0}, 4"); A(f"s_lshl_b32 {sT0}, {sT0}, 10")
    A(f"s_add_u32 {sT0}, {sT0}, {WS_PA}"); A(f"s_add_u32 {sT1}, {sT1}, {WS_MLA}")
    A(f"buffer_store_dwordx4 {vr(vB0,4)}, v{vt1}, {SWS}, {sT0} offen sc1")
    A("s_mov_b64 exec, 1")
    A(f"buffer_store_dwordx4 {vr(vB1,4)}, v{vt2}, {SWS}, {sT1} offen sc1")
    A("s_mov_b64 exec, -1")
    A("s_nop 1")
    combine_direct(8, WS_PA, WS_MLA, sH, sS)
    project(WS_YA, sH, sS)
    stamp(9)
    stage3(WS_YA, 0, 0)
    stamp(10)
    A.label("L_end")
    A("s_endpgm")

    out = HEADER + f"; @launch grid=(256,1,1) block=({(NSW+1)*64},1,1) lds={LDS_SIZE}\n"
    out += '.amdgcn_target "amdgcn-amd-amdhsa--gfx950"\n.text\n' + f".globl {KNAME}\n.p2align 8\n.type {KNAME},@function\n{KNAME}:\n"
    out += "\n".join(A.L) + "\n"
    nv = 256
    out += f""".section .rodata,"a"
.p2align 6
.amdhsa_kernel {KNAME}
  .amdhsa_next_free_vgpr {nv}
  .amdhsa_next_free_sgpr 102
  .amdhsa_accum_offset {nv}
  .amdhsa_group_segment_fixed_size 0
  .amdhsa_kernarg_size 104
  .amdhsa_user_sgpr_count 2
  .amdhsa_user_sgpr_kernarg_segment_ptr 1
  .amdhsa_system_sgpr_workgroup_id_x 1
.end_amdhsa_kernel
"""
    return out

if __name__ == "__main__":
    cfg = json.loads(sys.argv[2]) if len(sys.argv) > 2 else {}
    open(sys.argv[1], "w").write(gen(**cfg))
```

```python
import sys, json, math
KNAME = "concat_heads__mha_block_cached__sliding_block_cached__decode_kernel"

HEADER = """; Kernarg layout for this problem (104 bytes, ptrs only, base s[0:1]):
;   offset  96: d_ws      1073741824 bytes workspace (unspecified values whenever your kernel or launch list starts; a list's later launches find what earlier ones wrote)
; grid=ceil(out_elems/256), lds=0). Harness parses it; keep it on one line.
"""

WS_EPOCH = 0
WS_QB   = 0x100000
WS_PB   = 0x200000
WS_MLB  = 0x300000
WS_PA   = 0x340000
WS_MLA  = 0x380000
WS_QBF  = 0x3C0000
WS_OBF  = 0x3D0000
WS_YB   = 0x400000
WS_YA   = 0x480000
WS_TS   = 0x800000
WS_SIZE = 0x1000000

L_QPART = 0
L_QBF   = 4096
L_OPART = 6144
L_ML    = 10240
L_EP    = 10312
L_CNT   = 10304
L_QBB   = 10496
LDS_SIZE = 12288

CSCALE = (128 ** -0.5) * math.log2(math.e)
import struct
def f2u(x): return struct.unpack("<I", struct.pack("<f", x))[0]

class G:
    def __init__(s): s.L = []; s.nl = 0
    def __call__(s, x): s.L.append("  " + x)
    def label(s, x): s.L.append(x + ":")
    def newlabel(s, p="L"): s.nl += 1; return f"{p}_{s.nl}"
    def c(s, x): s.L.append("  ; " + x)

def vr(a, n): return f"v[{a}:{a+n-1}]"

def gen(D=6, NSW=7, ts=False, pre=1, kflags="nt", sleep=2, wqflags="", dyn=True, prio=True, dp=4, noB=False, nocomp=False, stopat=0, nopoll=False, nostore=False, nogather=False, noW=False, noKV=False, probe=None, sprio=3, skip=(), bperm=1, arot=0, stflags=None, ldflags=None, tsleep=1, presleep=0, il=0, early=4, hmap=0, mlfirst=True, dts=False):
    A = G()
    _emit = A.__call__
    phase = ["main"]
    def filt(x):
        if nostore and x.startswith("buffer_store") and "sc1" in x: return
        if nogather and x.startswith("buffer_load") and "sc1" in x: return
        if x.startswith("buffer_load") and "sc1" not in x and phase[0] in skip: return
        if x.startswith("buffer_store") and phase[0] + "_st" in skip: return
        if x.startswith("buffer_store") and "sc1" in x and stflags is not None and phase[0] != "woA": x = x.replace("sc1", stflags)
        if x.startswith("buffer_load") and "sc1" in x and ldflags is not None and phase[0] != "woA": x = x.replace("sc1", ldflags)
        A.L.append("  " + x)
    A.__class__.__call__ = lambda self, x: filt(x)
    NT = 256
    sWG, sWAVE = "s2", "s3"
    SK, SV, SW, SWS, SX, SDBG, SOUT = "s[4:7]", "s[8:11]", "s[12:15]", "s[16:19]", "s[20:23]", "s[24:27]", "s[28:31]"
    sC, sNC = "s58", "s59"
    sH, sS = "s60", "s61"
    sKOFF, sCNT, sISS = "s62", "s63", "s64"
    sT0, sT1, sT2, sT3 = "s65", "s66", "s67", "s68"
    sE = "s69"
    sSELLO, sSELHI = "s70", "s71"
    sHALF = "s[72:73]"
    sTO = "s74"
    sNREC = "s75"
    sRL = 76
    vLANE, vN, vG, vKO, vVO = 0, 1, 2, 3, 4
    vM = 5
    vT = 9
    vQ = 12; vO = 28; vS = 32; vP = 36; vB0 = 40; vB1 = 44; vm = 48; vl = 49
    vt0, vt1, vt2, vt3, vt4, vt5 = 50, 51, 52, 53, 54, 55
    vX = 56
    RING = 64
    def kreg(slot, i): return RING + slot * 32 + i * 4
    def vreg(slot, i): return RING + slot * 32 + 16 + i * 4
    WQ = RING + 128
    DP = max(min(D, dp), pre + il)

    def srd(dst, ptr_lo, nbytes):
        b = int(dst[2:].split(":")[0])
        A(f"s_mov_b32 s{b}, s{ptr_lo}"); A(f"s_mov_b32 s{b+1}, s{ptr_lo+1}")
        A(f"s_mov_b32 s{b+2}, {hex(nbytes)}"); A(f"s_mov_b32 s{b+3}, 0x00020000")

    def stamp(idx):
        if dts:
            m = {0: 0, 1: 1, 2: 2, 10: 3, 7: 4}
            if idx not in m: return
            k = m[idx]
            lab = A.newlabel("L_nodts")
            A("s_add_u32 s92, s3, 1"); A("s_and_b32 s92, s92, 6"); A("s_cmp_lg_u32 s92, 0"); A(f"s_cbranch_scc1 {lab}")
            if idx == 0:
                A("s_cmp_lg_u32 s3, 0"); A(f"s_cbranch_scc1 {lab}")
            A("s_mov_b32 s92, -1")
            A("s_cmp_eq_u32 s2, 0"); A("s_cselect_b32 s92, 4, s92")
            A("s_cmp_eq_u32 s2, 8"); A("s_cselect_b32 s92, 24, s92")
            A("s_cmp_eq_u32 s2, 200"); A("s_cselect_b32 s92, 44, s92")
            A("s_cmp_eq_u32 s92, -1"); A(f"s_cbranch_scc1 {lab}")
            A("s_memrealtime s[90:91]")
            A("s_waitcnt lgkmcnt(0)")
            A(f"v_mov_b32 v{vT+2}, s90"); A(f"v_mov_b32 v{vT+1}, 0")
            A("s_mov_b64 exec, 1")
            A(f"buffer_store_dword v{vT+2}, v{vT+1}, {SDBG}, s92 offen offset:{4*k} sc1")
            A("s_mov_b64 exec, -1")
            A.label(lab)
            return
        if not ts: return
        A("s_memrealtime s[90:91]")
        A("s_lshl_b32 s92, s2, 3"); A("s_add_u32 s92, s92, s3"); A("s_lshl_b32 s92, s92, 6")
        A(f"s_add_u32 s92, s92, {WS_TS + idx*4}")
        A("s_waitcnt lgkmcnt(0)")
        A(f"v_mov_b32 v{vT+2}, s90"); A(f"v_mov_b32 v{vT+1}, 0")
        A(f"buffer_store_dword v{vT+2}, v{vT+1}, {SWS}, s92 offen")

    def xgroup_reduce(op, v, tmp):
        A(f"v_mov_b32 v{tmp}, v{v}"); A("s_nop 1")
        A(f"v_permlane16_swap_b32 v{v}, v{tmp}")
        A(f"{op} v{v}, v{v}, v{tmp}")
        A(f"v_mov_b32 v{tmp}, v{v}"); A("s_nop 1")
        A(f"v_permlane32_swap_b32 v{v}, v{tmp}")
        A(f"{op} v{v}, v{v}, v{tmp}")

    def mfma(d, a, b, c):
        cs = "0" if c is None else vr(c, 4)
        A(f"v_mfma_f32_16x16x32_bf16 {vr(d,4)}, {vr(a,4)}, {vr(b,4)}, {cs}")

    def proj_issue(rowbase_s, colbyte_s, xs_off_s, inter=None):
        A(f"v_lshlrev_b32 v{vT}, 17, v{vG}"); A(f"v_lshl_add_u32 v{vT}, v{vN}, 4, v{vT}")
        A(f"v_lshlrev_b32 v{vT+1}, 5, v{vG}")
        A(f"buffer_load_dwordx4 {vr(vX,4)}, v{vT+1}, {SX}, {xs_off_s} offen")
        A(f"buffer_load_dwordx4 {vr(vX+4,4)}, v{vT+1}, {SX}, {xs_off_s} offen offset:16")
        A(f"s_lshl_b32 {sT0}, {rowbase_s}, 13"); A(f"s_add_u32 {sT0}, {sT0}, {colbyte_s}")
        for t in range(16):
            A(f"buffer_load_dwordx4 {vr(WQ+4*t,4)}, v{vT}, {SW}, {sT0} offen {wqflags}")
            if t < 15: A(f"s_add_u32 {sT0}, {sT0}, 8192")
            if inter and t < 15:
                k = len(inter) * (t + 1) // 15 - len(inter) * t // 15
                for _ in range(k):
                    if inter_pos[0] < len(inter): A(inter[inter_pos[0]]); inter_pos[0] += 1
    inter_pos = [0]

    def proj_compute(dst):
        for t in range(16):
            B = vB0 if t % 2 == 0 else vB1
            sel = sSELLO if t % 2 == 0 else sSELHI
            A(f"v_perm_b32 v{vt0}, v{vX+t//2}, v{vX+t//2}, {sel}")
            for r in range(4): A(f"v_and_b32 v{B+r}, v{vt0}, v{vM+r}")
            A("s_nop 1")
            mfma(dst, WQ + 4 * t, B, None if t == 0 else dst)

    def softmax_update(S, P, m, l, O, t0, t1, t2):
        A(f"v_max_f32 v{t0}, v{S}, v{S+1}")
        A(f"v_max3_f32 v{t0}, v{S+2}, v{S+3}, v{t0}")
        A(f"v_mov_b32 v{t1}, v{t0}"); A("s_nop 1")
        A(f"v_permlane16_swap_b32 v{t0}, v{t1}")
        A(f"v_max_f32 v{t0}, v{t0}, v{t1}")
        A(f"v_mov_b32 v{t1}, v{t0}"); A("s_nop 1")
        A(f"v_permlane32_swap_b32 v{t0}, v{t1}")
        A(f"v_max3_f32 v{t0}, v{t0}, v{t1}, v{m}")
        A(f"v_mul_f32 v{t1}, {sC}, v{t0}")
        A(f"v_fma_f32 v{t2}, v{m}, {sC}, -v{t1}")
        for r in range(4): A(f"v_fma_f32 v{P+r}, v{S+r}, {sC}, -v{t1}")
        A(f"v_exp_f32 v{t2}, v{t2}")
        for r in range(4): A(f"v_exp_f32 v{P+r}, v{P+r}")
        A(f"v_mov_b32 v{m}, v{t0}")
        A(f"v_fma_f32 v{l}, v{l}, v{t2}, v{P}")
        A(f"v_add_f32 v{t1}, v{P+1}, v{P+2}")
        for r in range(4): A(f"v_mul_f32 v{O+r}, v{O+r}, v{t2}")
        A(f"v_add_f32 v{l}, v{l}, v{P+3}")
        A(f"v_add_f32 v{l}, v{l}, v{t1}")

    def pv(O, P, vbase_fn):
        for t in range(4):
            B = vB0 if t % 2 == 0 else vB1
            A(f"v_cvt_pk_bf16_f32 v{vt0}, v{P+t}, v{P+t}")
            for r in range(4): A(f"v_and_b32 v{B+r}, v{vt0}, v{vM+r}")
            A("s_nop 1")
            mfma(O, vbase_fn(t), B, O)

    def issue_k(slot, soff):
        for i in range(4):
            A(f"buffer_load_dwordx4 {vr(kreg(slot,i),4)}, v{vKO}, {SK}, {soff} offen offset:{i*64} {kflags}")
    def issue_v(slot, soff):
        for i in range(4):
            A(f"buffer_load_dwordx4 {vr(vreg(slot,i),4)}, v{vVO}, {SV}, {soff} offen offset:{i*256} {kflags}")

    def poll_begin():
        lab = A.newlabel("L_poll")
        if phase[0] != "woA":
            sl = presleep
            while sl > 0:
                A(f"s_sleep {min(sl,127)}"); sl -= 127
        A(f"s_mov_b32 {sTO}, 0x200000")
        A.label(lab)
        return lab
    pollidx = [0]
    def poll_end(lab, tagregs):
        done = A.newlabel("L_pdone")
        A("s_waitcnt vmcnt(0)")
        A(f"v_xor_b32 v{vt0}, {sE}, v{tagregs[0]}")
        for tr in tagregs[1:]:
            A(f"v_xor_b32 v{vt1}, {sE}, v{tr}")
            A(f"v_or_b32 v{vt0}, v{vt0}, v{vt1}")
        A(f"v_cmp_ne_u32 vcc, 0, v{vt0}")
        A("s_nop 4")
        A(f"s_cbranch_vccz {done}")
        if nopoll: A(f"s_branch {done}")
        sl = tsleep if phase[0] == "woA" else sleep
        while sl > 0:
            A(f"s_sleep {min(sl,127)}"); sl -= 127
        A(f"s_sub_u32 {sTO}, {sTO}, 1")
        A(f"s_cmp_lg_u32 {sTO}, 0")
        A(f"s_cbranch_scc1 {lab}")
        A.label(done)
        if ts:
            A(f"s_sub_u32 s92, 0x200000, {sTO}"); A(f"v_mov_b32 v{vT+2}, s92"); A(f"v_mov_b32 v{vT+1}, 0")
            A(f"s_lshl_b32 s92, s2, 6"); A(f"s_add_u32 s92, s92, {WS_TS + 0x200000 + pollidx[0]*4}")
            A(f"buffer_store_dword v{vT+2}, v{vT+1}, {SWS}, s92 offen")
        pollidx[0] += 1

    def publish_half(Dreg, voff, soff):
        A(f"v_cndmask_b32 v{vB0}, v{Dreg}, v{Dreg+2}, {sHALF}")
        A(f"v_mov_b32 v{vB0+1}, {sE}")
        A(f"v_cndmask_b32 v{vB0+2}, v{Dreg+1}, v{Dreg+3}, {sHALF}")
        A(f"v_mov_b32 v{vB0+3}, {sE}")
        A(f"buffer_store_dwordx4 {vr(vB0,4)}, v{voff}, {SWS}, {soff} offen sc1")
    WO = RING
    PO = RING + 64
    vML = 60
    def wo_issue(ptr_lo, head_s, piece_s):
        srd(SW, ptr_lo, 0x400000)
        A(f"v_lshlrev_b32 v{vt1}, 14, v{vG}")
        A(f"v_lshl_add_u32 v{vt1}, v{vN}, 4, v{vt1}")
        A(f"s_lshl_b32 {sT0}, {head_s}, 17")
        A(f"s_lshr_b32 {sT1}, {piece_s}, 2"); A(f"s_lshl_b32 {sT1}, {sT1}, 16"); A(f"s_add_u32 {sT0}, {sT0}, {sT1}")
        A(f"s_and_b32 {sT1}, {piece_s}, 3"); A(f"s_lshl_b32 {sT1}, {sT1}, 8"); A(f"s_add_u32 {sT0}, {sT0}, {sT1}")
        for a in range(4):
            if a: A(f"s_add_u32 {sT0}, {sT0}, 4096")
            for b in range(4):
                t = a * 4 + b
                A(f"buffer_load_dwordx4 {vr(WO+4*t,4)}, v{vt1}, {SW}, {sT0} offen offset:{b*1024} {kflags}")
    def weights(NP):
        A(f"v_mov_b32 v{vt0}, v{vML}")
        for p0 in range(0, NP, 8):
            for p in range(8): A(f"v_readlane_b32 s{sRL+p}, v{vML}, {p0+p}")
            A("s_nop 1")
            for p in range(8): A(f"v_max_f32 v{vt0}, s{sRL+p}, v{vt0}")
        A(f"v_sub_f32 v{vt1}, v{vML}, v{vt0}"); A(f"v_mul_f32 v{vt1}, {sC}, v{vt1}"); A(f"v_exp_f32 v{vt1}, v{vt1}")
        A("s_nop 0")
        A(f"v_mul_f32 v{vt2}, v{vt1}, v{vML+2}")
        A(f"v_mov_b32 v{vt4}, 0"); A("s_nop 0")
        for p0 in range(0, NP, 8):
            for p in range(8): A(f"v_readlane_b32 s{sRL+p}, v{vt2}, {p0+p}")
            A("s_nop 1")
            for p in range(8): A(f"v_add_f32 v{vt4}, s{sRL+p}, v{vt4}")
        A(f"v_rcp_f32 v{vt4}, v{vt4}")
    def combine_direct(NP, ws_p, ws_ml, head_s, piece_s):
        A(f"v_and_b32 v{vt2}, {NP-1}, v{vLANE}"); A(f"v_lshlrev_b32 v{vt2}, 4, v{vt2}")
        A(f"v_lshlrev_b32 v{vt3}, 3, v{vLANE}")
        lab = poll_begin()
        A(f"s_mul_i32 {sT0}, {head_s}, {NP*16}"); A(f"s_add_u32 {sT0}, {sT0}, {ws_ml}")
        A(f"buffer_load_dwordx4 {vr(vML,4)}, v{vt2}, {SWS}, {sT0} offen sc1")
        A(f"s_mul_i32 {sT0}, {head_s}, {NP*1024}"); A(f"s_lshr_b32 {sT1}, {piece_s}, 2"); A(f"s_lshl_b32 {sT1}, {sT1}, 9")
        A(f"s_add_u32 {sT0}, {sT0}, {sT1}"); A(f"s_add_u32 {sT0}, {sT0}, {ws_p}")
        for p in range(NP):
            if p % 4 == 0 and p: A(f"s_add_u32 {sT0}, {sT0}, 4096")
            A(f"buffer_load_dwordx2 {vr(PO+2*p,2)}, v{vt3}, {SWS}, {sT0} offen offset:{(p%4)*1024} sc1")
        poll_end(lab, [vML + 1, vML + 3] + [PO + 2 * p + 1 for p in range(NP)])
        weights(NP)
        A(f"v_mov_b32 v{vt3}, 0")
        for p0 in range(0, NP, 8):
            for p in range(8): A(f"v_readlane_b32 s{sRL+p}, v{vt1}, {p0+p}")
            A("s_nop 1")
            for p in range(8): A(f"v_fma_f32 v{vt3}, v{PO+2*(p0+p)}, s{sRL+p}, v{vt3}")
        A(f"v_mul_f32 v{vt3}, v{vt3}, v{vt4}")
        A(f"v_cvt_pk_bf16_f32 v{vt3}, v{vt3}, v{vt3}")
    def combine_directB(NP, ws_p, ws_ml, head_s, piece_s):
        A(f"v_and_b32 v{vt2}, {NP-1}, v{vLANE}"); A(f"v_lshlrev_b32 v{vt2}, 4, v{vt2}")
        A(f"v_and_b32 v{vt3}, 1, v{vG}"); A(f"v_lshlrev_b32 v{vt3}, 10, v{vt3}")
        A(f"v_lshrrev_b32 v{vt1}, 1, v{vG}"); A(f"v_lshl_add_u32 v{vt3}, v{vt1}, 8, v{vt3}")
        A(f"v_and_b32 v{vt1}, 7, v{vN}"); A(f"v_lshl_add_u32 v{vt3}, v{vt1}, 4, v{vt3}")
        A(f"v_lshrrev_b32 v{vt1}, 3, v{vN}"); A(f"v_lshl_add_u32 v{vt3}, v{vt1}, 3, v{vt3}")
        lab = poll_begin()
        A(f"s_mul_i32 {sT0}, {head_s}, {NP*16}"); A(f"s_add_u32 {sT0}, {sT0}, {ws_ml}")
        A(f"buffer_load_dwordx4 {vr(vML,4)}, v{vt2}, {SWS}, {sT0} offen sc1")
        if mlfirst:
            poll_end(lab, [vML + 1, vML + 3])
            lab = poll_begin()
        A(f"s_lshr_b32 {sT0}, {head_s}, 1"); A(f"s_mul_i32 {sT0}, {sT0}, {NP*2048}"); A(f"s_add_u32 {sT0}, {sT0}, {ws_p}")
        A(f"s_and_b32 {sT1}, {head_s}, 1"); A(f"s_lshl_b32 {sT1}, {sT1}, 7"); A(f"s_add_u32 {sT0}, {sT0}, {sT1}")
        A(f"s_lshr_b32 {sT1}, {piece_s}, 2"); A(f"s_lshl_b32 {sT1}, {sT1}, 9"); A(f"s_add_u32 {sT0}, {sT0}, {sT1}")
        for p in range(NP):
            if p % 2 == 0 and p: A(f"s_add_u32 {sT0}, {sT0}, 4096")
            A(f"buffer_load_dwordx2 {vr(PO+2*p,2)}, v{vt3}, {SWS}, {sT0} offen offset:{(p%2)*2048} sc1")
        poll_end(lab, ([] if mlfirst else [vML + 1, vML + 3]) + [PO + 2 * p + 1 for p in range(NP)])
        weights(NP)
        A(f"v_mov_b32 v{vt3}, 0")
        for p0 in range(0, NP, 8):
            for p in range(8): A(f"v_readlane_b32 s{sRL+p}, v{vt1}, {p0+p}")
            A("s_nop 1")
            for p in range(8): A(f"v_fma_f32 v{vt3}, v{PO+2*(p0+p)}, s{sRL+p}, v{vt3}")
        A(f"v_mul_f32 v{vt3}, v{vt3}, v{vt4}")
        A(f"v_cvt_pk_bf16_f32 v{vt3}, v{vt3}, v{vt3}")
    def combine_full(NP, ws_p, ws_ml, ws_of, head_s):
        PF = 128; vMLs = vML
        A(f"v_and_b32 v{vt2}, {NP-1}, v{vLANE}"); A(f"v_lshlrev_b32 v{vt2}, 4, v{vt2}")
        A(f"v_lshrrev_b32 v{vt3}, 5, v{vLANE}"); A(f"v_lshlrev_b32 v{vt3}, 10, v{vt3}")
        A(f"v_bfe_u32 v{vt1}, v{vLANE}, 3, 2"); A(f"v_lshl_add_u32 v{vt3}, v{vt1}, 8, v{vt3}")
        A(f"v_and_b32 v{vt1}, 7, v{vLANE}"); A(f"v_lshl_add_u32 v{vt3}, v{vt1}, 4, v{vt3}")
        lab = poll_begin()
        A(f"s_mul_i32 {sT0}, {head_s}, {NP*16}"); A(f"s_add_u32 {sT0}, {sT0}, {ws_ml}")
        A(f"buffer_load_dwordx4 {vr(vML,4)}, v{vt2}, {SWS}, {sT0} offen sc1")
        poll_end(lab, [vML + 1, vML + 3])
        stamp(14)
        lab = poll_begin()
        A(f"s_lshr_b32 {sT0}, {head_s}, 1"); A(f"s_mul_i32 {sT0}, {sT0}, {NP*2048}"); A(f"s_add_u32 {sT0}, {sT0}, {ws_p}")
        A(f"s_and_b32 {sT1}, {head_s}, 1"); A(f"s_lshl_b32 {sT1}, {sT1}, 7"); A(f"s_add_u32 {sT0}, {sT0}, {sT1}")
        for p in range(NP):
            if p % 2 == 0 and p: A(f"s_add_u32 {sT0}, {sT0}, 4096")
            A(f"buffer_load_dwordx4 {vr(PF+4*p,4)}, v{vt3}, {SWS}, {sT0} offen offset:{(p%2)*2048} sc1")
        poll_end(lab, [PF + 4 * p + o for p in range(NP) for o in (1, 3)])
        stamp(15)
        weights(NP)
        A(f"v_mov_b32 v{vB0}, 0"); A(f"v_mov_b32 v{vB0+1}, 0")
        for p0 in range(0, NP, 8):
            for p in range(8): A(f"v_readlane_b32 s{sRL+p}, v{vt1}, {p0+p}")
            A("s_nop 1")
            for p in range(8):
                A(f"v_fma_f32 v{vB0}, v{PF+4*(p0+p)}, s{sRL+p}, v{vB0}")
                A(f"v_fma_f32 v{vB0+1}, v{PF+4*(p0+p)+2}, s{sRL+p}, v{vB0+1}")
        A(f"v_mul_f32 v{vB0}, v{vB0}, v{vt4}"); A(f"v_mul_f32 v{vB0+1}, v{vB0+1}, v{vt4}")
        A(f"v_cvt_pk_bf16_f32 v{vB0}, v{vB0}, v{vB0+1}"); A(f"v_mov_b32 v{vB0+1}, {sE}")
        A(f"v_lshlrev_b32 v{vt3}, 3, v{vLANE}")
        A(f"s_lshl_b32 {sT0}, {head_s}, 9"); A(f"s_add_u32 {sT0}, {sT0}, {ws_of}")
        A(f"buffer_store_dwordx2 {vr(vB0,2)}, v{vt3}, {SWS}, {sT0} offen sc1")
    def gather_final(ws_of, head_s, piece_s):
        A(f"v_and_b32 v{vt2}, 1, v{vG}"); A(f"v_lshlrev_b32 v{vt2}, 5, v{vt2}")
        A(f"v_lshrrev_b32 v{vt1}, 1, v{vG}"); A(f"v_lshl_add_u32 v{vt2}, v{vt1}, 3, v{vt2}")
        A(f"v_and_b32 v{vt1}, 7, v{vN}"); A(f"v_add_u32 v{vt2}, v{vt2}, v{vt1}"); A(f"v_lshlrev_b32 v{vt2}, 3, v{vt2}")
        lab = poll_begin()
        A(f"s_lshl_b32 {sT0}, {head_s}, 9"); A(f"s_lshr_b32 {sT1}, {piece_s}, 2"); A(f"s_lshl_b32 {sT1}, {sT1}, 7")
        A(f"s_add_u32 {sT0}, {sT0}, {sT1}"); A(f"s_add_u32 {sT0}, {sT0}, {ws_of}")
        A(f"buffer_load_dwordx2 {vr(vB0,2)}, v{vt2}, {SWS}, {sT0} offen sc1")
        poll_end(lab, [vB0 + 1])
        A(f"v_mov_b32 v{vt1}, {sSELLO}"); A(f"v_mov_b32 v{vt2}, {sSELHI}")
        A(f"v_cndmask_b32 v{vt1}, v{vt1}, v{vt2}, {sHALF}")
        A(f"v_perm_b32 v{vt3}, v{vB0}, v{vB0}, v{vt1}")
    def project(ws_y, head_s, piece_s):
        A("s_nop 1")
        for t in range(16):
            B = vB0 if t % 2 == 0 else vB1
            for r in range(4): A(f"v_and_b32_dpp v{B+r}, v{vt3}, v{vM+r} row_newbcast:{t} row_mask:0xf bank_mask:0xf")
            A("s_nop 1")
            mfma(vS, WO + 4 * t, B, None if t == 0 else vS)
        A(f"v_lshlrev_b32 v{vt1}, 4, v{vN}")
        A(f"v_lshl_add_u32 v{vt1}, v{vG}, 14, v{vt1}")
        A(f"s_and_b32 {sT0}, {piece_s}, 3"); A(f"s_lshl_b32 {sT0}, {sT0}, 16")
        A(f"s_lshl_b32 {sT1}, {head_s}, 1"); A(f"s_lshr_b32 {sT2}, {piece_s}, 2"); A(f"s_add_u32 {sT1}, {sT1}, {sT2}"); A(f"s_lshl_b32 {sT1}, {sT1}, 8")
        A(f"s_add_u32 {sT0}, {sT0}, {sT1}"); A(f"s_add_u32 {sT0}, {sT0}, {ws_y}")
        A("s_nop 3")
        publish_half(vS, vt1, sT0)
    def stage3(ws_y, outbyte, sel):
        skip = A.newlabel("L_noreduce")
        A(f"s_lshr_b32 {sT3}, {sWG}, 4"); A(f"s_and_b32 {sT0}, {sT3}, 7"); A(f"s_add_u32 {sT0}, {sT0}, {sel}")
        A(f"s_and_b32 {sT1}, {sWG}, 15"); A(f"s_cmp_lg_u32 {sT0}, {sT1}"); A(f"s_cbranch_scc1 {skip}")
        A(f"v_lshlrev_b32 v{vt4}, 4, v{vLANE}")
        lab = poll_begin()
        A(f"s_lshl_b32 {sT0}, {sT3}, 14"); A(f"s_add_u32 {sT0}, {sT0}, {ws_y}")
        for u in range(16):
            if u % 4 == 0 and u: A(f"s_add_u32 {sT0}, {sT0}, 4096")
            A(f"buffer_load_dwordx4 {vr(PO+4*u,4)}, v{vt4}, {SWS}, {sT0} offen offset:{(u%4)*1024} sc1")
        poll_end(lab, [PO + 4 * u + o for u in range(16) for o in (1, 3)])
        for u in range(1, 16):
            A(f"v_add_f32 v{PO}, v{PO}, v{PO+4*u}"); A(f"v_add_f32 v{PO+2}, v{PO+2}, v{PO+4*u+2}")
        xgroup_reduce("v_add_f32", PO, vt0)
        xgroup_reduce("v_add_f32", PO + 2, vt0)
        A(f"v_cvt_pk_bf16_f32 v{vt0}, v{PO}, v{PO+2}")
        A(f"v_and_b32 v{vt1}, 7, v{vN}"); A(f"v_lshrrev_b32 v{vt2}, 3, v{vN}"); A(f"v_lshl_add_u32 v{vt1}, v{vt2}, 4, v{vt1}")
        A(f"v_lshlrev_b32 v{vt1}, 1, v{vt1}")
        A(f"s_lshl_b32 {sT0}, {sT3}, 6"); A(f"s_add_u32 {sT0}, {sT0}, {outbyte}")
        A("s_mov_b64 exec, 0xffff")
        A(f"buffer_store_short v{vt0}, v{vt1}, {SOUT}, {sT0} offen")
        A(f"buffer_store_short_d16_hi v{vt0}, v{vt1}, {SOUT}, {sT0} offen offset:16")
        A("s_mov_b64 exec, -1")
        A.label(skip)

    A(f"s_cmp_ge_u32 {sWG}, 256"); A("s_cbranch_scc1 L_end")
    A("s_load_dwordx16 s[32:47], s[0:1], 0")
    A("s_load_dwordx8 s[48:55], s[0:1], 64")
    A("s_load_dwordx2 s[56:57], s[0:1], 96")
    A(f"v_lshrrev_b32 v1, 6, v0"); A("v_and_b32 v0, 63, v0"); A("s_nop 0")
    A(f"v_readfirstlane_b32 {sWAVE}, v1")
    A(f"v_and_b32 v{vN}, 15, v0"); A(f"v_lshrrev_b32 v{vG}, 4, v0")
    A(f"v_lshlrev_b32 v{vKO}, 8, v{vN}"); A(f"v_lshl_add_u32 v{vKO}, v{vG}, 4, v{vKO}")
    A(f"v_lshlrev_b32 v{vVO}, 10, v{vG}"); A(f"v_lshl_add_u32 v{vVO}, v{vN}, 4, v{vVO}")
    A(f"v_and_b32 v{vT}, 1, v{vN}")
    A(f"v_mov_b32 v{vT+1}, 0xffff")
    A(f"v_lshlrev_b32 v{vT}, 4, v{vT}")
    A(f"v_lshlrev_b32 v{vT+1}, v{vT}, v{vT+1}")
    A(f"v_bfe_u32 v{vT}, v{vN}, 1, 2")
    for r in range(4):
        A(f"v_cmp_eq_u32 vcc, {r}, v{vT}"); A("s_nop 1")
        A(f"v_cndmask_b32 v{vM+r}, 0, v{vT+1}, vcc")
    A(f"v_cmp_lt_u32 {sHALF}, 7, v{vN}")
    A(f"s_mov_b32 {sC}, {hex(f2u(CSCALE))}")
    A(f"s_mov_b32 {sSELLO}, 0x01000100"); A(f"s_mov_b32 {sSELHI}, 0x03020302")
    A(f"s_and_b32 {sH}, {sWG}, 7"); A(f"s_lshl_b32 {sH}, {sH}, 2")
    A(f"s_bfe_u32 {sT0}, {sWG}, 0x20003"); A(f"s_add_u32 {sH}, {sH}, {sT0}")
    A(f"s_lshr_b32 {sS}, {sWG}, 5")
    if hmap == 1:
        A(f"s_lshr_b32 {sH}, {sWG}, 3"); A(f"s_and_b32 {sS}, {sWG}, 7")
    A("s_waitcnt lgkmcnt(0)")
    srd(SW, 38, 0x400000); srd(SX, 32, 1024); srd(SWS, 56, WS_SIZE); srd(SDBG, 54, 256)
    stamp(0)
    A(f"s_cmp_eq_u32 {sWAVE}, {NSW}"); A("s_cbranch_scc1 L_service")

    srd(SK, 34, 0x10000000); srd(SV, 36, 0x10000000)
    sBASE = "s95"; sVAL = 76
    vNEXT = vT + 2; vCA = vT + 1; vONE = vT
    A(f"s_lshl_b32 {sBASE}, {sH}, 23"); A(f"s_lshl_b32 {sT0}, {sS}, 20"); A(f"s_add_u32 {sBASE}, {sBASE}, {sT0}")
    sROT = "s96"; sIDX = "s97"
    A(f"s_mul_i32 {sROT}, {sWG}, {arot}")
    A(f"s_mov_b32 {sIDX}, {sWAVE}")
    base_nt = NT // NSW; remw = NT % NSW
    A(f"s_cmp_lt_u32 {sWAVE}, {remw}"); A(f"s_cselect_b32 {sCNT}, {base_nt+1}, {base_nt}")
    A(f"s_sub_u32 {sISS}, {sCNT}, {D}")
    STR = NSW * 4096
    def aoff(idx):
        A(f"s_add_u32 {sKOFF}, {idx}, {sROT}"); A(f"s_and_b32 {sKOFF}, {sKOFF}, 255"); A(f"s_lshl_b32 {sKOFF}, {sKOFF}, 12"); A(f"s_add_u32 {sKOFF}, {sKOFF}, {sBASE}")
    assert dyn
    def issue_tile(slot):
        aoff(sIDX); issue_k(slot, sKOFF); issue_v(slot, sKOFF); A(f"s_add_u32 {sIDX}, {sIDX}, {NSW}")
    if prio: A("s_setprio 3")
    for s in range(pre): issue_tile(s)
    A(f"s_lshl_b32 {sT1}, {sWAVE}, 6"); A(f"s_lshl_b32 {sT2}, {sH}, 8"); A(f"s_lshl_b32 {sT3}, {sWAVE}, 7")
    n0 = len(A.L)
    for s in range(pre, pre + il): issue_tile(s)
    inter = [x.strip() for x in A.L[n0:]]; del A.L[n0:]
    phase[0] = "wqA"
    proj_issue(sT1, sT2, sT3, inter)
    phase[0] = "main"
    if prio: A("s_setprio 0")
    for s in range(pre + il, DP): issue_tile(s)
    A(f"v_mov_b32 v{vm}, 0xff800000"); A(f"v_mov_b32 v{vl}, 0")
    for r in range(4): A(f"v_mov_b32 v{vO+r}, 0")
    for s in range(D): A(f"s_mov_b32 s{sVAL+s}, 1")
    if prio: A("s_setprio 3")
    stamp(11)
    A(f"s_waitcnt vmcnt({(DP-pre-il)*8 + (1 if ts else 0)})")
    stamp(12)
    EP = max(DP, min(early, D, 4))
    for s in range(DP, EP): issue_tile(s)
    proj_compute(vS)
    def qpart_write():
        A(f"v_and_b32 v{vt1}, 7, v{vN}"); A(f"v_lshl_add_u32 v{vt1}, v{vG}, 3, v{vt1}"); A(f"v_lshlrev_b32 v{vt1}, 4, v{vt1}")
        A(f"s_lshl_b32 {sT0}, {sWAVE}, 9"); A(f"v_add_u32 v{vt1}, {sT0}, v{vt1}")
        A("s_nop 7")
        A(f"ds_write_b128 v{vt1}, {vr(vS,4)} offset:{L_QPART}")
        A("s_waitcnt lgkmcnt(0)")
        A("s_barrier")
    qpart_write()
    stamp(13)
    A(f"v_lshlrev_b32 v{vt1}, 3, v{vLANE}")
    for w in range(8): A(f"ds_read_b64 {vr(vQ+2*w,2)}, v{vt1} offset:{L_QPART + w*512}")
    A(f"v_lshrrev_b32 v{vt2}, 4, v{vLANE}"); A(f"v_lshlrev_b32 v{vt2}, 5, v{vt2}")
    A(f"v_bfe_u32 v{vt3}, v{vLANE}, 1, 3"); A(f"v_add_u32 v{vt2}, v{vt2}, v{vt3}")
    A(f"v_and_b32 v{vt3}, 1, v{vLANE}"); A(f"v_lshl_add_u32 v{vt2}, v{vt3}, 4, v{vt2}")
    A(f"v_lshlrev_b32 v{vt2}, 1, v{vt2}")
    A(f"s_lshl_b32 {sT0}, {sWAVE}, 8"); A(f"v_add_u32 v{vt2}, {sT0}, v{vt2}")
    A(f"v_lshlrev_b32 v{vt3}, 4, v{vG}"); A(f"v_add_u32 v{vt3}, {sT0}, v{vt3}")
    A("s_waitcnt lgkmcnt(0)")
    for w in range(1, 8):
        A(f"v_add_f32 v{vQ}, v{vQ}, v{vQ+2*w}"); A(f"v_add_f32 v{vQ+1}, v{vQ+1}, v{vQ+2*w+1}")
    A(f"v_cvt_pk_bf16_f32 v{vt0}, v{vQ}, v{vQ+1}")
    A(f"ds_write_b16 v{vt2}, v{vt0} offset:{L_QBF}")
    A(f"ds_write_b16_d16_hi v{vt2}, v{vt0} offset:{L_QBF+16}")
    A("s_waitcnt lgkmcnt(0)")
    for i in range(4): A(f"ds_read_b128 {vr(vQ+4*i,4)}, v{vt3} offset:{L_QBF + i*64}")
    A(f"s_mov_b32 {sNREC}, 0x10000000")
    A("s_waitcnt lgkmcnt(0)")
    stamp(1)
    if prio: A("s_setprio 0")
    for s in range(EP, D): issue_tile(s)
    def grab():
        A("s_mov_b64 exec, 1")
        A(f"ds_add_rtn_u32 v{vNEXT}, v{vCA}, v{vONE} offset:{L_CNT}")
        A("s_mov_b64 exec, -1")
    if dyn:
        A(f"v_mov_b32 v{vCA}, 0"); A(f"v_mov_b32 v{vONE}, 1")
        grab()
    A.label("L_loop")
    for s in range(D):
        if dyn:
            A(f"s_cmp_eq_u32 s{sVAL+s}, 0"); A("s_cbranch_scc1 L_sdone")
        A(f"s_waitcnt vmcnt({8*D-4})")
        for i in range(4): mfma(vS, kreg(s, i), vQ + 4 * i, None if i == 0 else vS)
        if dyn:
            A("s_waitcnt lgkmcnt(0)")
            A(f"v_readfirstlane_b32 {sT0}, v{vNEXT}")
            grab()
            aoff(sT0)
            if ts:
                lab = A.newlabel("L_nots")
                A(f"s_and_b32 s92, {sT0}, 15"); A("s_cmp_lg_u32 s92, 0"); A(f"s_cbranch_scc1 {lab}")
                A(f"s_cmp_gt_u32 {sT0}, 256"); A(f"s_cbranch_scc1 {lab}")
                A("s_memrealtime s[90:91]")
                A(f"s_lshl_b32 s92, s2, 7"); A(f"s_lshr_b32 s93, {sT0}, 2"); A("s_add_u32 s92, s92, s93"); A(f"s_add_u32 s92, s92, {WS_TS + 0x100000}")
                A("s_waitcnt lgkmcnt(0)")
                A(f"v_mov_b32 v{vt3}, s90")
                A(f"buffer_store_dword v{vt3}, v{vCA}, {SWS}, s92 offen")
                A.label(lab)
            A(f"s_cmp_lt_u32 {sT0}, {NT}"); A(f"s_cselect_b32 s{sVAL+s}, 1, 0")
        else:
            A(f"s_cmp_gt_i32 {sISS}, 0")
        A(f"s_cselect_b32 s6, {sNREC}, 0"); A(f"s_cselect_b32 s10, {sNREC}, 0")
        issue_k(s, sKOFF)
        A("s_nop 1")
        if not nocomp: softmax_update(vS, vP, vm, vl, vO, vt0, vt1, vt2)
        A(f"s_waitcnt vmcnt({8*D-4})")
        if not nocomp: pv(vO, vP, lambda t: vreg(s, t))
        issue_v(s, sKOFF)
        if not dyn:
            A(f"s_add_u32 {sKOFF}, {sKOFF}, {STR}")
            A(f"s_sub_u32 {sISS}, {sISS}, 1")
            A(f"s_sub_u32 {sCNT}, {sCNT}, 1")
            A(f"s_cmp_eq_u32 {sCNT}, 0")
            if s < D - 1: A("s_cbranch_scc1 L_sdone")
            else: A("s_cbranch_scc0 L_loop")
    if dyn: A("s_branch L_loop")
    A.label("L_sdone")
    xgroup_reduce("v_add_f32", vl, vt0)
    A(f"v_and_b32 v{vt1}, 7, v{vN}"); A(f"v_lshl_add_u32 v{vt1}, v{vG}, 5, v{vt1}"); A(f"v_lshlrev_b32 v{vt1}, 2, v{vt1}")
    A(f"s_lshl_b32 {sT0}, {sWAVE}, 9"); A(f"v_add_u32 v{vt1}, {sT0}, v{vt1}")
    A(f"s_lshl_b32 {sT0}, {sWAVE}, 3"); A(f"v_mov_b32 v{vt2}, {sT0}")
    A("s_nop 3")
    for r in range(4): A(f"ds_write_b32 v{vt1}, v{vO+r} offset:{L_OPART + r*32}")
    A(f"ds_write_b64 v{vt2}, {vr(vm,2)} offset:{L_ML}")
    A("s_waitcnt lgkmcnt(0)")
    stamp(2)
    if noB:
        A("s_barrier"); A("s_endpgm")
    else:
        A(f"s_cmp_eq_u32 {sWAVE}, 0"); A("s_cbranch_scc1 L_btail")
        A("s_barrier"); A("s_endpgm")
        A.label("L_btail")
        phase[0] = "woB"
        A("s_setprio 3")
        srd(SOUT, 52, 2048)
        A(f"s_lshr_b32 s93, {sWG}, 3"); A(f"s_and_b32 s94, {sWG}, 7")
        wo_issue(50, "s93", "s94")
        A("s_barrier")
        phase[0] = "woA"
        A(f"v_mov_b32 v{vt1}, 0")
        A(f"ds_read_b32 v{vt0}, v{vt1} offset:{L_EP}")
        A("s_waitcnt lgkmcnt(0)")
        A(f"v_readfirstlane_b32 {sE}, v{vt0}")
        A("s_nop 3")
        combine_directB(32, WS_PB, WS_MLB, "s93", "s94")
        stamp(5)
        project(WS_YB, "s93", "s94")
        stamp(6)
        stage3(WS_YB, 1024, 8)
        stamp(7)
        A("s_endpgm")
        phase[0] = "main"

    A.label("L_service")
    if sprio: A(f"s_setprio {sprio}")
    A(f"v_mov_b32 v{vt0}, {D*NSW}"); A(f"v_mov_b32 v{vt1}, 0")
    A(f"ds_write_b32 v{vt1}, v{vt0} offset:{L_CNT}")
    srd(SDBG, 54, 256); srd(SOUT, 52, 2048)
    srd(SK, 44, 0x4000000); srd(SV, 46, 0x4000000)
    A(f"s_lshl_b32 {sT1}, {sWAVE}, 6"); A(f"s_lshl_b32 {sT2}, {sH}, 8"); A(f"s_lshl_b32 {sT3}, {sWAVE}, 7")
    proj_issue(sT1, sT2, sT3)
    sBB, sKC = "s97", "s98"
    A(f"s_lshr_b32 {sT0}, {sWG}, 5"); A(f"s_lshl_b32 {sBB}, {sT0}, 23"); A(f"s_add_u32 {sBB}, {sBB}, {28672*256}")
    A(f"s_and_b32 {sKC}, {sWG}, 31")
    def boff(tl):
        if bperm == 0:
            A(f"s_lshl_b32 {sKOFF}, {sKC}, 15"); A(f"s_add_u32 {sKOFF}, {sKOFF}, {tl*4096}")
        elif bperm == 1:
            A(f"s_add_u32 {sKOFF}, {sKC}, {tl}"); A(f"s_and_b32 {sKOFF}, {sKOFF}, 7"); A(f"s_lshl_b32 {sKOFF}, {sKOFF}, 5")
            A(f"s_add_u32 {sKOFF}, {sKOFF}, {sKC}"); A(f"s_lshl_b32 {sKOFF}, {sKOFF}, 12")
        elif bperm == 2:
            A(f"s_add_u32 {sKOFF}, {sKC}, {tl}"); A(f"s_and_b32 {sKOFF}, {sKOFF}, 7"); A(f"s_lshl_b32 {sT0}, {sKC}, 3")
            A(f"s_add_u32 {sKOFF}, {sKOFF}, {sT0}"); A(f"s_lshl_b32 {sKOFF}, {sKOFF}, 12")
        A(f"s_add_u32 {sKOFF}, {sKOFF}, {sBB}")
    def issue_btile(slot):
        boff(slot); issue_k(slot, sKOFF); issue_v(slot, sKOFF)
    phase[0] = "Bkv"
    if not noB:
        for s in range(4): issue_btile(s)
    phase[0] = "main"
    A("s_waitcnt vmcnt(0)" if (noB or "Bkv" in skip) else "s_waitcnt vmcnt(32)")
    proj_compute(vS)
    qpart_write()
    if noB:
        if probe:
            P = probe
            A(f"v_lshlrev_b32 v{vt1}, 4, v{vLANE}")
            srdx = SWS if P["buf"] == "ws" else SK
            A(f"s_mov_b32 s18, 0x40000000")
            A(f"s_and_b32 {sT1}, {sWG}, {P['mask']}"); A(f"s_cmp_lg_u32 {sT1}, 0"); A("s_cbranch_scc1 L_noprobe")
            A(f"s_mul_i32 {sT0}, {sWG}, {P['perwg']}"); A(f"s_add_u32 {sT0}, {sT0}, {P['base']}")
            for r in range(P["rounds"]):
                for z in range(P.get("sl", 3)): A("s_sleep 127")
                if r == 1: stamp(14)
                A(f"s_mov_b32 {sT1}, {sT0}")
                for k in range(P["nload"]):
                    if k % 4 == 0 and k: A(f"s_add_u32 {sT1}, {sT1}, 4096")
                    if P["kind"] == "ld":
                        A(f"buffer_load_dwordx4 v[{64+4*k}:{67+4*k}], v{vt1}, {srdx}, {sT1} offen offset:{(k%4)*1024} {P['flags']}")
                    else:
                        A(f"buffer_store_dwordx4 v[64:67], v{vt1}, {srdx}, {sT1} offen offset:{(k%4)*1024} {P['flags']}")
                A("s_waitcnt vmcnt(0)")
                if r == 1: stamp(15)
                A(f"s_add_u32 {sT0}, {sT0}, {P['rstride']}")
            A.label("L_noprobe")
        A("s_barrier"); A("s_endpgm")
    srd(SW, 48, 0x400000); srd(SX, 42, 1024)
    A(f"s_and_b32 {sT1}, {sWG}, 7"); A(f"s_lshl_b32 {sT3}, {sT1}, 7"); A(f"s_lshl_b32 {sT1}, {sT1}, 6")
    A(f"s_lshr_b32 {sT2}, {sWG}, 3"); A(f"s_lshl_b32 {sT2}, {sT2}, 8")
    phase[0] = "wqB"
    proj_issue(sT1, sT2, sT3)
    phase[0] = "Bkv2"
    A(f"v_mov_b32 v{vt1}, 0")
    A(f"s_cmp_lg_u32 {sWG}, 0"); A("s_cbranch_scc1 L_ep_poll")
    A(f"buffer_load_dword v{vt0}, v{vt1}, {SWS}, 0 offen sc1")
    A(f"buffer_load_dword v{vt2}, v{vt1}, {SDBG}, 0 offen sc1")
    A("s_waitcnt vmcnt(0)")
    A(f"v_readfirstlane_b32 {sT0}, v{vt0}")
    A(f"v_readfirstlane_b32 {sE}, v{vt2}")
    A("s_nop 3")
    A(f"s_cmp_lg_u32 {sE}, 0"); A("s_cbranch_scc1 L_ep_done")
    A(f"s_mul_i32 {sE}, {sT0}, 0x9E3779B1"); A(f"s_add_u32 {sE}, {sE}, 0x7F4A7C15")
    A(f"s_xor_b32 {sT1}, {sE}, 0x55555555")
    A(f"s_cmp_eq_u32 {sE}, {sT0}"); A(f"s_cselect_b32 {sE}, {sT1}, {sE}")
    A(f"s_cmp_eq_u32 {sT0}, 1"); A(f"s_cselect_b32 {sT1}, 2, 1")
    A(f"s_cmp_eq_u32 {sE}, 0"); A(f"s_cselect_b32 {sE}, {sT1}, {sE}")
    A(f"v_mov_b32 v{vt0}, {sE}")
    A("s_mov_b64 exec, 1")
    A(f"buffer_store_dword v{vt0}, v{vt1}, {SDBG}, 0 offen sc1")
    A(f"buffer_store_dword v{vt0}, v{vt1}, {SWS}, 0 offen sc1")
    A("s_mov_b64 exec, -1")
    A("s_branch L_ep_done")
    A.label("L_ep_poll")
    A(f"s_mov_b32 {sTO}, 0x200000")
    A.label("L_ep_loop")
    A(f"buffer_load_dword v{vt0}, v{vt1}, {SDBG}, 0 offen sc1")
    A("s_waitcnt vmcnt(0)")
    A(f"v_readfirstlane_b32 {sE}, v{vt0}")
    A("s_nop 3")
    A(f"s_cmp_lg_u32 {sE}, 0"); A("s_cbranch_scc1 L_ep_done")
    if nopoll: A("s_branch L_ep_done")
    A(f"s_sleep {sleep}")
    A(f"s_sub_u32 {sTO}, {sTO}, 1"); A(f"s_cmp_lg_u32 {sTO}, 0"); A("s_cbranch_scc1 L_ep_loop")
    A.label("L_ep_done")
    A("s_waitcnt vmcnt(0)")
    proj_compute(vS)
    vPOS = vt5
    A(f"v_lshlrev_b32 v{vPOS}, 4, v{vLANE}")
    A(f"s_lshl_b32 {sT0}, {sWG}, 10"); A(f"s_add_u32 {sT0}, {sT0}, {WS_QB}")
    A("s_nop 7")
    publish_half(vS, vPOS, sT0)
    stamp(3)
    if stopat == 3:
        A("s_waitcnt vmcnt(0)"); A("s_barrier"); A("s_endpgm")
    vLO16 = vt4; vLO8 = vt5
    A(f"v_lshlrev_b32 v{vLO16}, 4, v{vLANE}"); A(f"v_lshlrev_b32 v{vLO8}, 3, v{vLANE}")
    sCOMB = "s96"
    A(f"s_bfe_u32 {sT0}, {sWG}, 0x30003"); A(f"s_and_b32 {sT1}, {sWG}, 7"); A(f"s_cmp_eq_u32 {sT0}, {sT1}"); A(f"s_cselect_b32 {sCOMB}, 1, 0")
    A("s_cbranch_scc0 L_noqcomb")
    lab = poll_begin()
    A(f"s_lshr_b32 {sT0}, {sWG}, 3"); A(f"s_lshl_b32 {sT0}, {sT0}, 13"); A(f"s_add_u32 {sT0}, {sT0}, {WS_QB}")
    for k in range(8):
        if k % 4 == 0 and k: A(f"s_add_u32 {sT0}, {sT0}, 4096")
        A(f"buffer_load_dwordx4 {vr(WQ+4*k,4)}, v{vLO16}, {SWS}, {sT0} offen offset:{(k%4)*1024} sc1")
    poll_end(lab, [WQ + 4 * k + o for k in range(8) for o in (1, 3)])
    for k in range(1, 8):
        A(f"v_add_f32 v{WQ}, v{WQ}, v{WQ+4*k}"); A(f"v_add_f32 v{WQ+2}, v{WQ+2}, v{WQ+4*k+2}")
    A(f"v_cvt_pk_bf16_f32 v{vB0}, v{WQ}, v{WQ+2}"); A(f"v_mov_b32 v{vB0+1}, {sE}")
    A(f"s_lshr_b32 {sT0}, {sWG}, 3"); A(f"s_lshl_b32 {sT0}, {sT0}, 9"); A(f"s_add_u32 {sT0}, {sT0}, {WS_QBF}")
    A(f"buffer_store_dwordx2 {vr(vB0,2)}, v{vLO8}, {SWS}, {sT0} offen sc1")
    A.label("L_noqcomb")
    lab = poll_begin()
    A(f"s_lshr_b32 {sT0}, {sWG}, 5"); A(f"s_lshl_b32 {sT0}, {sT0}, 11"); A(f"s_add_u32 {sT0}, {sT0}, {WS_QBF}")
    for hh in range(4):
        A(f"buffer_load_dwordx2 {vr(vQ+2*hh,2)}, v{vLO8}, {SWS}, {sT0} offen offset:{hh*512} sc1")
    poll_end(lab, [vQ + 2 * hh + 1 for hh in range(4)])
    A(f"v_lshlrev_b32 v{vt2}, 5, v{vG}")
    A(f"v_lshrrev_b32 v{vt3}, 3, v{vN}"); A(f"v_lshl_add_u32 v{vt2}, v{vt3}, 4, v{vt2}")
    A(f"v_and_b32 v{vt3}, 7, v{vN}"); A(f"v_add_u32 v{vt2}, v{vt2}, v{vt3}")
    A(f"v_lshlrev_b32 v{vt2}, 1, v{vt2}")
    for hh in range(4):
        A(f"ds_write_b16 v{vt2}, v{vQ+2*hh} offset:{L_QBB + hh*256}")
        A(f"ds_write_b16_d16_hi v{vt2}, v{vQ+2*hh} offset:{L_QBB + hh*256 + 16}")
    A("s_waitcnt lgkmcnt(0)")
    QBp = [vQ, WQ]
    stO = [vO, WQ + 16]; stS = [vS, WQ + 20]; stP = [vP, WQ + 24]; stm = [vm, WQ + 28]; stl = [vl, WQ + 29]
    A(f"v_lshrrev_b32 v{vt3}, 3, v{vN}"); A(f"v_lshlrev_b32 v{vt3}, 8, v{vt3}"); A(f"v_lshl_add_u32 v{vt3}, v{vG}, 4, v{vt3}")
    for pp in range(2):
        for i in range(4): A(f"ds_read_b128 {vr(QBp[pp]+4*i,4)}, v{vt3} offset:{L_QBB + pp*512 + i*64}")
        A(f"v_mov_b32 v{stm[pp]}, 0xff800000"); A(f"v_mov_b32 v{stl[pp]}, 0")
        for r in range(4): A(f"v_mov_b32 v{stO[pp]+r}, 0")
    A("s_waitcnt lgkmcnt(0)")
    stamp(4)
    if stopat == 4:
        A("s_waitcnt vmcnt(0)"); A("s_barrier"); A("s_endpgm")
    for tl in range(8):
        s = tl % 4
        if tl >= 4:
            A(f"s_waitcnt vmcnt({(7-tl)*8 + 4})")
        for pp in range(2):
            for i in range(4): mfma(stS[pp], kreg(s, i), QBp[pp] + 4 * i, None if i == 0 else stS[pp])
        if tl < 4:
            boff(tl + 4); issue_k(s, sKOFF)
        A("s_nop 7")
        for pp in range(2):
            softmax_update(stS[pp], stP[pp], stm[pp], stl[pp], stO[pp], vt0, vt1, vt2)
        if tl >= 4:
            A(f"s_waitcnt vmcnt({(7-tl)*8})")
        for pp in range(2):
            pv(stO[pp], stP[pp], lambda t: vreg(s, t))
        if tl < 4:
            issue_v(s, sKOFF)
    phase[0] = "woA"
    wo_issue(40, sH, sS)
    A(f"v_mov_b32 v{vt0}, {sE}"); A(f"v_mov_b32 v{vt1}, 0")
    A(f"ds_write_b32 v{vt1}, v{vt0} offset:{L_EP}")
    A("s_waitcnt lgkmcnt(0)")
    A("s_barrier")
    stamp(8)
    phase[0] = "woA"
    A(f"v_lshlrev_b32 v{vt1}, 4, v{vLANE}")
    A(f"v_lshrrev_b32 v{vt2}, 3, v{vN}")
    A(f"v_lshlrev_b32 v{vt3}, 9, v{vt2}")
    A(f"s_lshr_b32 {sT0}, {sWG}, 5"); A(f"s_lshl_b32 {sT0}, {sT0}, 17")
    A(f"s_and_b32 {sT1}, {sWG}, 31"); A(f"s_lshl_b32 {sT2}, {sT1}, 11"); A(f"s_add_u32 {sT0}, {sT0}, {sT2}")
    A(f"s_add_u32 {sT0}, {sT0}, {WS_PB}")
    A(f"s_lshr_b32 {sT2}, {sWG}, 5"); A(f"s_lshl_b32 {sT2}, {sT2}, 11"); A(f"s_lshl_b32 {sT1}, {sT1}, 4"); A(f"s_add_u32 {sT2}, {sT2}, {sT1}")
    A(f"s_add_u32 {sT2}, {sT2}, {WS_MLB}")
    A("s_nop 7")
    for pp in range(2):
        xgroup_reduce("v_add_f32", stl[pp], vt0)
        for hf in range(2):
            A(f"v_mov_b32 v{vB0}, v{stO[pp]+2*hf}"); A(f"v_mov_b32 v{vB0+1}, {sE}")
            A(f"v_mov_b32 v{vB0+2}, v{stO[pp]+2*hf+1}"); A(f"v_mov_b32 v{vB0+3}, {sE}")
            A(f"buffer_store_dwordx4 {vr(vB0,4)}, v{vt1}, {SWS}, {sT0} offen offset:{hf*1024} sc1")
            A("s_nop 1")
        A(f"v_mov_b32 v{vB1}, v{stm[pp]}"); A(f"v_mov_b32 v{vB1+1}, {sE}"); A(f"v_mov_b32 v{vB1+2}, v{stl[pp]}"); A(f"v_mov_b32 v{vB1+3}, {sE}")
        pass
        A("s_mov_b64 exec, 0x101")
        A(f"buffer_store_dwordx4 {vr(vB1,4)}, v{vt3}, {SWS}, {sT2} offen sc1")
        A("s_mov_b64 exec, -1")
        phase[0] = "woA"
        A("s_nop 1")
        if pp == 0:
            A(f"s_add_u32 {sT0}, {sT0}, 0x10000"); A(f"s_add_u32 {sT2}, {sT2}, 1024")
    A(f"v_lshlrev_b32 v{vt1}, 3, v{vLANE}"); A(f"v_mov_b32 v{vt2}, 0")
    MLW = PO + 16
    for w in range(NSW):
        A(f"ds_read_b64 {vr(PO+2*w,2)}, v{vt1} offset:{L_OPART + w*512}")
        A(f"ds_read_b64 {vr(MLW+2*w,2)}, v{vt2} offset:{L_ML + w*8}")
    A("s_waitcnt lgkmcnt(0)")
    A(f"v_mov_b32 v{vt0}, v{MLW}")
    for w in range(1, NSW): A(f"v_max_f32 v{vt0}, v{vt0}, v{MLW+2*w}")
    for w in range(NSW):
        A(f"v_sub_f32 v{MLW+2*w}, v{MLW+2*w}, v{vt0}"); A(f"v_mul_f32 v{MLW+2*w}, {sC}, v{MLW+2*w}"); A(f"v_exp_f32 v{MLW+2*w}, v{MLW+2*w}")
    A("s_nop 0")
    A(f"v_mul_f32 v{vB0}, v{PO}, v{MLW}"); A(f"v_mul_f32 v{vB0+2}, v{PO+1}, v{MLW}"); A(f"v_mul_f32 v{vB1+2}, v{MLW+1}, v{MLW}")
    for w in range(1, NSW):
        A(f"v_fma_f32 v{vB0}, v{PO+2*w}, v{MLW+2*w}, v{vB0}"); A(f"v_fma_f32 v{vB0+2}, v{PO+2*w+1}, v{MLW+2*w}, v{vB0+2}")
        A(f"v_fma_f32 v{vB1+2}, v{MLW+2*w+1}, v{MLW+2*w}, v{vB1+2}")
    A(f"v_mov_b32 v{vB0+1}, {sE}"); A(f"v_mov_b32 v{vB0+3}, {sE}")
    A(f"v_mov_b32 v{vB1}, v{vt0}"); A(f"v_mov_b32 v{vB1+1}, {sE}"); A(f"v_mov_b32 v{vB1+3}, {sE}")
    A(f"v_lshlrev_b32 v{vt1}, 4, v{vLANE}")
    A(f"s_lshl_b32 {sT0}, {sH}, 3"); A(f"s_add_u32 {sT0}, {sT0}, {sS}"); A(f"s_lshl_b32 {sT1}, {sT0}, 4"); A(f"s_lshl_b32 {sT0}, {sT0}, 10")
    A(f"s_add_u32 {sT0}, {sT0}, {WS_PA}"); A(f"s_add_u32 {sT1}, {sT1}, {WS_MLA}")
    A(f"buffer_store_dwordx4 {vr(vB0,4)}, v{vt1}, {SWS}, {sT0} offen sc1")
    A("s_mov_b64 exec, 1")
    A(f"buffer_store_dwordx4 {vr(vB1,4)}, v{vt2}, {SWS}, {sT1} offen sc1")
    A("s_mov_b64 exec, -1")
    A("s_nop 1")
    combine_direct(8, WS_PA, WS_MLA, sH, sS)
    project(WS_YA, sH, sS)
    stamp(9)
    stage3(WS_YA, 0, 0)
    stamp(10)
    A.label("L_end")
    A("s_endpgm")

    out = HEADER + f"; @launch grid=(256,1,1) block=({(NSW+1)*64},1,1) lds={LDS_SIZE}\n"
    out += '.amdgcn_target "amdgcn-amd-amdhsa--gfx950"\n.text\n' + f".globl {KNAME}\n.p2align 8\n.type {KNAME},@function\n{KNAME}:\n"
    out += "\n".join(A.L) + "\n"
    nv = 256
    out += f""".section .rodata,"a"
.p2align 6
.amdhsa_kernel {KNAME}
  .amdhsa_next_free_vgpr {nv}
  .amdhsa_next_free_sgpr 102
  .amdhsa_accum_offset {nv}
  .amdhsa_group_segment_fixed_size 0
  .amdhsa_kernarg_size 104
  .amdhsa_user_sgpr_count 2
  .amdhsa_user_sgpr_kernarg_segment_ptr 1
  .amdhsa_system_sgpr_workgroup_id_x 1
.end_amdhsa_kernel
"""
    return out

if __name__ == "__main__":
    cfg = json.loads(sys.argv[2]) if len(sys.argv) > 2 else {}
    open(sys.argv[1], "w").write(gen(**cfg))
```

```python
import sys, json, math, struct
from gen import HEADER, KNAME, G, vr, f2u, CSCALE

WS_EPOCH = 0
WS_CNT  = 0x1000
WS_QF   = 0x10000
WS_PB   = 0x200000
WS_MLB  = 0x300000
WS_PA   = 0x340000
WS_MLA  = 0x380000
WS_YB   = 0x400000
WS_YA   = 0x480000
WS_TS   = 0x800000
WS_SIZE = 0x1000000

L_QPART = 0
L_QA    = 4096
L_QB    = 4352
L_OPART = 6144
L_ML    = 10240
L_CNT   = 10304
L_EP    = 10312
LDS_SIZE = 12288

def gen(ts=False, kflags="nt", sleep=2, tsleep=1, bsleep=1, hmap=0, SP=120, noB=False, nodyn=False, qprio=True, late_b=True, NSW=4, D=6, ppre=0, bmode=1, tepoch=True, TMO=0x8000):
    A = G()
    NPR = D // 2
    NQW = 8 if NSW == 7 else 4
    QL = 64 // NQW
    RP = 8 * (128 - SP)
    phase = ["main"]
    sreg = [54, 55]
    sWG, sWAVE = "s2", "s3"
    SK, SV, SW, SWS, SX, SDBG, SOUT = "s[4:7]", "s[8:11]", "s[12:15]", "s[16:19]", "s[20:23]", "s[24:27]", "s[28:31]"
    sC = "s58"; sH, sS = "s60", "s61"; sKOFF = "s62"; sSTOP = "s63"; sCOFF = "s64"
    sT0, sT1, sT2, sT3 = "s65", "s66", "s67", "s68"
    sE = "s69"; sSELLO, sSELHI = "s70", "s71"; sHALF = "s[72:73]"; sTO = "s74"; sNREC = "s75"
    sRL = 76
    sHB, sPC, sBASE, sBB, sKC = "s93", "s94", "s95", "s97", "s98"
    vLANE, vN, vG, vKO, vVO = 0, 1, 2, 3, 4
    vM = 5; vT = 9
    vQ = 12; vO = 28; vS = 32; vP = 36; vB0 = 40; vB1 = 44; vm = 48; vl = 49
    vt0, vt1, vt2, vt3, vt4, vt5 = 50, 51, 52, 53, 54, 55
    vX = 56; vML = 60
    RING = 64
    def kreg(slot, i): return RING + slot * 32 + i * 4
    def vreg(slot, i): return RING + slot * 32 + 16 + i * 4
    WQ = 192
    WO = RING; PO = RING + 64

    def srd(dst, ptr_lo, nbytes):
        b = int(dst[2:].split(":")[0])
        A(f"s_mov_b32 s{b}, s{ptr_lo}"); A(f"s_mov_b32 s{b+1}, s{ptr_lo+1}")
        A(f"s_mov_b32 s{b+2}, {hex(nbytes)}"); A(f"s_mov_b32 s{b+3}, 0x00020000")
    def stamp(idx):
        if not ts: return
        A("s_memrealtime s[90:91]")
        A("s_lshl_b32 s92, s2, 3"); A("s_add_u32 s92, s92, s3"); A("s_lshl_b32 s92, s92, 6")
        A(f"s_add_u32 s92, s92, {WS_TS + idx*4}")
        A("s_waitcnt lgkmcnt(0)")
        A(f"v_mov_b32 v{sreg[0]}, s90"); A(f"v_mov_b32 v{sreg[1]}, 0")
        A(f"buffer_store_dword v{sreg[0]}, v{sreg[1]}, {SWS}, s92 offen")
    def xgroup_reduce(op, v, tmp):
        A(f"v_mov_b32 v{tmp}, v{v}"); A("s_nop 1")
        A(f"v_permlane16_swap_b32 v{v}, v{tmp}")
        A(f"{op} v{v}, v{v}, v{tmp}")
        A(f"v_mov_b32 v{tmp}, v{v}"); A("s_nop 1")
        A(f"v_permlane32_swap_b32 v{v}, v{tmp}")
        A(f"{op} v{v}, v{v}, v{tmp}")
    def mfma(d, a, b, c):
        cs = "0" if c is None else vr(c, 4)
        A(f"v_mfma_f32_16x16x32_bf16 {vr(d,4)}, {vr(a,4)}, {vr(b,4)}, {cs}")
    def softmax_update(S, P, m, l, O, t0, t1, t2):
        A(f"v_max_f32 v{t0}, v{S}, v{S+1}")
        A(f"v_max3_f32 v{t0}, v{S+2}, v{S+3}, v{t0}")
        A(f"v_mov_b32 v{t1}, v{t0}"); A("s_nop 1")
        A(f"v_permlane16_swap_b32 v{t0}, v{t1}")
        A(f"v_max_f32 v{t0}, v{t0}, v{t1}")
        A(f"v_mov_b32 v{t1}, v{t0}"); A("s_nop 1")
        A(f"v_permlane32_swap_b32 v{t0}, v{t1}")
        A(f"v_max3_f32 v{t0}, v{t0}, v{t1}, v{m}")
        A(f"v_mul_f32 v{t1}, {sC}, v{t0}")
        A(f"v_fma_f32 v{t2}, v{m}, {sC}, -v{t1}")
        for r in range(4): A(f"v_fma_f32 v{P+r}, v{S+r}, {sC}, -v{t1}")
        A(f"v_exp_f32 v{t2}, v{t2}")
        for r in range(4): A(f"v_exp_f32 v{P+r}, v{P+r}")
        A(f"v_mov_b32 v{m}, v{t0}")
        A(f"v_fma_f32 v{l}, v{l}, v{t2}, v{P}")
        A(f"v_add_f32 v{t1}, v{P+1}, v{P+2}")
        for r in range(4): A(f"v_mul_f32 v{O+r}, v{O+r}, v{t2}")
        A(f"v_add_f32 v{l}, v{l}, v{P+3}")
        A(f"v_add_f32 v{l}, v{l}, v{t1}")
    def pv(O, P, vbase_fn):
        for t in range(4):
            B = vB0 if t % 2 == 0 else vB1
            A(f"v_cvt_pk_bf16_f32 v{vt0}, v{P+t}, v{P+t}")
            for r in range(4): A(f"v_and_b32 v{B+r}, v{vt0}, v{vM+r}")
            A("s_nop 1")
            mfma(O, vbase_fn(t), B, O)
    def issue_k(slot, soff):
        for i in range(4):
            A(f"buffer_load_dwordx4 {vr(kreg(slot,i),4)}, v{vKO}, {SK}, {soff} offen offset:{i*64} {kflags}")
    def issue_v(slot, soff):
        for i in range(4):
            A(f"buffer_load_dwordx4 {vr(vreg(slot,i),4)}, v{vVO}, {SV}, {soff} offen offset:{i*256} {kflags}")
    pollidx = [0]
    def poll_begin():
        lab = A.newlabel("L_poll")
        A(f"s_mov_b32 {sTO}, {TMO}")
        A.label(lab)
        return lab
    def poll_end(lab, tagregs, sl):
        done = A.newlabel("L_pdone")
        A("s_waitcnt vmcnt(0)")
        A(f"v_xor_b32 v{vt0}, {sE}, v{tagregs[0]}")
        for tr in tagregs[1:]:
            A(f"v_xor_b32 v{vt1}, {sE}, v{tr}")
            A(f"v_or_b32 v{vt0}, v{vt0}, v{vt1}")
        A(f"v_cmp_ne_u32 vcc, 0, v{vt0}")
        A("s_nop 4")
        A(f"s_cbranch_vccz {done}")
        while sl > 0:
            A(f"s_sleep {min(sl,127)}"); sl -= 127
        A(f"s_sub_u32 {sTO}, {sTO}, 1")
        A(f"s_cmp_lg_u32 {sTO}, 0")
        A(f"s_cbranch_scc1 {lab}")
        A.label(done)
        if ts:
            A(f"s_sub_u32 s92, {TMO}, {sTO}"); A(f"v_mov_b32 v254, s92"); A(f"v_mov_b32 v255, 0")
            A(f"s_lshl_b32 s92, s2, 6"); A(f"s_add_u32 s92, s92, {WS_TS + 0x200000 + pollidx[0]*4}")
            A(f"buffer_store_dword v254, v255, {SWS}, s92 offen")
        pollidx[0] += 1
    def publish_half(Dreg, voff, soff):
        A(f"v_cndmask_b32 v{vB0}, v{Dreg}, v{Dreg+2}, {sHALF}")
        A(f"v_mov_b32 v{vB0+1}, {sE}")
        A(f"v_cndmask_b32 v{vB0+2}, v{Dreg+1}, v{Dreg+3}, {sHALF}")
        A(f"v_mov_b32 v{vB0+3}, {sE}")
        A(f"buffer_store_dwordx4 {vr(vB0,4)}, v{voff}, {SWS}, {soff} offen sc1")
    def wo_issue(ptr_lo, head_s, piece_s):
        srd(SW, ptr_lo, 0x400000)
        A(f"v_lshlrev_b32 v{vt1}, 14, v{vG}")
        A(f"v_lshl_add_u32 v{vt1}, v{vN}, 4, v{vt1}")
        A(f"s_lshl_b32 {sT0}, {head_s}, 17")
        A(f"s_lshr_b32 {sT1}, {piece_s}, 2"); A(f"s_lshl_b32 {sT1}, {sT1}, 16"); A(f"s_add_u32 {sT0}, {sT0}, {sT1}")
        A(f"s_and_b32 {sT1}, {piece_s}, 3"); A(f"s_lshl_b32 {sT1}, {sT1}, 8"); A(f"s_add_u32 {sT0}, {sT0}, {sT1}")
        for a in range(4):
            if a: A(f"s_add_u32 {sT0}, {sT0}, 4096")
            for b in range(4):
                t = a * 4 + b
                A(f"buffer_load_dwordx4 {vr(WO+4*t,4)}, v{vt1}, {SW}, {sT0} offen offset:{b*1024} {kflags}")
    def weights(NP):
        A(f"v_mov_b32 v{vt0}, v{vML}")
        for p0 in range(0, NP, 8):
            for p in range(8): A(f"v_readlane_b32 s{sRL+p}, v{vML}, {p0+p}")
            A("s_nop 1")
            for p in range(8): A(f"v_max_f32 v{vt0}, s{sRL+p}, v{vt0}")
        A(f"v_sub_f32 v{vt1}, v{vML}, v{vt0}"); A(f"v_mul_f32 v{vt1}, {sC}, v{vt1}"); A(f"v_exp_f32 v{vt1}, v{vt1}")
        A("s_nop 0")
        A(f"v_mul_f32 v{vt2}, v{vt1}, v{vML+2}")
        A(f"v_mov_b32 v{vt4}, 0"); A("s_nop 0")
        for p0 in range(0, NP, 8):
            for p in range(8): A(f"v_readlane_b32 s{sRL+p}, v{vt2}, {p0+p}")
            A("s_nop 1")
            for p in range(8): A(f"v_add_f32 v{vt4}, s{sRL+p}, v{vt4}")
        A(f"v_rcp_f32 v{vt4}, v{vt4}")
    def wsum(NP):
        A(f"v_mov_b32 v{vt3}, 0")
        for p0 in range(0, NP, 8):
            for p in range(8): A(f"v_readlane_b32 s{sRL+p}, v{vt1}, {p0+p}")
            A("s_nop 1")
            for p in range(8): A(f"v_fma_f32 v{vt3}, v{PO+2*(p0+p)}, s{sRL+p}, v{vt3}")
        A(f"v_mul_f32 v{vt3}, v{vt3}, v{vt4}")
        A(f"v_cvt_pk_bf16_f32 v{vt3}, v{vt3}, v{vt3}")
    def combine_A(head_s, piece_s):
        NP = 8
        A(f"v_and_b32 v{vt2}, {NP-1}, v{vLANE}"); A(f"v_lshlrev_b32 v{vt2}, 4, v{vt2}")
        A(f"v_lshlrev_b32 v{vt3}, 3, v{vLANE}")
        A(f"s_lshl_b32 {sT2}, {head_s}, 7"); A(f"s_add_u32 {sT2}, {sT2}, {WS_MLA}")
        A(f"s_lshl_b32 {sT0}, {head_s}, 13"); A(f"s_lshr_b32 {sT1}, {piece_s}, 2"); A(f"s_lshl_b32 {sT1}, {sT1}, 9")
        A(f"s_add_u32 {sT0}, {sT0}, {sT1}"); A(f"s_add_u32 {sT0}, {sT0}, {WS_PA}"); A(f"s_add_u32 {sT1}, {sT0}, 4096")
        lab = poll_begin()
        A(f"buffer_load_dwordx4 {vr(vML,4)}, v{vt2}, {SWS}, {sT2} offen sc1")
        for p in range(NP):
            A(f"buffer_load_dwordx2 {vr(PO+2*p,2)}, v{vt3}, {SWS}, {sT0 if p < 4 else sT1} offen offset:{(p%4)*1024} sc1")
        poll_end(lab, [vML + 1, vML + 3] + [PO + 2 * p + 1 for p in range(NP)], tsleep)
        weights(NP); wsum(NP)
    def combine_B(head_s, piece_s, mlfirst=True):
        NP = 32
        A(f"v_and_b32 v{vt2}, {NP-1}, v{vLANE}"); A(f"v_lshlrev_b32 v{vt2}, 4, v{vt2}")
        A(f"v_and_b32 v{vt3}, 1, v{vG}"); A(f"v_lshlrev_b32 v{vt3}, 10, v{vt3}")
        A(f"v_lshrrev_b32 v{vt1}, 1, v{vG}"); A(f"v_lshl_add_u32 v{vt3}, v{vt1}, 8, v{vt3}")
        A(f"v_and_b32 v{vt1}, 7, v{vN}"); A(f"v_lshl_add_u32 v{vt3}, v{vt1}, 4, v{vt3}")
        A(f"v_lshrrev_b32 v{vt1}, 3, v{vN}"); A(f"v_lshl_add_u32 v{vt3}, v{vt1}, 3, v{vt3}")
        A(f"s_lshl_b32 {sT2}, {head_s}, 9"); A(f"s_add_u32 {sT2}, {sT2}, {WS_MLB}")
        lab = poll_begin()
        A(f"buffer_load_dwordx4 {vr(vML,4)}, v{vt2}, {SWS}, {sT2} offen sc1")
        if mlfirst:
            poll_end(lab, [vML + 1, vML + 3], bsleep)
            lab = poll_begin()
        A(f"s_lshr_b32 {sT0}, {head_s}, 1"); A(f"s_lshl_b32 {sT0}, {sT0}, 16"); A(f"s_add_u32 {sT0}, {sT0}, {WS_PB}")
        A(f"s_and_b32 {sT1}, {head_s}, 1"); A(f"s_lshl_b32 {sT1}, {sT1}, 7"); A(f"s_add_u32 {sT0}, {sT0}, {sT1}")
        A(f"s_lshr_b32 {sT1}, {piece_s}, 2"); A(f"s_lshl_b32 {sT1}, {sT1}, 9"); A(f"s_add_u32 {sT0}, {sT0}, {sT1}")
        for p in range(NP):
            if p % 2 == 0 and p: A(f"s_add_u32 {sT0}, {sT0}, 4096")
            A(f"buffer_load_dwordx2 {vr(PO+2*p,2)}, v{vt3}, {SWS}, {sT0} offen offset:{(p%2)*2048} sc1")
        poll_end(lab, ([] if mlfirst else [vML + 1, vML + 3]) + [PO + 2 * p + 1 for p in range(NP)], tsleep)
        weights(NP); wsum(NP)
    def project(ws_y, head_s, piece_s):
        A("s_nop 1")
        for t in range(16):
            B = vB0 if t % 2 == 0 else vB1
            for r in range(4): A(f"v_and_b32_dpp v{B+r}, v{vt3}, v{vM+r} row_newbcast:{t} row_mask:0xf bank_mask:0xf")
            A("s_nop 1")
            mfma(vS, WO + 4 * t, B, None if t == 0 else vS)
        A(f"v_lshlrev_b32 v{vt1}, 4, v{vN}")
        A(f"v_lshl_add_u32 v{vt1}, v{vG}, 14, v{vt1}")
        A(f"s_and_b32 {sT0}, {piece_s}, 3"); A(f"s_lshl_b32 {sT0}, {sT0}, 16")
        A(f"s_lshl_b32 {sT1}, {head_s}, 1"); A(f"s_lshr_b32 {sT2}, {piece_s}, 2"); A(f"s_add_u32 {sT1}, {sT1}, {sT2}"); A(f"s_lshl_b32 {sT1}, {sT1}, 8")
        A(f"s_add_u32 {sT0}, {sT0}, {sT1}"); A(f"s_add_u32 {sT0}, {sT0}, {ws_y}")
        A("s_nop 1")
        publish_half(vS, vt1, sT0)
    def stage3(ws_y, outbyte, sel):
        skip = A.newlabel("L_noreduce")
        A(f"s_lshr_b32 {sT3}, {sWG}, 4"); A(f"s_and_b32 {sT0}, {sT3}, 7"); A(f"s_add_u32 {sT0}, {sT0}, {sel}")
        A(f"s_and_b32 {sT1}, {sWG}, 15"); A(f"s_cmp_lg_u32 {sT0}, {sT1}"); A(f"s_cbranch_scc1 {skip}")
        A(f"v_lshlrev_b32 v{vt4}, 4, v{vLANE}")
        lab = poll_begin()
        A(f"s_lshl_b32 {sT0}, {sT3}, 14"); A(f"s_add_u32 {sT0}, {sT0}, {ws_y}")
        for u in range(16):
            if u % 4 == 0 and u: A(f"s_add_u32 {sT0}, {sT0}, 4096")
            A(f"buffer_load_dwordx4 {vr(PO+4*u,4)}, v{vt4}, {SWS}, {sT0} offen offset:{(u%4)*1024} sc1")
        poll_end(lab, [PO + 4 * u + o for u in range(16) for o in (1, 3)], tsleep)
        for u in range(1, 16):
            A(f"v_add_f32 v{PO}, v{PO}, v{PO+4*u}"); A(f"v_add_f32 v{PO+2}, v{PO+2}, v{PO+4*u+2}")
        xgroup_reduce("v_add_f32", PO, vt0)
        xgroup_reduce("v_add_f32", PO + 2, vt0)
        A(f"v_cvt_pk_bf16_f32 v{vt0}, v{PO}, v{PO+2}")
        A(f"v_and_b32 v{vt1}, 7, v{vN}"); A(f"v_lshrrev_b32 v{vt2}, 3, v{vN}"); A(f"v_lshl_add_u32 v{vt1}, v{vt2}, 4, v{vt1}")
        A(f"v_lshlrev_b32 v{vt1}, 1, v{vt1}")
        A(f"s_lshl_b32 {sT0}, {sT3}, 6"); A(f"s_add_u32 {sT0}, {sT0}, {outbyte}")
        A("s_mov_b64 exec, 0xffff")
        A(f"buffer_store_short v{vt0}, v{vt1}, {SOUT}, {sT0} offen")
        A(f"buffer_store_short_d16_hi v{vt0}, v{vt1}, {SOUT}, {sT0} offen offset:16")
        A("s_mov_b64 exec, -1")
        A.label(skip)

    NBLK = QL // 8
    def qprod_issue():
        A(f"s_cmp_lt_u32 {sS}, 2")
        A("s_cselect_b32 s12, s38, s48"); A("s_cselect_b32 s13, s39, s49"); A("s_mov_b32 s14, 0x400000"); A("s_mov_b32 s15, 0x00020000")
        A("s_cselect_b32 s20, s32, s42"); A("s_cselect_b32 s21, s33, s43"); A("s_mov_b32 s22, 1024"); A("s_mov_b32 s23, 0x00020000")
        A(f"v_lshrrev_b32 v{vT}, 3, v{vN}"); A(f"v_lshl_add_u32 v{vT}, v{vG}, 1, v{vT}")
        A(f"v_lshlrev_b32 v{vT+1}, 4, v{vT}")
        A(f"v_lshlrev_b32 v{vT}, 16, v{vT}")
        A(f"v_and_b32 v{vT+2}, 7, v{vN}"); A(f"v_lshl_add_u32 v{vT}, v{vT+2}, 4, v{vT}")
        A(f"s_mul_i32 {sT1}, {sWAVE}, {128*NBLK}")
        for bk in range(NBLK):
            A(f"buffer_load_dwordx4 {vr(vX+4*bk,4)}, v{vT+1}, {SX}, {sT1} offen offset:{128*bk}")
        A(f"s_mul_i32 {sT0}, {sWAVE}, {NBLK << 19}"); A(f"s_lshl_b32 {sT1}, {sH}, 8"); A(f"s_add_u32 {sT0}, {sT0}, {sT1}")
        A(f"s_and_b32 {sT1}, {sS}, 1"); A(f"s_lshl_b32 {sT1}, {sT1}, 7"); A(f"s_add_u32 {sT0}, {sT0}, {sT1}")
        for bk in range(NBLK):
            for t in range(8):
                A(f"buffer_load_dwordx4 {vr(WQ+32*bk+4*t,4)}, v{vT}, {SW}, {sT0} offen {kflags}")
                if t < 7: A(f"s_add_u32 {sT0}, {sT0}, 8192")
            if bk < NBLK - 1: A(f"s_add_u32 {sT0}, {sT0}, {(64-7)*8192}")
    def qprod_compute():
        for bk in range(NBLK):
            for t in range(8):
                B = vB0 if t % 2 == 0 else vB1
                sel = sSELLO if t % 2 == 0 else sSELHI
                A(f"v_perm_b32 v{vt0}, v{vX+4*bk+t//2}, v{vX+4*bk+t//2}, {sel}")
                for r in range(4): A(f"v_and_b32 v{B+r}, v{vt0}, v{vM+r}")
                A("s_nop 1")
                mfma(vS, WQ + 32 * bk + 4 * t, B, None if (t == 0 and bk == 0) else vS)
        A(f"v_and_b32 v{vt1}, 7, v{vN}"); A(f"v_lshl_add_u32 v{vt1}, v{vG}, 5, v{vt1}"); A(f"v_lshlrev_b32 v{vt1}, 2, v{vt1}")
        A(f"s_lshl_b32 {sT0}, {sWAVE}, 9"); A(f"v_add_u32 v{vt1}, {sT0}, v{vt1}")
        A("s_mov_b32 exec_lo, 0x00ff00ff"); A("s_mov_b32 exec_hi, 0xff00ff00")
        A("s_nop 3")
        for r in range(4): A(f"ds_write_b32 v{vt1}, v{vS+r} offset:{L_QPART + r*32}")
        A("s_mov_b64 exec, -1")
        A("s_waitcnt lgkmcnt(0)")
        A("s_barrier")

    A(f"s_cmp_ge_u32 {sWG}, 256"); A("s_cbranch_scc1 L_end")
    A("s_load_dwordx16 s[32:47], s[0:1], 0")
    A("s_load_dwordx8 s[48:55], s[0:1], 64")
    A("s_load_dwordx2 s[56:57], s[0:1], 96")
    A(f"v_lshrrev_b32 v1, 6, v0"); A("v_and_b32 v0, 63, v0"); A("s_nop 0")
    A(f"v_readfirstlane_b32 {sWAVE}, v1")
    A(f"v_and_b32 v{vN}, 15, v0"); A(f"v_lshrrev_b32 v{vG}, 4, v0")
    A(f"v_lshlrev_b32 v{vKO}, 8, v{vN}"); A(f"v_lshl_add_u32 v{vKO}, v{vG}, 4, v{vKO}")
    A(f"v_lshlrev_b32 v{vVO}, 10, v{vG}"); A(f"v_lshl_add_u32 v{vVO}, v{vN}, 4, v{vVO}")
    if hmap == 0:
        A(f"s_and_b32 {sH}, {sWG}, 7"); A(f"s_lshl_b32 {sH}, {sH}, 2")
        A(f"s_bfe_u32 {sT0}, {sWG}, 0x20003"); A(f"s_add_u32 {sH}, {sH}, {sT0}")
        A(f"s_lshr_b32 {sS}, {sWG}, 5")
    elif hmap == 1:
        A(f"s_lshr_b32 {sH}, {sWG}, 3"); A(f"s_and_b32 {sS}, {sWG}, 7")
    elif hmap == 2:
        A(f"s_lshr_b32 {sH}, {sWG}, 3"); A(f"s_add_u32 {sS}, {sWG}, {sH}"); A(f"s_and_b32 {sS}, {sS}, 7")
    def masks():
        A(f"v_and_b32 v{vt0}, 1, v{vN}")
        A(f"v_mov_b32 v{vt1}, 0xffff")
        A(f"v_lshlrev_b32 v{vt0}, 4, v{vt0}")
        A(f"v_lshlrev_b32 v{vt1}, v{vt0}, v{vt1}")
        A(f"v_bfe_u32 v{vt0}, v{vN}, 1, 2")
        for r in range(4):
            A(f"v_cmp_eq_u32 vcc, {r}, v{vt0}"); A("s_nop 1")
            A(f"v_cndmask_b32 v{vM+r}, 0, v{vt1}, vcc")
        A(f"v_cmp_lt_u32 {sHALF}, 7, v{vN}")
        A(f"s_mov_b32 {sC}, {hex(f2u(CSCALE))}")
        A(f"s_mov_b32 {sSELLO}, 0x01000100"); A(f"s_mov_b32 {sSELHI}, 0x03020302")
    A("s_waitcnt lgkmcnt(0)")
    srd(SWS, 56, WS_SIZE)
    stamp(0)
    A(f"s_cmp_eq_u32 {sWAVE}, {NSW}"); A("s_cbranch_scc1 L_service")

    srd(SK, 34, 0x10000000); srd(SV, 36, 0x10000000)
    sVAL = 76
    vNEXT, vCA, vONE = vT + 2, vT + 1, vT
    vNX = [vB1 + 4 - 4 + 0] * 0 + [57, 58, 59][:NPR] if False else [61, 62, 63][:NPR]
    A(f"s_lshl_b32 {sBASE}, {sH}, 23")
    A(f"s_lshl_b32 {sT0}, {sS}, 7"); A(f"s_add_u32 {sT0}, {sT0}, {sWAVE}"); A(f"s_lshl_b32 {sKOFF}, {sT0}, 13"); A(f"s_add_u32 {sKOFF}, {sKOFF}, {sBASE}")
    def issue_pair(p):
        A(f"s_add_u32 {sT1}, {sKOFF}, 4096")
        issue_k(2 * p, sKOFF); issue_v(2 * p, sKOFF); issue_k(2 * p + 1, sT1); issue_v(2 * p + 1, sT1)
        A(f"s_add_u32 {sKOFF}, {sKOFF}, {NSW*8192}")
    A(f"s_cmp_ge_u32 {sS}, 4"); A("s_cbranch_scc1 L_s_noprod1")
    if qprio: A("s_setprio 2")
    qprod_issue()
    for p in range(ppre): issue_pair(p)
    masks()
    A(f"s_waitcnt vmcnt({16*ppre})")
    stamp(12)
    qprod_compute()
    if qprio: A("s_setprio 0")
    for p in range(ppre, NPR): issue_pair(p)
    A("s_branch L_s_join")
    A.label("L_s_noprod1")
    for p in range(NPR): issue_pair(p)
    masks()
    A.label("L_s_join")
    A(f"v_mov_b32 v{vm}, 0xff800000"); A(f"v_mov_b32 v{vl}, 0")
    for r in range(4): A(f"v_mov_b32 v{vO+r}, 0")
    for p in range(NPR):
        A(f"s_mov_b32 s{sVAL+p}, 1")
        A(f"s_add_u32 {sT0}, {sWAVE}, {0x80000000 + (NPR+p)*NSW}"); A(f"v_mov_b32 v{vNX[p]}, {sT0}")
    A(f"s_mov_b32 {sSTOP}, 0")
    A(f"s_lshl_b32 {sCOFF}, {sH}, 8"); A(f"s_add_u32 {sCOFF}, {sCOFF}, {WS_CNT}")
    A(f"s_mov_b32 {sNREC}, 0x10000000")
    A("s_barrier")
    A(f"v_lshlrev_b32 v{vt3}, 4, v{vG}")
    for i in range(4): A(f"ds_read_b128 {vr(vQ+4*i,4)}, v{vt3} offset:{L_QA + i*64}")
    A(f"v_mov_b32 v{vCA}, 0"); A(f"v_mov_b32 v{vONE}, 1")
    def grab():
        A("s_mov_b64 exec, 1")
        A(f"ds_add_rtn_u32 v{vNEXT}, v{vCA}, v{vONE} offset:{L_CNT}")
        A("s_mov_b64 exec, -1")
    A("s_waitcnt lgkmcnt(0)")
    stamp(1)
    grab()
    NW = 8 * D - 4
    A.label("L_loop")
    for p in range(NPR):
        a, b = 2 * p, 2 * p + 1
        A(f"s_cmp_eq_u32 s{sVAL+p}, 0"); A("s_cbranch_scc1 L_sdone")
        A(f"s_waitcnt vmcnt({NW})")
        for i in range(4): mfma(vS, kreg(a, i), vQ + 4 * i, None if i == 0 else vS)
        A("s_waitcnt lgkmcnt(0)")
        A(f"v_readfirstlane_b32 {sT0}, v{vNX[p]}")
        A(f"v_readfirstlane_b32 {sT1}, v{vNEXT}")
        grab()
        ldyn = A.newlabel("L_dyn"); ldec = A.newlabel("L_dec")
        A(f"s_cmp_lt_i32 {sT0}, 0"); A(f"s_cbranch_scc0 {ldyn}")
        A(f"s_and_b32 {sT2}, {sT0}, 0xffff"); A(f"s_lshl_b32 {sT3}, {sS}, 7"); A(f"s_add_u32 {sT2}, {sT2}, {sT3}")
        A(f"s_cmp_eq_u32 {sT2}, {sT2}")
        A(f"s_branch {ldec}")
        A.label(ldyn)
        A(f"s_and_b32 {sT2}, {sT0}, 7"); A(f"s_lshl_b32 {sT2}, {sT2}, 7"); A(f"s_lshr_b32 {sT3}, {sT0}, 3"); A(f"s_add_u32 {sT2}, {sT2}, {sT3}")
        A(f"s_add_u32 {sT2}, {sT2}, {SP}"); A(f"s_and_b32 {sT2}, {sT2}, 1023")
        A(f"s_cmp_lt_u32 {sT0}, {RP}")
        A(f"s_cselect_b32 {sSTOP}, {sSTOP}, 1")
        A.label(ldec)
        A(f"s_cselect_b32 s{sVAL+p}, 1, 0"); A(f"s_cselect_b32 s6, {sNREC}, 0"); A(f"s_cselect_b32 s10, {sNREC}, 0")
        A(f"s_lshl_b32 {sKOFF}, {sT2}, 13"); A(f"s_add_u32 {sKOFF}, {sKOFF}, {sBASE}")
        lst = A.newlabel("L_rst"); lrd = A.newlabel("L_rdone")
        A(f"s_cmp_lt_u32 {sT1}, {SP}"); A(f"s_cbranch_scc1 {lst}")
        A(f"v_mov_b32 v{vNX[p]}, 0x7fffffff")
        A(f"s_cmp_lg_u32 {sSTOP}, 0"); A(f"s_cbranch_scc1 {lrd}")
        A(f"v_mov_b32 v{vNX[p]}, 1")
        A("s_mov_b64 exec, 1")
        A(f"buffer_atomic_add v{vNX[p]}, v{vCA}, {SWS}, {sCOFF} offen sc0 sc1")
        A("s_mov_b64 exec, -1")
        A(f"s_branch {lrd}")
        A.label(lst)
        A(f"s_or_b32 {sT1}, {sT1}, 0x80000000"); A(f"v_mov_b32 v{vNX[p]}, {sT1}")
        if ts:
            lab = A.newlabel("L_nots")
            A(f"s_and_b32 s92, {sT1}, 7"); A("s_cmp_lg_u32 s92, 0"); A(f"s_cbranch_scc1 {lab}")
            A("s_memrealtime s[90:91]")
            A(f"s_lshl_b32 s92, s2, 7"); A(f"s_bfe_u32 s93, {sT1}, 0x80001"); A("s_add_u32 s92, s92, s93"); A(f"s_add_u32 s92, s92, {WS_TS + 0x100000}")
            A("s_waitcnt lgkmcnt(0)")
            A(f"v_mov_b32 v{vt3}, s90")
            A(f"buffer_store_dword v{vt3}, v{vCA}, {SWS}, s92 offen")
            A.label(lab)
        A.label(lrd)
        issue_k(a, sKOFF)
        softmax_update(vS, vP, vm, vl, vO, vt0, vt1, vt2)
        A(f"s_waitcnt vmcnt({NW})")
        pv(vO, vP, lambda t: vreg(a, t))
        issue_v(a, sKOFF)
        A(f"s_add_u32 {sKOFF}, {sKOFF}, 4096")
        A(f"s_waitcnt vmcnt({NW})")
        for i in range(4): mfma(vS, kreg(b, i), vQ + 4 * i, None if i == 0 else vS)
        issue_k(b, sKOFF)
        A("s_nop 3")
        softmax_update(vS, vP, vm, vl, vO, vt0, vt1, vt2)
        A(f"s_waitcnt vmcnt({NW})")
        pv(vO, vP, lambda t: vreg(b, t))
        issue_v(b, sKOFF)
    A("s_branch L_loop")
    A.label("L_sdone")
    xgroup_reduce("v_add_f32", vl, vt0)
    A(f"v_and_b32 v{vt1}, 7, v{vN}"); A(f"v_lshl_add_u32 v{vt1}, v{vG}, 5, v{vt1}"); A(f"v_lshlrev_b32 v{vt1}, 2, v{vt1}")
    A(f"s_lshl_b32 {sT0}, {sWAVE}, 9"); A(f"v_add_u32 v{vt1}, {sT0}, v{vt1}")
    A(f"s_lshl_b32 {sT0}, {sWAVE}, 3"); A(f"v_mov_b32 v{vt2}, {sT0}")
    A("s_nop 3")
    for r in range(4): A(f"ds_write_b32 v{vt1}, v{vO+r} offset:{L_OPART + r*32}")
    A(f"ds_write_b64 v{vt2}, {vr(vm,2)} offset:{L_ML}")
    A("s_waitcnt lgkmcnt(0)")
    stamp(2)
    if noB:
        A("s_barrier"); A("s_endpgm")
    else:
        if bmode == 3:
            A("s_barrier"); A("s_endpgm")
        else:
            A(f"s_cmp_eq_u32 {sWAVE}, 0"); A("s_cbranch_scc1 L_btail")
            A("s_barrier"); A("s_endpgm")
            A.label("L_btail")
            sreg[0], sreg[1] = 254, 255
            A("s_setprio 3")
            if bmode == 2: A("s_barrier")
            srd(SOUT, 52, 2048)
            A(f"s_lshr_b32 {sHB}, {sWG}, 3"); A(f"s_and_b32 {sPC}, {sWG}, 7")
            wo_issue(50, sHB, sPC)
            A(f"v_mov_b32 v{vt1}, 0")
            A(f"ds_read_b32 v{vt0}, v{vt1} offset:{L_EP}")
            A("s_waitcnt lgkmcnt(0)")
            A(f"v_readfirstlane_b32 {sE}, v{vt0}")
            if bmode == 1: A("s_barrier")
            A("s_nop 3")
            combine_B(sHB, sPC, bmode == 1)
            stamp(5)
            project(WS_YB, sHB, sPC)
            stamp(6)
            stage3(WS_YB, 1024, 8)
            stamp(7)
            A("s_endpgm")

    A.label("L_service")
    sreg[0], sreg[1] = 254, 255
    A("s_setprio 3")
    srd(SDBG, 54, 256); srd(SOUT, 52, 2048)
    srd(SK, 44, 0x4000000); srd(SV, 46, 0x4000000)
    A(f"v_mov_b32 v{vt1}, 0")
    if tepoch:
        A(f"s_cmp_lg_u32 {sWG}, 0"); A("s_cbranch_scc1 L_v_noep0")
        A("s_memrealtime s[90:91]")
        A("s_waitcnt lgkmcnt(0)")
        A(f"s_max_u32 {sE}, s90, 1")
        A(f"v_mov_b32 v{vt0}, {sE}")
        A("s_mov_b64 exec, 1")
        A(f"buffer_store_dword v{vt0}, v{vt1}, {SDBG}, 0 offen sc1")
        A("s_mov_b64 exec, -1")
        A.label("L_v_noep0")
        A(f"s_cmp_lg_u32 {sS}, 0"); A("s_cbranch_scc1 L_v_nozero")
        A(f"s_lshl_b32 {sT0}, {sH}, 8"); A(f"s_add_u32 {sT0}, {sT0}, {WS_CNT}")
        A("s_mov_b64 exec, 1")
        A(f"buffer_store_dword v{vt1}, v{vt1}, {SWS}, {sT0} offen sc1")
        A("s_mov_b64 exec, -1")
        A.label("L_v_nozero")
        if NQW == 8:
            A(f"s_cmp_ge_u32 {sS}, 4"); A("s_cbranch_scc1 L_v_noprod1")
            qprod_issue()
            A.label("L_v_noprod1")
    else:
        A(f"s_cmp_lg_u32 {sWG}, 0"); A("s_cbranch_scc1 L_v_noep0")
        A(f"buffer_load_dword v{vt2}, v{vt1}, {SWS}, 0 offen sc1")
        A(f"buffer_load_dword v{vt3}, v{vt1}, {SDBG}, 0 offen sc1")
        A(f"v_lshlrev_b32 v{vt4}, 8, v{vLANE}")
        A("s_mov_b32 exec_hi, 0")
        A(f"s_mov_b32 {sT0}, {WS_CNT}")
        A(f"buffer_store_dword v{vt1}, v{vt4}, {SWS}, {sT0} offen sc1")
        A("s_mov_b64 exec, -1")
        A.label("L_v_noep0")
        if NQW == 8:
            A(f"s_cmp_ge_u32 {sS}, 4"); A("s_cbranch_scc1 L_v_noprod1")
            qprod_issue()
            A.label("L_v_noprod1")
        A(f"s_cmp_lg_u32 {sWG}, 0"); A("s_cbranch_scc1 L_v_noep1")
        A("s_waitcnt vmcnt(9)" if NQW == 8 else "s_waitcnt vmcnt(0)")
        A(f"v_readfirstlane_b32 {sT0}, v{vt2}")
        A(f"v_readfirstlane_b32 {sE}, v{vt3}")
        A("s_nop 3")
        A(f"s_cmp_lg_u32 {sE}, 0"); A("s_cbranch_scc1 L_v_noep1")
        A(f"s_mul_i32 {sE}, {sT0}, 0x9E3779B1"); A(f"s_add_u32 {sE}, {sE}, 0x7F4A7C15")
        A(f"s_xor_b32 {sT1}, {sE}, 0x55555555")
        A(f"s_cmp_eq_u32 {sE}, {sT0}"); A(f"s_cselect_b32 {sE}, {sT1}, {sE}")
        A(f"s_cmp_eq_u32 {sT0}, 1"); A(f"s_cselect_b32 {sT1}, 2, 1")
        A(f"s_cmp_eq_u32 {sE}, 0"); A(f"s_cselect_b32 {sE}, {sT1}, {sE}")
        A(f"v_mov_b32 v{vt0}, {sE}")
        A("s_mov_b64 exec, 1")
        A(f"buffer_store_dword v{vt0}, v{vt1}, {SDBG}, 0 offen sc1")
        A(f"buffer_store_dword v{vt0}, v{vt1}, {SWS}, 0 offen sc1")
        A("s_mov_b64 exec, -1")
        A.label("L_v_noep1")
    masks()
    A(f"v_mov_b32 v{vt0}, {2*NPR*NSW}"); A(f"v_mov_b32 v{vt1}, 0")
    A(f"ds_write_b32 v{vt1}, v{vt0} offset:{L_CNT}")
    if NQW == 8:
        A(f"s_cmp_ge_u32 {sS}, 4"); A("s_cbranch_scc1 L_v_noprod2")
        A("s_waitcnt vmcnt(0)")
        qprod_compute()
        A.label("L_v_noprod2")
    A(f"v_mov_b32 v{vt1}, 0")
    A(f"s_mov_b32 {sTO}, {TMO}")
    A.label("L_ep_loop")
    A(f"buffer_load_dword v{vt0}, v{vt1}, {SDBG}, 0 offen sc1")
    A("s_waitcnt vmcnt(0)")
    A(f"v_readfirstlane_b32 {sE}, v{vt0}")
    A("s_nop 3")
    A(f"s_cmp_lg_u32 {sE}, 0"); A("s_cbranch_scc1 L_ep_done")
    A(f"s_sleep {sleep}")
    A(f"s_sub_u32 {sTO}, {sTO}, 1"); A(f"s_cmp_lg_u32 {sTO}, 0"); A("s_cbranch_scc1 L_ep_loop")
    A.label("L_ep_done")
    stamp(11)
    vLO8 = vt5
    A(f"v_lshlrev_b32 v{vLO8}, 3, v{vLANE}")
    A(f"s_cmp_ge_u32 {sS}, 4"); A("s_cbranch_scc1 L_v_noprod3")
    if NQW != 8: A("s_barrier")
    A(f"v_and_b32 v{vt1}, 31, v{vLANE}"); A(f"v_lshlrev_b32 v{vt1}, 3, v{vt1}")
    for k in range(2*NQW): A(f"ds_read_b64 {vr(WQ+2*k,2)}, v{vt1} offset:{L_QPART + k*256}")
    A("s_waitcnt lgkmcnt(0)")
    for k in range(1, 2*NQW):
        A(f"v_add_f32 v{WQ}, v{WQ}, v{WQ+2*k}"); A(f"v_add_f32 v{WQ+1}, v{WQ+1}, v{WQ+2*k+1}")
    A(f"v_cvt_pk_bf16_f32 v{vB0}, v{WQ}, v{WQ+1}"); A(f"v_mov_b32 v{vB0+1}, {sE}")
    A(f"s_lshr_b32 {sT0}, {sS}, 1"); A(f"s_lshl_b32 {sT0}, {sT0}, 5"); A(f"s_add_u32 {sT0}, {sT0}, {sH}"); A(f"s_lshl_b32 {sT0}, {sT0}, 9")
    A(f"s_and_b32 {sT1}, {sS}, 1"); A(f"s_lshl_b32 {sT1}, {sT1}, 8"); A(f"s_add_u32 {sT0}, {sT0}, {sT1}"); A(f"s_add_u32 {sT0}, {sT0}, {WS_QF}")
    A("s_mov_b32 exec_hi, 0")
    A(f"buffer_store_dwordx2 {vr(vB0,2)}, v{vt1}, {SWS}, {sT0} offen sc1")
    A("s_mov_b64 exec, -1")
    stamp(3)
    A.label("L_v_noprod3")
    A(f"s_lshl_b32 {sT0}, {sH}, 9"); A(f"s_add_u32 {sT0}, {sT0}, {WS_QF}")
    lab = poll_begin()
    A(f"buffer_load_dwordx2 {vr(vQ,2)}, v{vLO8}, {SWS}, {sT0} offen sc1")
    poll_end(lab, [vQ + 1], sleep)
    A(f"v_lshlrev_b32 v{vt2}, 2, v{vLANE}")
    A(f"ds_write_b32 v{vt2}, v{vQ} offset:{L_QA}")
    A(f"v_mov_b32 v{vt0}, {sE}"); A(f"v_mov_b32 v{vt1}, 0")
    A(f"ds_write_b32 v{vt1}, v{vt0} offset:{L_EP}")
    A("s_waitcnt lgkmcnt(0)")
    A("s_barrier")
    if noB:
        A("s_barrier"); A("s_endpgm")
    A(f"s_lshr_b32 {sT0}, {sWG}, 5"); A(f"s_lshl_b32 {sBB}, {sT0}, 23"); A(f"s_add_u32 {sBB}, {sBB}, {28672*256}")
    A(f"s_and_b32 {sKC}, {sWG}, 31")
    def boff(tl):
        A(f"s_add_u32 {sKOFF}, {sKC}, {tl}"); A(f"s_and_b32 {sKOFF}, {sKOFF}, 7"); A(f"s_lshl_b32 {sKOFF}, {sKOFF}, 5")
        A(f"s_add_u32 {sKOFF}, {sKOFF}, {sKC}"); A(f"s_lshl_b32 {sKOFF}, {sKOFF}, 12")
        A(f"s_add_u32 {sKOFF}, {sKOFF}, {sBB}")
    for s in range(4):
        boff(s); issue_k(s, sKOFF); issue_v(s, sKOFF)
    A(f"s_lshr_b32 {sT0}, {sWG}, 5"); A(f"s_lshl_b32 {sT0}, {sT0}, 11"); A(f"s_add_u32 {sT0}, {sT0}, {WS_QF + 32*512}")
    lab = poll_begin()
    for hh in range(4):
        A(f"buffer_load_dwordx2 {vr(vQ+2*hh,2)}, v{vLO8}, {SWS}, {sT0} offen offset:{hh*512} sc1")
    poll_end(lab, [vQ + 2 * hh + 1 for hh in range(4)], 16)
    for hh in range(4): A(f"ds_write_b32 v{vt2}, v{vQ+2*hh} offset:{L_QB + hh*256}")
    A("s_waitcnt lgkmcnt(0)")
    QBp = [vQ, WQ]
    stO = [vO, WQ + 16]; stS = [vS, WQ + 20]; stP = [vP, WQ + 24]; stm = [vm, WQ + 28]; stl = [vl, WQ + 29]
    A(f"v_lshrrev_b32 v{vt3}, 3, v{vN}"); A(f"v_lshlrev_b32 v{vt3}, 8, v{vt3}"); A(f"v_lshl_add_u32 v{vt3}, v{vG}, 4, v{vt3}")
    for pp in range(2):
        for i in range(4): A(f"ds_read_b128 {vr(QBp[pp]+4*i,4)}, v{vt3} offset:{L_QB + pp*512 + i*64}")
        A(f"v_mov_b32 v{stm[pp]}, 0xff800000"); A(f"v_mov_b32 v{stl[pp]}, 0")
        for r in range(4): A(f"v_mov_b32 v{stO[pp]+r}, 0")
    A("s_waitcnt lgkmcnt(0)")
    stamp(4)
    for tl in range(8):
        s = tl % 4
        if tl >= 4: A(f"s_waitcnt vmcnt({(7-tl)*8 + 4})")
        for pp in range(2):
            for i in range(4): mfma(stS[pp], kreg(s, i), QBp[pp] + 4 * i, None if i == 0 else stS[pp])
        if tl < 4:
            boff(tl + 4); issue_k(s, sKOFF)
        A("s_nop 7")
        for pp in range(2): softmax_update(stS[pp], stP[pp], stm[pp], stl[pp], stO[pp], vt0, vt1, vt2)
        if tl >= 4: A(f"s_waitcnt vmcnt({(7-tl)*8})")
        for pp in range(2): pv(stO[pp], stP[pp], lambda t: vreg(s, t))
        if tl < 4: issue_v(s, sKOFF)
    if bmode != 3: wo_issue(40, sH, sS)
    PBR = 224
    A("s_nop 7")
    for pp in range(2):
        xgroup_reduce("v_add_f32", stl[pp], vt0)
        for hf in range(2):
            R = PBR + pp * 12 + hf * 4
            A(f"v_mov_b32 v{R}, v{stO[pp]+2*hf}"); A(f"v_mov_b32 v{R+1}, {sE}")
            A(f"v_mov_b32 v{R+2}, v{stO[pp]+2*hf+1}"); A(f"v_mov_b32 v{R+3}, {sE}")
        R = PBR + pp * 12 + 8
        A(f"v_mov_b32 v{R}, v{stm[pp]}"); A(f"v_mov_b32 v{R+1}, {sE}"); A(f"v_mov_b32 v{R+2}, v{stl[pp]}"); A(f"v_mov_b32 v{R+3}, {sE}")
    vA16, vAML = 248, 249
    A(f"v_lshlrev_b32 v{vA16}, 4, v{vLANE}")
    A(f"v_lshrrev_b32 v{vAML}, 3, v{vN}"); A(f"v_lshlrev_b32 v{vAML}, 9, v{vAML}")
    sPB0, sPB1, sML0 = "s76", "s77", "s78"
    A(f"s_lshr_b32 {sPB0}, {sWG}, 5"); A(f"s_lshl_b32 {sPB0}, {sPB0}, 17")
    A(f"s_lshl_b32 {sT2}, {sKC}, 11"); A(f"s_add_u32 {sPB0}, {sPB0}, {sT2}"); A(f"s_add_u32 {sPB0}, {sPB0}, {WS_PB}"); A(f"s_add_u32 {sPB1}, {sPB0}, 0x10000")
    A(f"s_lshr_b32 {sML0}, {sWG}, 5"); A(f"s_lshl_b32 {sML0}, {sML0}, 11"); A(f"s_lshl_b32 {sT1}, {sKC}, 4"); A(f"s_add_u32 {sML0}, {sML0}, {sT1}")
    A(f"s_add_u32 {sML0}, {sML0}, {WS_MLB}")
    def pb_publish():
        for pp in range(2):
            for hf in range(2):
                A(f"buffer_store_dwordx4 {vr(PBR+pp*12+hf*4,4)}, v{vA16}, {SWS}, {sPB0 if pp == 0 else sPB1} offen offset:{hf*1024} sc1")
        A("s_mov_b64 exec, 0x101")
        for pp in range(2):
            A(f"buffer_store_dwordx4 {vr(PBR+pp*12+8,4)}, v{vAML}, {SWS}, {sML0} offen offset:{pp*1024} sc1")
        A("s_mov_b64 exec, -1")
    if bmode != 1: pb_publish()
    if bmode == 3:
        A(f"s_lshr_b32 {sHB}, {sWG}, 3"); A(f"s_and_b32 {sPC}, {sWG}, 7")
        wo_issue(50, sHB, sPC)
        save = (tsleep, bsleep)
        combine_B(sHB, sPC, True)
        project(WS_YB, sHB, sPC)
        stage3(WS_YB, 1024, 8)
        stamp(7)
        wo_issue(40, sH, sS)
    A("s_barrier")
    stamp(8)
    if bmode == 1: pb_publish()
    A(f"v_lshlrev_b32 v{vt1}, 3, v{vLANE}"); A(f"v_mov_b32 v{vt2}, 0")
    MLW = PO + 16
    for w in range(NSW):
        A(f"ds_read_b64 {vr(PO+2*w,2)}, v{vt1} offset:{L_OPART + w*512}")
        A(f"ds_read_b64 {vr(MLW+2*w,2)}, v{vt2} offset:{L_ML + w*8}")
    A("s_waitcnt lgkmcnt(0)")
    A(f"v_mov_b32 v{vt0}, v{MLW}")
    for w in range(1, NSW): A(f"v_max_f32 v{vt0}, v{vt0}, v{MLW+2*w}")
    for w in range(NSW):
        A(f"v_sub_f32 v{MLW+2*w}, v{MLW+2*w}, v{vt0}"); A(f"v_mul_f32 v{MLW+2*w}, {sC}, v{MLW+2*w}"); A(f"v_exp_f32 v{MLW+2*w}, v{MLW+2*w}")
    A("s_nop 0")
    A(f"v_mul_f32 v{vB0}, v{PO}, v{MLW}"); A(f"v_mul_f32 v{vB0+2}, v{PO+1}, v{MLW}"); A(f"v_mul_f32 v{vB1+2}, v{MLW+1}, v{MLW}")
    for w in range(1, NSW):
        A(f"v_fma_f32 v{vB0}, v{PO+2*w}, v{MLW+2*w}, v{vB0}"); A(f"v_fma_f32 v{vB0+2}, v{PO+2*w+1}, v{MLW+2*w}, v{vB0+2}")
        A(f"v_fma_f32 v{vB1+2}, v{MLW+2*w+1}, v{MLW+2*w}, v{vB1+2}")
    A(f"v_mov_b32 v{vB0+1}, {sE}"); A(f"v_mov_b32 v{vB0+3}, {sE}")
    A(f"v_mov_b32 v{vB1}, v{vt0}"); A(f"v_mov_b32 v{vB1+1}, {sE}"); A(f"v_mov_b32 v{vB1+3}, {sE}")
    A(f"s_lshl_b32 {sT0}, {sH}, 3"); A(f"s_add_u32 {sT0}, {sT0}, {sS}"); A(f"s_lshl_b32 {sT1}, {sT0}, 4"); A(f"s_lshl_b32 {sT0}, {sT0}, 10")
    A(f"s_add_u32 {sT0}, {sT0}, {WS_PA}"); A(f"s_add_u32 {sT1}, {sT1}, {WS_MLA}")
    A(f"buffer_store_dwordx4 {vr(vB0,4)}, v{vA16}, {SWS}, {sT0} offen sc1")
    A("s_mov_b64 exec, 1")
    A(f"buffer_store_dwordx4 {vr(vB1,4)}, v{vt2}, {SWS}, {sT1} offen sc1")
    A("s_mov_b64 exec, -1")
    combine_A(sH, sS)
    project(WS_YA, sH, sS)
    stamp(9)
    stage3(WS_YA, 0, 0)
    stamp(10)
    A.label("L_end")
    A("s_endpgm")

    out = HEADER + f"; @launch grid=(256,1,1) block=({(NSW+1)*64},1,1) lds={LDS_SIZE}\n"
    out += '.amdgcn_target "amdgcn-amd-amdhsa--gfx950"\n.text\n' + f".globl {KNAME}\n.p2align 8\n.type {KNAME},@function\n{KNAME}:\n"
    out += "\n".join(A.L) + "\n"
    out += f""".section .rodata,"a"
.p2align 6
.amdhsa_kernel {KNAME}
  .amdhsa_next_free_vgpr 256
  .amdhsa_next_free_sgpr 102
  .amdhsa_accum_offset 256
  .amdhsa_group_segment_fixed_size 0
  .amdhsa_kernarg_size 104
  .amdhsa_user_sgpr_count 2
  .amdhsa_user_sgpr_kernarg_segment_ptr 1
  .amdhsa_system_sgpr_workgroup_id_x 1
.end_amdhsa_kernel
"""
    return out

if __name__ == "__main__":
    cfg = json.loads(sys.argv[2]) if len(sys.argv) > 2 else {}
    open(sys.argv[1], "w").write(gen(**cfg))
```

```python
import sys, json, math, struct
from gen import HEADER, KNAME, G, vr, f2u, CSCALE

WS_CNT  = 0x1000
WS_QF   = 0x10000
WS_ML   = 0x20000
WS_P    = 0x100000
WS_Y    = 0x200000
WS_TS   = 0x800000
WS_SIZE = 0x1000000

L_QPART = 0
L_QA    = 4096
L_QB    = 4352
L_OPART = 6144
L_OB    = 8192
L_ML    = 10240
L_CNT   = 10304
L_EP    = 10312
LDS_SIZE = 12288

def gen(ts=False, kflags="nt", sleep=2, tsleep=1, hmap=1, ST=224, noB=False, D=4, pbthr=0, TMO=0x8000, NSW=4, brot=5, STR=None, xflag=True):
    A = G()
    if STR is None: STR = [ST] * 3
    roles = True
    RT = 2048 - (4 * STR[0] + 2 * STR[1] + 2 * STR[2])
    DYN0 = 2048 - RT
    sreg = [54, 55]
    sWG, sWAVE = "s2", "s3"
    SK, SV, SW, SWS, SX, SDBG, SOUT = "s[4:7]", "s[8:11]", "s[12:15]", "s[16:19]", "s[20:23]", "s[24:27]", "s[28:31]"
    sC = "s58"; sHD = "s59"; sH, sS = "s60", "s61"; sKOFF = "s62"; sSTOP = "s63"; sCOFF = "s64"
    sT0, sT1, sT2, sT3 = "s65", "s66", "s67", "s68"
    sE = "s69"; sSELLO, sSELHI = "s70", "s71"; sHALF = "s[72:73]"; sTO = "s74"; sNREC = "s75"
    sVAL = 76
    sBASE, sSB, sBB, sBU, sBJ, sBN = "s95", "s96", "s97", "s98", "s99", "s100"
    sSTC = "s93"
    vLANE, vN, vG, vKO, vVO = 0, 1, 2, 3, 4
    vM = 5; vT = 9
    vQ = 12; vO = 28; vS = 32; vP = 36; vB0 = 40; vB1 = 44; vm = 48; vl = 49
    vt0, vt1, vt2, vt3, vt4, vt5 = 50, 51, 52, 53, 54, 55
    vX = 56; vML = 60
    RING = 64
    def kreg(slot, i): return RING + slot * 32 + i * 4
    def vreg(slot, i): return RING + slot * 32 + 16 + i * 4
    WQ = 192
    WO = 192; PO = RING + 64
    assert D <= 4
    DPP = "row_mask:0xf bank_mask:0xf"

    def srd(dst, ptr_lo, nbytes):
        b = int(dst[2:].split(":")[0])
        A(f"s_mov_b32 s{b}, s{ptr_lo}"); A(f"s_mov_b32 s{b+1}, s{ptr_lo+1}")
        A(f"s_mov_b32 s{b+2}, {hex(nbytes)}"); A(f"s_mov_b32 s{b+3}, 0x00020000")
    def stamp(idx):
        if not ts: return
        A("s_memrealtime s[90:91]")
        A("s_lshl_b32 s92, s2, 3"); A("s_add_u32 s92, s92, s3"); A("s_lshl_b32 s92, s92, 6")
        A(f"s_add_u32 s92, s92, {WS_TS + idx*4}")
        A("s_waitcnt lgkmcnt(0)")
        A(f"v_mov_b32 v{sreg[0]}, s90"); A(f"v_mov_b32 v{sreg[1]}, 0")
        A(f"buffer_store_dword v{sreg[0]}, v{sreg[1]}, {SWS}, s92 offen")
    def xgroup_reduce(op, v, tmp):
        A(f"v_mov_b32 v{tmp}, v{v}"); A("s_nop 1")
        A(f"v_permlane16_swap_b32 v{v}, v{tmp}")
        A(f"{op} v{v}, v{v}, v{tmp}")
        A(f"v_mov_b32 v{tmp}, v{v}"); A("s_nop 1")
        A(f"v_permlane32_swap_b32 v{v}, v{tmp}")
        A(f"{op} v{v}, v{v}, v{tmp}")
    def mfma(d, a, b, c):
        cs = "0" if c is None else vr(c, 4)
        A(f"v_mfma_f32_16x16x32_bf16 {vr(d,4)}, {vr(a,4)}, {vr(b,4)}, {cs}")
    def softmax_update(S, P, m, l, O, t0, t1, t2):
        A(f"v_max_f32 v{t0}, v{S}, v{S+1}")
        A(f"v_max3_f32 v{t0}, v{S+2}, v{S+3}, v{t0}")
        A(f"v_mov_b32 v{t1}, v{t0}"); A("s_nop 1")
        A(f"v_permlane16_swap_b32 v{t0}, v{t1}")
        A(f"v_max_f32 v{t0}, v{t0}, v{t1}")
        A(f"v_mov_b32 v{t1}, v{t0}"); A("s_nop 1")
        A(f"v_permlane32_swap_b32 v{t0}, v{t1}")
        A(f"v_max3_f32 v{t0}, v{t0}, v{t1}, v{m}")
        A(f"v_mul_f32 v{t1}, {sC}, v{t0}")
        A(f"v_fma_f32 v{t2}, v{m}, {sC}, -v{t1}")
        for r in range(4): A(f"v_fma_f32 v{P+r}, v{S+r}, {sC}, -v{t1}")
        A(f"v_exp_f32 v{t2}, v{t2}")
        for r in range(4): A(f"v_exp_f32 v{P+r}, v{P+r}")
        A(f"v_mov_b32 v{m}, v{t0}")
        A(f"v_fma_f32 v{l}, v{l}, v{t2}, v{P}")
        A(f"v_add_f32 v{t1}, v{P+1}, v{P+2}")
        for r in range(4): A(f"v_mul_f32 v{O+r}, v{O+r}, v{t2}")
        A(f"v_add_f32 v{l}, v{l}, v{P+3}")
        A(f"v_add_f32 v{l}, v{l}, v{t1}")
    def pv(O, P, vbase_fn):
        for t in range(4):
            B = vB0 if t % 2 == 0 else vB1
            A(f"v_cvt_pk_bf16_f32 v{vt0}, v{P+t}, v{P+t}")
            for r in range(4): A(f"v_and_b32 v{B+r}, v{vt0}, v{vM+r}")
            A("s_nop 1")
            mfma(O, vbase_fn(t), B, O)
    def issue_k(slot, soff):
        for i in range(4):
            A(f"buffer_load_dwordx4 {vr(kreg(slot,i),4)}, v{vKO}, {SK}, {soff} offen offset:{i*64} {kflags}")
    def issue_v(slot, soff):
        for i in range(4):
            A(f"buffer_load_dwordx4 {vr(vreg(slot,i),4)}, v{vVO}, {SV}, {soff} offen offset:{i*256} {kflags}")
    def poll_begin():
        lab = A.newlabel("L_poll")
        A(f"s_mov_b32 {sTO}, {TMO}")
        A.label(lab)
        return lab
    def poll_end(lab, tagregs, sl):
        done = A.newlabel("L_pdone")
        A("s_waitcnt vmcnt(0)")
        tr = list(tagregs)
        A(f"v_xor_b32 v{vt0}, {sE}, v{tr[0]}")
        k = 1
        while k < len(tr):
            if k + 1 < len(tr):
                A(f"v_xor_b32 v{vt1}, {sE}, v{tr[k]}"); A(f"v_xor_b32 v{vT}, {sE}, v{tr[k+1]}")
                A(f"v_or3_b32 v{vt0}, v{vt0}, v{vt1}, v{vT}"); k += 2
            else:
                A(f"v_xor_b32 v{vt1}, {sE}, v{tr[k]}"); A(f"v_or_b32 v{vt0}, v{vt0}, v{vt1}"); k += 1
        A(f"v_cmp_ne_u32 vcc, 0, v{vt0}")
        A("s_nop 4")
        A(f"s_cbranch_vccz {done}")
        while sl > 0:
            A(f"s_sleep {min(sl,127)}"); sl -= 127
        A(f"s_sub_u32 {sTO}, {sTO}, 1")
        A(f"s_cmp_lg_u32 {sTO}, 0")
        A(f"s_cbranch_scc1 {lab}")
        A.label(done)
    def wo_issue(ptr_lo):
        srd(SW, ptr_lo, 0x400000)
        A(f"v_lshlrev_b32 v{vt1}, 14, v{vG}")
        A(f"v_lshl_add_u32 v{vt1}, v{vN}, 4, v{vt1}")
        A(f"s_lshl_b32 {sT0}, {sH}, 17")
        A(f"s_lshr_b32 {sT1}, {sS}, 2"); A(f"s_lshl_b32 {sT1}, {sT1}, 16"); A(f"s_add_u32 {sT0}, {sT0}, {sT1}")
        A(f"s_and_b32 {sT1}, {sS}, 3"); A(f"s_lshl_b32 {sT1}, {sT1}, 8"); A(f"s_add_u32 {sT0}, {sT0}, {sT1}")
        for a in range(4):
            if a: A(f"s_add_u32 {sT0}, {sT0}, 4096")
            for b in range(4):
                t = a * 4 + b
                A(f"buffer_load_dwordx4 {vr(WO+4*t,4)}, v{vt1}, {SW}, {sT0} offen offset:{b*1024} {kflags}")
    sPA0, sPA1, sMLA, sYP, sYG, sOUTO, sRED = "s84", "s85", "s86", "s87", "s88", "s89", "s94"
    vAML, vA8, vAY, vA16, vAO = 12, 13, 14, 15, 16
    def tail_prep():
        srd(SOUT, 52, 2048)
        A(f"v_and_b32 v{vAML}, 7, v{vLANE}"); A(f"v_lshlrev_b32 v{vAML}, 4, v{vAML}")
        A(f"v_lshlrev_b32 v{vA8}, 3, v{vLANE}")
        A(f"v_lshlrev_b32 v{vAY}, 4, v{vN}"); A(f"v_lshl_add_u32 v{vAY}, v{vG}, 14, v{vAY}")
        A(f"v_lshlrev_b32 v{vA16}, 4, v{vLANE}")
        A(f"v_and_b32 v{vAO}, 7, v{vN}"); A(f"v_lshrrev_b32 v{vt2}, 3, v{vN}"); A(f"v_lshl_add_u32 v{vAO}, v{vt2}, 4, v{vAO}"); A(f"v_lshlrev_b32 v{vAO}, 1, v{vAO}")
        A(f"s_lshl_b32 {sMLA}, {sHD}, 7"); A(f"s_add_u32 {sMLA}, {sMLA}, {WS_ML}")
        A(f"s_lshl_b32 {sPA0}, {sHD}, 13"); A(f"s_lshr_b32 {sT1}, {sS}, 2"); A(f"s_lshl_b32 {sT1}, {sT1}, 9")
        A(f"s_add_u32 {sPA0}, {sPA0}, {sT1}"); A(f"s_add_u32 {sPA0}, {sPA0}, {WS_P}"); A(f"s_add_u32 {sPA1}, {sPA0}, 4096")
        A(f"s_lshr_b32 {sT2}, {sHD}, 5")
        A(f"s_lshl_b32 {sYP}, {sT2}, 18"); A(f"s_add_u32 {sYP}, {sYP}, {WS_Y}"); A(f"s_mov_b32 {sYG}, {sYP}")
        A(f"s_and_b32 {sT0}, {sS}, 3"); A(f"s_lshl_b32 {sT0}, {sT0}, 16"); A(f"s_add_u32 {sYP}, {sYP}, {sT0}")
        A(f"s_lshl_b32 {sT0}, {sH}, 1"); A(f"s_lshr_b32 {sT1}, {sS}, 2"); A(f"s_add_u32 {sT0}, {sT0}, {sT1}"); A(f"s_lshl_b32 {sT0}, {sT0}, 8"); A(f"s_add_u32 {sYP}, {sYP}, {sT0}")
        A(f"s_lshr_b32 {sT3}, {sWG}, 4"); A(f"s_lshl_b32 {sT0}, {sT3}, 14"); A(f"s_add_u32 {sYG}, {sYG}, {sT0}")
        A(f"s_lshl_b32 {sOUTO}, {sT3}, 6"); A(f"s_lshl_b32 {sT0}, {sT2}, 10"); A(f"s_add_u32 {sOUTO}, {sOUTO}, {sT0}")
        A(f"s_and_b32 {sT0}, {sT3}, 7"); A(f"s_lshl_b32 {sT1}, {sT2}, 3"); A(f"s_add_u32 {sT0}, {sT0}, {sT1}")
        A(f"s_and_b32 {sT1}, {sWG}, 15"); A(f"s_cmp_eq_u32 {sT0}, {sT1}"); A(f"s_cselect_b32 {sRED}, 1, 0")
    def tail():
        NP = 8
        lab = poll_begin()
        A(f"buffer_load_dwordx4 {vr(vML,4)}, v{vAML}, {SWS}, {sMLA} offen sc1")
        for p in range(NP):
            A(f"buffer_load_dwordx2 {vr(PO+2*p,2)}, v{vA8}, {SWS}, {sPA0 if p < 4 else sPA1} offen offset:{(p%4)*1024} sc1")
        poll_end(lab, [vML + 1, vML + 3] + [PO + 2 * p + 1 for p in range(NP)], tsleep)
        stamp(5)
        A(f"v_max_f32_dpp v{vt0}, v{vML}, v{vML} quad_perm:[1,0,3,2] {DPP}"); A("s_nop 1")
        A(f"v_max_f32_dpp v{vt0}, v{vt0}, v{vt0} quad_perm:[2,3,0,1] {DPP}"); A("s_nop 1")
        A(f"v_max_f32_dpp v{vt0}, v{vt0}, v{vt0} row_half_mirror {DPP}")
        A(f"v_sub_f32 v{vt1}, v{vML}, v{vt0}"); A(f"v_mul_f32 v{vt1}, {sC}, v{vt1}"); A(f"v_exp_f32 v{vt1}, v{vt1}")
        A("s_nop 0")
        A(f"v_mul_f32 v{vt2}, v{vt1}, v{vML+2}"); A("s_nop 0")
        A(f"v_mul_f32_dpp v{vt3}, v{vt1}, v{PO} row_newbcast:0 {DPP}")
        A(f"v_add_f32_dpp v{vt2}, v{vt2}, v{vt2} quad_perm:[1,0,3,2] {DPP}")
        A(f"v_fmac_f32_dpp v{vt3}, v{vt1}, v{PO+2} row_newbcast:1 {DPP}")
        A(f"v_fmac_f32_dpp v{vt3}, v{vt1}, v{PO+4} row_newbcast:2 {DPP}")
        A(f"v_add_f32_dpp v{vt2}, v{vt2}, v{vt2} quad_perm:[2,3,0,1] {DPP}")
        A(f"v_fmac_f32_dpp v{vt3}, v{vt1}, v{PO+6} row_newbcast:3 {DPP}")
        A(f"v_fmac_f32_dpp v{vt3}, v{vt1}, v{PO+8} row_newbcast:4 {DPP}")
        A(f"v_add_f32_dpp v{vt2}, v{vt2}, v{vt2} row_half_mirror {DPP}")
        A(f"v_fmac_f32_dpp v{vt3}, v{vt1}, v{PO+10} row_newbcast:5 {DPP}")
        A(f"v_rcp_f32 v{vt2}, v{vt2}")
        A(f"v_fmac_f32_dpp v{vt3}, v{vt1}, v{PO+12} row_newbcast:6 {DPP}")
        A(f"v_fmac_f32_dpp v{vt3}, v{vt1}, v{PO+14} row_newbcast:7 {DPP}")
        A(f"v_mul_f32 v{vt3}, v{vt3}, v{vt2}")
        A(f"v_cvt_pk_bf16_f32 v{vt3}, v{vt3}, v{vt3}")
        A("s_nop 1")
        BS = [PO + 16, PO + 20, PO + 24, PO + 28]
        def build(t):
            for r in range(4): A(f"v_and_b32_dpp v{BS[t%4]+r}, v{vt3}, v{vM+r} row_newbcast:{t} {DPP}")
        build(0); build(1)
        for t in range(16):
            acc = vS if t % 2 == 0 else vP
            mfma(acc, WO + 4 * t, BS[t % 4], None if t < 2 else acc)
            if t + 2 < 16: build(t + 2)
        A(f"v_mov_b32 v{vB0+1}, {sE}"); A(f"v_mov_b32 v{vB0+3}, {sE}")
        A("s_nop 6")
        for r in range(4): A(f"v_add_f32 v{vS+r}, v{vS+r}, v{vP+r}")
        A(f"v_cndmask_b32 v{vB0}, v{vS}, v{vS+2}, {sHALF}")
        A(f"v_cndmask_b32 v{vB0+2}, v{vS+1}, v{vS+3}, {sHALF}")
        A(f"buffer_store_dwordx4 {vr(vB0,4)}, v{vAY}, {SWS}, {sYP} offen sc1")
        stamp(6)
        A(f"s_cmp_eq_u32 {sRED}, 0"); A("s_cbranch_scc1 L_tail_end")
        A(f"s_add_u32 {sT0}, {sYG}, 4096"); A(f"s_add_u32 {sT1}, {sYG}, 8192"); A(f"s_add_u32 {sT2}, {sYG}, 12288")
        lab = poll_begin()
        for u in range(16):
            A(f"buffer_load_dwordx4 {vr(PO+4*u,4)}, v{vA16}, {SWS}, {[sYG,sT0,sT1,sT2][u//4]} offen offset:{(u%4)*1024} sc1")
        poll_end(lab, [PO + 4 * u + o for u in range(16) for o in (1, 3)], tsleep)
        for u in range(8):
            A(f"v_add_f32 v{PO+4*u}, v{PO+4*u}, v{PO+4*(u+8)}"); A(f"v_add_f32 v{PO+4*u+2}, v{PO+4*u+2}, v{PO+4*(u+8)+2}")
        for u in range(1, 8):
            A(f"v_add_f32 v{PO}, v{PO}, v{PO+4*u}"); A(f"v_add_f32 v{PO+2}, v{PO+2}, v{PO+4*u+2}")
        A(f"v_mov_b32 v{vt0}, v{PO}"); A(f"v_mov_b32 v{vt1}, v{PO+2}"); A("s_nop 0")
        A(f"v_permlane16_swap_b32 v{PO}, v{vt0}"); A(f"v_permlane16_swap_b32 v{PO+2}, v{vt1}")
        A(f"v_add_f32 v{PO}, v{PO}, v{vt0}"); A(f"v_add_f32 v{PO+2}, v{PO+2}, v{vt1}")
        A(f"v_mov_b32 v{vt0}, v{PO}"); A(f"v_mov_b32 v{vt1}, v{PO+2}"); A("s_nop 0")
        A(f"v_permlane32_swap_b32 v{PO}, v{vt0}"); A(f"v_permlane32_swap_b32 v{PO+2}, v{vt1}")
        A(f"v_add_f32 v{PO}, v{PO}, v{vt0}"); A(f"v_add_f32 v{PO+2}, v{PO+2}, v{vt1}")
        A(f"v_cvt_pk_bf16_f32 v{vt0}, v{PO}, v{PO+2}")
        A("s_mov_b64 exec, 0xffff")
        A(f"buffer_store_short v{vt0}, v{vAO}, {SOUT}, {sOUTO} offen")
        A(f"buffer_store_short_d16_hi v{vt0}, v{vAO}, {SOUT}, {sOUTO} offen offset:16")
        A("s_mov_b64 exec, -1")
        A.label("L_tail_end")
        stamp(7)
        A("s_endpgm")

    NBLK = 8 // NSW
    def qprod_issue():
        A(f"s_cmp_lt_u32 {sS}, 2")
        A("s_cselect_b32 s12, s38, s48"); A("s_cselect_b32 s13, s39, s49"); A("s_mov_b32 s14, 0x400000"); A("s_mov_b32 s15, 0x00020000")
        A("s_cselect_b32 s20, s32, s42"); A("s_cselect_b32 s21, s33, s43"); A("s_mov_b32 s22, 1024"); A("s_mov_b32 s23, 0x00020000")
        A(f"v_lshrrev_b32 v{vT}, 3, v{vN}"); A(f"v_lshl_add_u32 v{vT}, v{vG}, 1, v{vT}")
        A(f"v_lshlrev_b32 v{vT+1}, 4, v{vT}")
        A(f"v_lshlrev_b32 v{vT}, 16, v{vT}")
        A(f"v_and_b32 v{vT+2}, 7, v{vN}"); A(f"v_lshl_add_u32 v{vT}, v{vT+2}, 4, v{vT}")
        A(f"s_mul_i32 {sT1}, {sWAVE}, {128*NBLK}")
        for bk in range(NBLK):
            A(f"buffer_load_dwordx4 {vr(vX+4*bk,4)}, v{vT+1}, {SX}, {sT1} offen offset:{128*bk}")
        A(f"s_mul_i32 {sT0}, {sWAVE}, {NBLK << 19}"); A(f"s_lshl_b32 {sT1}, {sH}, 8"); A(f"s_add_u32 {sT0}, {sT0}, {sT1}")
        A(f"s_and_b32 {sT1}, {sS}, 1"); A(f"s_lshl_b32 {sT1}, {sT1}, 7"); A(f"s_add_u32 {sT0}, {sT0}, {sT1}")
        for bk in range(NBLK):
            for t in range(8):
                A(f"buffer_load_dwordx4 {vr(WQ+32*bk+4*t,4)}, v{vT}, {SW}, {sT0} offen {kflags}")
                if t < 7: A(f"s_add_u32 {sT0}, {sT0}, 8192")
            if bk < NBLK - 1: A(f"s_add_u32 {sT0}, {sT0}, {(64-7)*8192}")
    def qprod_compute():
        for bk in range(NBLK):
            for t in range(8):
                B = vB0 if t % 2 == 0 else vB1
                sel = sSELLO if t % 2 == 0 else sSELHI
                A(f"v_perm_b32 v{vt0}, v{vX+4*bk+t//2}, v{vX+4*bk+t//2}, {sel}")
                for r in range(4): A(f"v_and_b32 v{B+r}, v{vt0}, v{vM+r}")
                A("s_nop 1")
                mfma(vS, WQ + 32 * bk + 4 * t, B, None if (t == 0 and bk == 0) else vS)
        A(f"v_and_b32 v{vt1}, 7, v{vN}"); A(f"v_lshl_add_u32 v{vt1}, v{vG}, 5, v{vt1}"); A(f"v_lshlrev_b32 v{vt1}, 2, v{vt1}")
        A(f"s_lshl_b32 {sT0}, {sWAVE}, 9"); A(f"v_add_u32 v{vt1}, {sT0}, v{vt1}")
        A("s_mov_b32 exec_lo, 0x00ff00ff"); A("s_mov_b32 exec_hi, 0xff00ff00")
        A("s_nop 3")
        for r in range(4): A(f"ds_write_b32 v{vt1}, v{vS+r} offset:{L_QPART + r*32}")
        A("s_mov_b64 exec, -1")
        A("s_waitcnt lgkmcnt(0)")
        A("s_barrier")
    def masks():
        A(f"v_and_b32 v{vt0}, 1, v{vN}")
        A(f"v_mov_b32 v{vt1}, 0xffff")
        A(f"v_lshlrev_b32 v{vt0}, 4, v{vt0}")
        A(f"v_lshlrev_b32 v{vt1}, v{vt0}, v{vt1}")
        A(f"v_bfe_u32 v{vt0}, v{vN}, 1, 2")
        for r in range(4):
            A(f"v_cmp_eq_u32 vcc, {r}, v{vt0}"); A("s_nop 1")
            A(f"v_cndmask_b32 v{vM+r}, 0, v{vt1}, vcc")
        A(f"v_cmp_lt_u32 {sHALF}, 7, v{vN}")
        A(f"s_mov_b32 {sC}, {hex(f2u(CSCALE))}")
        A(f"s_mov_b32 {sSELLO}, 0x01000100"); A(f"s_mov_b32 {sSELHI}, 0x03020302")

    A(f"s_cmp_ge_u32 {sWG}, 256"); A("s_cbranch_scc1 L_end")
    A("s_load_dwordx16 s[32:47], s[0:1], 0")
    A("s_load_dwordx8 s[48:55], s[0:1], 64")
    A("s_load_dwordx2 s[56:57], s[0:1], 96")
    A(f"v_lshrrev_b32 v1, 6, v0"); A("v_and_b32 v0, 63, v0"); A("s_nop 0")
    A(f"v_readfirstlane_b32 {sWAVE}, v1")
    A(f"v_and_b32 v{vN}, 15, v0"); A(f"v_lshrrev_b32 v{vG}, 4, v0")
    A(f"v_lshlrev_b32 v{vKO}, 8, v{vN}"); A(f"v_lshl_add_u32 v{vKO}, v{vG}, 4, v{vKO}")
    A(f"v_lshlrev_b32 v{vVO}, 10, v{vG}"); A(f"v_lshl_add_u32 v{vVO}, v{vN}, 4, v{vVO}")
    A(f"s_lshr_b32 {sH}, {sWG}, 3")
    if hmap == 1: A(f"s_and_b32 {sS}, {sWG}, 7")
    else: A(f"s_add_u32 {sS}, {sWG}, {sH}"); A(f"s_and_b32 {sS}, {sS}, 7")
    A(f"s_lshl_b32 {sBASE}, {sH}, 23")
    a_, b_, c_ = STR
    A(f"s_mul_i32 {sSB}, {sS}, {a_}"); A(f"s_mov_b32 {sSTC}, {a_}")
    A(f"s_mul_i32 {sT0}, {sS}, {b_}"); A(f"s_add_u32 {sT0}, {sT0}, {4*a_ - 4*b_ & 0xffffffff}")
    A(f"s_cmp_ge_u32 {sS}, 4"); A(f"s_cselect_b32 {sSB}, {sT0}, {sSB}"); A(f"s_cselect_b32 {sSTC}, {b_}, {sSTC}")
    A(f"s_mul_i32 {sT0}, {sS}, {c_}"); A(f"s_add_u32 {sT0}, {sT0}, {(4*a_ + 2*b_ - 6*c_) & 0xffffffff}")
    A(f"s_cmp_ge_u32 {sS}, 6"); A(f"s_cselect_b32 {sSB}, {sT0}, {sSB}"); A(f"s_cselect_b32 {sSTC}, {c_}, {sSTC}")
    A(f"s_add_u32 {sT0}, {sSB}, {sWAVE}"); A(f"s_lshl_b32 {sKOFF}, {sT0}, 12"); A(f"s_add_u32 {sKOFF}, {sKOFF}, {sBASE}")
    A("s_waitcnt lgkmcnt(0)")
    srd(SWS, 56, WS_SIZE)
    stamp(0)
    A(f"s_cmp_eq_u32 {sWAVE}, {NSW}"); A("s_cbranch_scc1 L_service")

    srd(SK, 34, 0x10000000); srd(SV, 36, 0x10000000)
    vNEXT, vCA, vONE = vT + 2, vT + 1, vT
    vNX = [56 + k for k in range(D)]
    def issue_tile(s):
        issue_k(s, sKOFF); issue_v(s, sKOFF); A(f"s_add_u32 {sKOFF}, {sKOFF}, {NSW*4096}")
    A(f"s_cmp_lt_u32 {sS}, 4"); A("s_cbranch_scc1 L_s_prod")
    for s in range(D): issue_tile(s)
    masks()
    A.label("L_s_join")
    A(f"v_mov_b32 v{vm}, 0xff800000"); A(f"v_mov_b32 v{vl}, 0")
    for r in range(4): A(f"v_mov_b32 v{vO+r}, 0")
    for s in range(D):
        A(f"s_mov_b32 s{sVAL+s}, 1")
        A(f"s_add_u32 {sT0}, {sWAVE}, {0x80000000 + (D+s)*NSW}"); A(f"v_mov_b32 v{vNX[s]}, {sT0}")
    A(f"s_mov_b32 {sSTOP}, 0")
    A(f"s_lshl_b32 {sCOFF}, {sH}, 8"); A(f"s_add_u32 {sCOFF}, {sCOFF}, {WS_CNT}")
    A(f"s_mov_b32 {sNREC}, 0x10000000")
    A(f"v_lshlrev_b32 v{vt3}, 4, v{vG}")
    A(f"v_mov_b32 v{vCA}, 0"); A(f"v_mov_b32 v{vONE}, 1")
    A("s_barrier")
    for i in range(4): A(f"ds_read_b128 {vr(vQ+4*i,4)}, v{vt3} offset:{L_QA + i*64}")
    def grab():
        A("s_mov_b64 exec, 1")
        A(f"ds_add_rtn_u32 v{vNEXT}, v{vCA}, v{vONE} offset:{L_CNT}")
        A("s_mov_b64 exec, -1")
    grab()
    if not noB:
        A(f"s_cmp_lg_u32 {sWAVE}, 0"); A("s_cbranch_scc1 L_s_nowo")
        wo_issue(50)
        A.label("L_s_nowo")
    A("s_waitcnt lgkmcnt(0)")
    stamp(1)
    NW = 8 * D - 4
    A.label("L_loop")
    for s in range(D):
        A(f"s_cmp_eq_u32 s{sVAL+s}, 0"); A("s_cbranch_scc1 L_sdone")
        A(f"s_waitcnt vmcnt({NW})")
        for i in range(4): mfma(vS, kreg(s, i), vQ + 4 * i, None if i == 0 else vS)
        A("s_waitcnt lgkmcnt(0)")
        A(f"v_readfirstlane_b32 {sT0}, v{vNX[s]}")
        A(f"v_readfirstlane_b32 {sT1}, v{vNEXT}")
        grab()
        ldyn = A.newlabel("L_dyn"); ldec = A.newlabel("L_dec")
        A(f"s_cmp_lt_i32 {sT0}, 0"); A(f"s_cbranch_scc0 {ldyn}")
        A(f"s_and_b32 {sT2}, {sT0}, 0xffff"); A(f"s_add_u32 {sT2}, {sT2}, {sSB}")
        A(f"s_cmp_eq_u32 {sT2}, {sT2}")
        A(f"s_branch {ldec}")
        A.label(ldyn)
        A(f"s_add_u32 {sT2}, {sT0}, {DYN0}"); A(f"s_and_b32 {sT2}, {sT2}, 2047")
        if xflag:
            lok = A.newlabel("L_ok")
            A(f"s_cmp_lt_u32 {sT0}, {RT}"); A(f"s_cbranch_scc1 {ldec}")
            A(f"s_cmp_lg_u32 {sSTOP}, 0"); A(f"s_cbranch_scc1 {lok}")
            A(f"s_mov_b32 {sSTOP}, 1")
            A(f"v_mov_b32 v{vt3}, 0x10000")
            A("s_mov_b64 exec, 1")
            A(f"ds_add_u32 v{vCA}, v{vt3} offset:{L_CNT}")
            A("s_mov_b64 exec, -1")
            A.label(lok)
            A(f"s_cmp_lt_u32 {sT0}, {RT}")
        else:
            A(f"s_cmp_lt_u32 {sT0}, {RT}")
            A(f"s_cselect_b32 {sSTOP}, {sSTOP}, 1")
        A.label(ldec)
        A(f"s_cselect_b32 s{sVAL+s}, 1, 0"); A(f"s_cselect_b32 s6, {sNREC}, 0"); A(f"s_cselect_b32 s10, {sNREC}, 0")
        A(f"s_lshl_b32 {sKOFF}, {sT2}, 12"); A(f"s_add_u32 {sKOFF}, {sKOFF}, {sBASE}")
        lst = A.newlabel("L_rst"); lrd = A.newlabel("L_rdone")
        A(f"s_cmp_lt_u32 {sT1}, {sSTC}"); A(f"s_cbranch_scc1 {lst}")
        A(f"v_mov_b32 v{vNX[s]}, 0x7fffffff")
        A(f"s_cmp_lg_u32 {sSTOP}, 0"); A(f"s_cbranch_scc1 {lrd}")
        if xflag:
            A(f"s_cmp_ge_u32 {sT1}, 0x10000"); A(f"s_cbranch_scc1 {lrd}")
        A(f"v_mov_b32 v{vNX[s]}, 1")
        A("s_mov_b64 exec, 1")
        A(f"buffer_atomic_add v{vNX[s]}, v{vCA}, {SWS}, {sCOFF} offen sc0 sc1")
        A("s_mov_b64 exec, -1")
        A(f"s_branch {lrd}")
        A.label(lst)
        A(f"s_or_b32 {sT1}, {sT1}, 0x80000000"); A(f"v_mov_b32 v{vNX[s]}, {sT1}")
        A.label(lrd)
        issue_k(s, sKOFF)
        softmax_update(vS, vP, vm, vl, vO, vt0, vt1, vt2)
        A(f"s_waitcnt vmcnt({NW})")
        pv(vO, vP, lambda t: vreg(s, t))
        issue_v(s, sKOFF)
    A("s_branch L_loop")
    A.label("L_sdone")
    xgroup_reduce("v_add_f32", vl, vt0)
    A(f"v_and_b32 v{vt1}, 7, v{vN}"); A(f"v_lshl_add_u32 v{vt1}, v{vG}, 5, v{vt1}"); A(f"v_lshlrev_b32 v{vt1}, 2, v{vt1}")
    A(f"s_lshl_b32 {sT0}, {sWAVE}, 9"); A(f"v_add_u32 v{vt1}, {sT0}, v{vt1}")
    A(f"s_lshl_b32 {sT0}, {sWAVE}, 3"); A(f"v_mov_b32 v{vt2}, {sT0}")
    for r in range(4): A(f"ds_write_b32 v{vt1}, v{vO+r} offset:{L_OPART + r*32}")
    A(f"ds_write_b64 v{vt2}, {vr(vm,2)} offset:{L_ML}")
    A("s_waitcnt lgkmcnt(0)")
    stamp(2)
    A("s_barrier")
    if noB:
        A("s_endpgm")
    else:
        A(f"s_cmp_eq_u32 {sWAVE}, 0"); A("s_cbranch_scc1 L_btail")
        A("s_endpgm")
        A.label("L_btail")
        sreg[0], sreg[1] = 90, 91
        A("s_setprio 3")
        A(f"v_mov_b32 v{vt1}, 0")
        A(f"ds_read_b32 v{vt0}, v{vt1} offset:{L_EP}")
        A(f"s_add_u32 {sHD}, {sH}, 32")
        tail_prep()
        A("s_waitcnt lgkmcnt(0)")
        A(f"v_readfirstlane_b32 {sE}, v{vt0}")
        A("s_branch L_tail")
    sreg[0], sreg[1] = 54, 55
    A.label("L_s_prod")
    A("s_setprio 2")
    qprod_issue()
    masks()
    A("s_waitcnt vmcnt(0)")
    stamp(12)
    qprod_compute()
    A("s_setprio 0")
    for s in range(D): issue_tile(s)
    A("s_branch L_s_join")

    A.label("L_service")
    sreg[0], sreg[1] = 254, 255
    A("s_setprio 3")
    srd(SDBG, 54, 256)
    A(f"v_mov_b32 v{vt1}, 0")
    A(f"s_cmp_lg_u32 {sWG}, 0"); A("s_cbranch_scc1 L_v_noep0")
    A("s_memrealtime s[90:91]")
    A("s_waitcnt lgkmcnt(0)")
    A(f"s_max_u32 {sE}, s90, 1")
    A(f"v_mov_b32 v{vt0}, {sE}")
    A("s_mov_b64 exec, 1")
    A(f"buffer_store_dword v{vt0}, v{vt1}, {SDBG}, 0 offen sc1")
    A("s_mov_b64 exec, -1")
    A.label("L_v_noep0")
    A(f"s_cmp_lg_u32 {sS}, 0"); A("s_cbranch_scc1 L_v_nozero")
    A(f"s_lshl_b32 {sT0}, {sH}, 8"); A(f"s_add_u32 {sT0}, {sT0}, {WS_CNT}")
    A("s_mov_b64 exec, 1")
    A(f"buffer_store_dword v{vt1}, v{vt1}, {SWS}, {sT0} offen sc1")
    A("s_mov_b64 exec, -1")
    A.label("L_v_nozero")
    masks()
    A(f"v_mov_b32 v{vt0}, {2*D*NSW}"); A(f"v_mov_b32 v{vt1}, 0")
    A(f"ds_write_b32 v{vt1}, v{vt0} offset:{L_CNT}")
    A(f"s_mov_b32 {sTO}, {TMO}")
    A.label("L_ep_loop")
    A(f"buffer_load_dword v{vt0}, v{vt1}, {SDBG}, 0 offen sc1")
    A("s_waitcnt vmcnt(0)")
    A(f"v_readfirstlane_b32 {sE}, v{vt0}")
    A("s_nop 3")
    A(f"s_cmp_lg_u32 {sE}, 0"); A("s_cbranch_scc1 L_ep_done")
    A(f"s_sleep {sleep}")
    A(f"s_sub_u32 {sTO}, {sTO}, 1"); A(f"s_cmp_lg_u32 {sTO}, 0"); A("s_cbranch_scc1 L_ep_loop")
    A.label("L_ep_done")
    stamp(11)
    vLO8 = vt5
    A(f"v_lshlrev_b32 v{vLO8}, 3, v{vLANE}")
    A(f"s_cmp_ge_u32 {sS}, 4"); A("s_cbranch_scc1 L_v_noprod3")
    A(f"v_and_b32 v{vt1}, 31, v{vLANE}"); A(f"v_lshlrev_b32 v{vt1}, 3, v{vt1}")
    A(f"s_lshr_b32 {sT0}, {sS}, 1"); A(f"s_lshl_b32 {sT0}, {sT0}, 5"); A(f"s_add_u32 {sT0}, {sT0}, {sH}"); A(f"s_lshl_b32 {sT0}, {sT0}, 9")
    A(f"s_and_b32 {sT1}, {sS}, 1"); A(f"s_lshl_b32 {sT1}, {sT1}, 8"); A(f"s_add_u32 {sT0}, {sT0}, {sT1}"); A(f"s_add_u32 {sT0}, {sT0}, {WS_QF}")
    A("s_barrier")
    for k in range(2*NSW): A(f"ds_read_b64 {vr(WQ+2*k,2)}, v{vt1} offset:{L_QPART + k*256}")
    A("s_waitcnt lgkmcnt(0)")
    for k in range(1, 2*NSW):
        A(f"v_add_f32 v{WQ}, v{WQ}, v{WQ+2*k}"); A(f"v_add_f32 v{WQ+1}, v{WQ+1}, v{WQ+2*k+1}")
    A(f"v_cvt_pk_bf16_f32 v{vB0}, v{WQ}, v{WQ+1}"); A(f"v_mov_b32 v{vB0+1}, {sE}")
    A("s_mov_b32 exec_hi, 0")
    A(f"buffer_store_dwordx2 {vr(vB0,2)}, v{vt1}, {SWS}, {sT0} offen sc1")
    A("s_mov_b64 exec, -1")
    stamp(3)
    A.label("L_v_noprod3")
    A(f"s_lshl_b32 {sT0}, {sH}, 9"); A(f"s_add_u32 {sT0}, {sT0}, {WS_QF}")
    lab = poll_begin()
    A(f"buffer_load_dwordx2 {vr(vQ,2)}, v{vLO8}, {SWS}, {sT0} offen sc1")
    poll_end(lab, [vQ + 1], sleep)
    A(f"v_lshlrev_b32 v{vt2}, 2, v{vLANE}")
    A(f"ds_write_b32 v{vt2}, v{vQ} offset:{L_QA}")
    A(f"v_mov_b32 v{vt0}, {sE}"); A(f"v_mov_b32 v{vt1}, 0")
    A(f"ds_write_b32 v{vt1}, v{vt0} offset:{L_EP}")
    A("s_waitcnt lgkmcnt(0)")
    A("s_barrier")
    if noB:
        A("s_barrier"); A("s_endpgm")
    PBR = 64
    A(f"s_cmp_lt_u32 {sS}, 6"); A("s_cbranch_scc1 L_v_noB")
    srd(SK, 44, 0x4000000); srd(SV, 46, 0x4000000)
    A(f"s_lshl_b32 {sT0}, {sH}, 1"); A(f"s_add_u32 {sT0}, {sT0}, {sS}"); A(f"s_sub_u32 {sT0}, {sT0}, 6")
    A(f"s_lshr_b32 {sT1}, {sT0}, 3"); A(f"s_and_b32 {sBU}, {sT0}, 7")
    A(f"s_lshl_b32 {sBB}, {sT1}, 23"); A(f"s_add_u32 {sBB}, {sBB}, {28672*256}"); A(f"s_lshl_b32 {sT2}, {sBU}, 12"); A(f"s_add_u32 {sBB}, {sBB}, {sT2}")
    A(f"s_mul_i32 {sBJ}, {sT0}, {brot}")
    A(f"s_mov_b32 {sBN}, 28")
    A(f"s_mov_b32 {sNREC}, 0x4000000")
    def boff():
        A(f"s_and_b32 {sKOFF}, {sBJ}, 31"); A(f"s_lshl_b32 {sKOFF}, {sKOFF}, 15"); A(f"s_add_u32 {sKOFF}, {sKOFF}, {sBB}"); A(f"s_add_u32 {sBJ}, {sBJ}, 1")
    for s in range(4):
        boff(); issue_k(s, sKOFF); issue_v(s, sKOFF)
    A(f"s_lshl_b32 {sT0}, {sT1}, 11"); A(f"s_add_u32 {sT0}, {sT0}, {WS_QF + 32*512}")
    lab = poll_begin()
    for hh in range(4):
        A(f"buffer_load_dwordx2 {vr(vQ+2*hh,2)}, v{vLO8}, {SWS}, {sT0} offen offset:{hh*512} sc1")
    poll_end(lab, [vQ + 2 * hh + 1 for hh in range(4)], 16)
    for hh in range(4): A(f"ds_write_b32 v{vt2}, v{vQ+2*hh} offset:{L_QB + hh*256}")
    A("s_waitcnt lgkmcnt(0)")
    QBp = [vQ, WQ]
    stO = [vO, 232]; stS = [vS, 236]; stP = [vP, 240]; stm = [vm, 244]; stl = [vl, 245]
    A(f"v_lshrrev_b32 v{vt3}, 3, v{vN}"); A(f"v_lshlrev_b32 v{vt3}, 8, v{vt3}"); A(f"v_lshl_add_u32 v{vt3}, v{vG}, 4, v{vt3}")
    for pp in range(2):
        for i in range(4): A(f"ds_read_b128 {vr(QBp[pp]+4*i,4)}, v{vt3} offset:{L_QB + pp*512 + i*64}")
        A(f"v_mov_b32 v{stm[pp]}, 0xff800000"); A(f"v_mov_b32 v{stl[pp]}, 0")
        for r in range(4): A(f"v_mov_b32 v{stO[pp]+r}, 0")
    A("s_waitcnt lgkmcnt(0)")
    stamp(4)
    A.label("L_bloop")
    for s in range(4):
        A("s_waitcnt vmcnt(28)")
        for pp in range(2):
            for i in range(4): mfma(stS[pp], kreg(s, i), QBp[pp] + 4 * i, None if i == 0 else stS[pp])
        A(f"s_cmp_gt_i32 {sBN}, 0"); A(f"s_cselect_b32 s6, {sNREC}, 0"); A(f"s_cselect_b32 s10, {sNREC}, 0")
        boff(); issue_k(s, sKOFF)
        for pp in range(2): softmax_update(stS[pp], stP[pp], stm[pp], stl[pp], stO[pp], vt0, vt1, vt2)
        A("s_waitcnt vmcnt(28)")
        for pp in range(2): pv(stO[pp], stP[pp], lambda t: vreg(s, t))
        issue_v(s, sKOFF)
        A(f"s_sub_u32 {sBN}, {sBN}, 1")
    A(f"s_cmp_gt_i32 {sBN}, -4"); A("s_cbranch_scc1 L_bloop")
    A("s_waitcnt vmcnt(0)")
    A(f"v_and_b32 v{vt1}, 7, v{vN}"); A(f"v_lshl_add_u32 v{vt1}, v{vG}, 5, v{vt1}"); A(f"v_lshrrev_b32 v{vt2}, 3, v{vN}"); A(f"v_lshl_add_u32 v{vt1}, v{vt2}, 7, v{vt1}")
    A(f"v_lshlrev_b32 v{vt1}, 2, v{vt1}")
    A("s_nop 3")
    for pp in range(2):
        for r in range(4): A(f"ds_write_b32 v{vt1}, v{stO[pp]+r} offset:{L_OB + pp*1024 + r*32}")
        xgroup_reduce("v_add_f32", stl[pp], vt0)
        R = PBR + 16 + pp * 4
        A(f"v_mov_b32 v{R}, v{stm[pp]}"); A(f"v_mov_b32 v{R+1}, {sE}"); A(f"v_mov_b32 v{R+2}, v{stl[pp]}"); A(f"v_mov_b32 v{R+3}, {sE}")
    A("s_waitcnt lgkmcnt(0)")
    for hh in range(4): A(f"ds_read_b64 {vr(vQ+2*hh,2)}, v{vLO8} offset:{L_OB + hh*512}")
    A("s_waitcnt lgkmcnt(0)")
    for hh in range(4):
        R = PBR + hh * 4
        A(f"v_mov_b32 v{R}, v{vQ+2*hh}"); A(f"v_mov_b32 v{R+1}, {sE}"); A(f"v_mov_b32 v{R+2}, v{vQ+2*hh+1}"); A(f"v_mov_b32 v{R+3}, {sE}")
    sPB0, sPB1, sML0 = "s76", "s77", "s78"
    vBML = 88
    A(f"s_lshr_b32 {sT0}, {sH}, 2"); A(f"s_lshl_b32 {sT0}, {sT0}, 5"); A(f"s_add_u32 {sT0}, {sT0}, {sBU}"); A(f"s_add_u32 {sT0}, {sT0}, 256")
    A(f"s_lshl_b32 {sPB0}, {sT0}, 10"); A(f"s_add_u32 {sPB0}, {sPB0}, {WS_P}")
    A(f"s_lshl_b32 {sML0}, {sT0}, 4"); A(f"s_add_u32 {sML0}, {sML0}, {WS_ML}")
    A.label("L_v_noB")
    sreg[0], sreg[1] = 90, 91
    A(f"v_lshrrev_b32 v{vBML}, 3, v{vN}"); A(f"v_lshlrev_b32 v{vBML}, 7, v{vBML}")
    wo_issue(40)
    A(f"s_mov_b32 {sHD}, {sH}")
    tail_prep()
    def pb_publish(lab):
        A(f"s_cmp_lt_u32 {sS}, 6"); A(f"s_cbranch_scc1 {lab}")
        for hh in range(4):
            A(f"buffer_store_dwordx4 {vr(PBR+hh*4,4)}, v{vA16}, {SWS}, {sPB0} offen sc1")
            if hh < 3: A(f"s_add_u32 {sPB0}, {sPB0}, 8192")
        A("s_mov_b64 exec, 0x101")
        for pp in range(2):
            A(f"buffer_store_dwordx4 {vr(PBR+16+pp*4,4)}, v{vBML}, {SWS}, {sML0} offen offset:{pp*256} sc1")
        A("s_mov_b64 exec, -1")
        A.label(lab)
    if pbthr:
        A(f"s_cmp_lt_u32 {sS}, 6"); A("s_cbranch_scc1 L_v_pbdone")
        A(f"v_mov_b32 v{vt1}, 0"); A(f"s_mov_b32 {sTO}, {TMO}")
        A.label("L_v_cntpoll")
        A(f"ds_read_b32 v{vt0}, v{vt1} offset:{L_CNT}")
        A("s_waitcnt lgkmcnt(0)")
        A(f"v_readfirstlane_b32 {sT0}, v{vt0}")
        A("s_nop 3")
        A(f"s_cmp_ge_u32 {sT0}, {pbthr}"); A("s_cbranch_scc1 L_v_cntok")
        A("s_sleep 16")
        A(f"s_sub_u32 {sTO}, {sTO}, 1"); A(f"s_cmp_lg_u32 {sTO}, 0"); A("s_cbranch_scc1 L_v_cntpoll")
        A.label("L_v_cntok")
        pb_publish("L_v_pbdone")
    A(f"v_mov_b32 v{vt2}, 0")
    A(f"s_lshl_b32 {sT0}, {sH}, 3"); A(f"s_add_u32 {sT0}, {sT0}, {sS}"); A(f"s_lshl_b32 {sT1}, {sT0}, 4"); A(f"s_lshl_b32 {sT0}, {sT0}, 10")
    A(f"s_add_u32 {sT0}, {sT0}, {WS_P}"); A(f"s_add_u32 {sT1}, {sT1}, {WS_ML}")
    A(f"v_mov_b32 v{vB0+1}, {sE}"); A(f"v_mov_b32 v{vB0+3}, {sE}"); A(f"v_mov_b32 v{vB1+1}, {sE}"); A(f"v_mov_b32 v{vB1+3}, {sE}")
    A("s_barrier")
    stamp(8)
    MLW = PO + 16
    for w in range(NSW):
        A(f"ds_read_b64 {vr(MLW+2*w,2)}, v{vt2} offset:{L_ML + w*8}")
    for w in range(NSW):
        A(f"ds_read_b64 {vr(PO+2*w,2)}, v{vA8} offset:{L_OPART + w*512}")
    A(f"s_waitcnt lgkmcnt({NSW})")
    A(f"v_max_f32 v{vB1}, v{MLW}, v{MLW+2}")
    A(f"v_max3_f32 v{vB1}, v{MLW+4}, v{MLW+6}, v{vB1}")
    for w in range(NSW): A(f"v_sub_f32 v{MLW+2*w}, v{MLW+2*w}, v{vB1}")
    for w in range(NSW): A(f"v_mul_f32 v{MLW+2*w}, {sC}, v{MLW+2*w}")
    for w in range(NSW): A(f"v_exp_f32 v{MLW+2*w}, v{MLW+2*w}")
    A("s_waitcnt lgkmcnt(0)")
    A(f"v_mul_f32 v{vB0}, v{PO}, v{MLW}"); A(f"v_mul_f32 v{vB0+2}, v{PO+1}, v{MLW}"); A(f"v_mul_f32 v{vB1+2}, v{MLW+1}, v{MLW}")
    for w in range(1, NSW):
        A(f"v_fma_f32 v{vB0}, v{PO+2*w}, v{MLW+2*w}, v{vB0}"); A(f"v_fma_f32 v{vB0+2}, v{PO+2*w+1}, v{MLW+2*w}, v{vB0+2}")
        A(f"v_fma_f32 v{vB1+2}, v{MLW+2*w+1}, v{MLW+2*w}, v{vB1+2}")
    A(f"buffer_store_dwordx4 {vr(vB0,4)}, v{vA16}, {SWS}, {sT0} offen sc1")
    A("s_mov_b64 exec, 1")
    A(f"buffer_store_dwordx4 {vr(vB1,4)}, v{vt2}, {SWS}, {sT1} offen sc1")
    A("s_mov_b64 exec, -1")
    if not pbthr: pb_publish("L_v_pbdone")
    A.label("L_tail")
    tail()
    A.label("L_end")
    A("s_endpgm")

    out = HEADER + f"; @launch grid=(256,1,1) block=({(NSW+1)*64},1,1) lds={LDS_SIZE}\n"
    out += '.amdgcn_target "amdgcn-amd-amdhsa--gfx950"\n.text\n' + f".globl {KNAME}\n.p2align 8\n.type {KNAME},@function\n{KNAME}:\n"
    out += "\n".join(A.L) + "\n"
    out += f""".section .rodata,"a"
.p2align 6
.amdhsa_kernel {KNAME}
  .amdhsa_next_free_vgpr 256
  .amdhsa_next_free_sgpr 102
  .amdhsa_accum_offset 256
  .amdhsa_group_segment_fixed_size 0
  .amdhsa_kernarg_size 104
  .amdhsa_user_sgpr_count 2
  .amdhsa_user_sgpr_kernarg_segment_ptr 1
  .amdhsa_system_sgpr_workgroup_id_x 1
.end_amdhsa_kernel
"""
    return out

if __name__ == "__main__":
    cfg = json.loads(sys.argv[2]) if len(sys.argv) > 2 else {}
    open(sys.argv[1], "w").write(gen(**cfg))
```

```python
import sys, json, math, struct
from gen import HEADER, KNAME, G, vr, f2u, CSCALE

WS_CNT  = 0x1000
WS_QF   = 0x10000
WS_BAL  = 0x18000
WS_ML   = 0x20000
WS_P    = 0x100000
WS_Y    = 0x200000
WS_TS   = 0x800000
WS_SIZE = 0x1000000

L_QPART = 0
L_QA    = 4096
L_QB    = 4352
L_OPART = 6144
L_OB    = 8192
L_ML    = 10240
L_CNT   = 10304
L_EP    = 10312
L_DYN   = 10320
LDS_SIZE = 12288

def gen(ts=False, kflags="nt", sleep=2, tsleep=1, hmap=1, ST=224, noB=False, D=4, pbthr=0, TMO=0x8000, NSW=4, brot=5, STR=None, xflag=True, early=False, X1=16, X2=0, bsl=4, latewo=3, K1=64, K2=24, XS=0, ilv=False, KB=32, KP=8):
    A = G()
    if STR is None: STR = [ST] * 3
    roles = True
    RT = 2048 - (4 * STR[0] + 2 * STR[1] + 2 * STR[2])
    DYN0 = 2048 - RT
    sreg = [54, 55]
    sWG, sWAVE = "s2", "s3"
    SK, SV, SW, SWS, SX, SDBG, SOUT = "s[4:7]", "s[8:11]", "s[12:15]", "s[16:19]", "s[20:23]", "s[24:27]", "s[28:31]"
    sC = "s58"; sHD = "s59"; sH, sS = "s60", "s61"; sKOFF = "s62"; sSTOP = "s63"; sCOFF = "s64"
    sT0, sT1, sT2, sT3 = "s65", "s66", "s67", "s68"
    sE = "s69"; sSELLO, sSELHI = "s70", "s71"; sHALF = "s[72:73]"; sTO = "s74"; sNREC = "s75"
    sVAL = 76
    sBASE, sSB, sBB, sBU, sBJ, sBN = "s95", "s96", "s97", "s98", "s99", "s100"
    sSTC = "s93"
    vLANE, vN, vG, vKO, vVO = 0, 1, 2, 3, 4
    vM = 5; vT = 9
    vQ = 12; vO = 28; vS = 32; vP = 36; vB0 = 40; vB1 = 44; vm = 48; vl = 49
    vt0, vt1, vt2, vt3, vt4, vt5 = 50, 51, 52, 53, 54, 55
    vX = 56; vML = 60
    RING = 64
    def kreg(slot, i): return RING + slot * 32 + i * 4
    def vreg(slot, i): return RING + slot * 32 + 16 + i * 4
    WQ = 192
    WO = 192; PO = RING + 64
    assert D <= 4
    DPP = "row_mask:0xf bank_mask:0xf"

    def srd(dst, ptr_lo, nbytes):
        b = int(dst[2:].split(":")[0])
        A(f"s_mov_b32 s{b}, s{ptr_lo}"); A(f"s_mov_b32 s{b+1}, s{ptr_lo+1}")
        A(f"s_mov_b32 s{b+2}, {hex(nbytes)}"); A(f"s_mov_b32 s{b+3}, 0x00020000")
    def stamp(idx):
        if not ts: return
        A("s_memrealtime s[90:91]")
        A("s_lshl_b32 s92, s2, 3"); A("s_add_u32 s92, s92, s3"); A("s_lshl_b32 s92, s92, 6")
        A(f"s_add_u32 s92, s92, {WS_TS + idx*4}")
        A("s_waitcnt lgkmcnt(0)")
        A(f"v_mov_b32 v{sreg[0]}, s90"); A(f"v_mov_b32 v{sreg[1]}, 0")
        A(f"buffer_store_dword v{sreg[0]}, v{sreg[1]}, {SWS}, s92 offen")
    def xgroup_reduce(op, v, tmp):
        A(f"v_mov_b32 v{tmp}, v{v}"); A("s_nop 1")
        A(f"v_permlane16_swap_b32 v{v}, v{tmp}")
        A(f"{op} v{v}, v{v}, v{tmp}")
        A(f"v_mov_b32 v{tmp}, v{v}"); A("s_nop 1")
        A(f"v_permlane32_swap_b32 v{v}, v{tmp}")
        A(f"{op} v{v}, v{v}, v{tmp}")
    def mfma(d, a, b, c):
        cs = "0" if c is None else vr(c, 4)
        A(f"v_mfma_f32_16x16x32_bf16 {vr(d,4)}, {vr(a,4)}, {vr(b,4)}, {cs}")
    def softmax_update(S, P, m, l, O, t0, t1, t2):
        A(f"v_max_f32 v{t0}, v{S}, v{S+1}")
        A(f"v_max3_f32 v{t0}, v{S+2}, v{S+3}, v{t0}")
        A(f"v_mov_b32 v{t1}, v{t0}"); A("s_nop 1")
        A(f"v_permlane16_swap_b32 v{t0}, v{t1}")
        A(f"v_max_f32 v{t0}, v{t0}, v{t1}")
        A(f"v_mov_b32 v{t1}, v{t0}"); A("s_nop 1")
        A(f"v_permlane32_swap_b32 v{t0}, v{t1}")
        A(f"v_max3_f32 v{t0}, v{t0}, v{t1}, v{m}")
        A(f"v_mul_f32 v{t1}, {sC}, v{t0}")
        A(f"v_fma_f32 v{t2}, v{m}, {sC}, -v{t1}")
        for r in range(4): A(f"v_fma_f32 v{P+r}, v{S+r}, {sC}, -v{t1}")
        A(f"v_exp_f32 v{t2}, v{t2}")
        for r in range(4): A(f"v_exp_f32 v{P+r}, v{P+r}")
        A(f"v_mov_b32 v{m}, v{t0}")
        A(f"v_fma_f32 v{l}, v{l}, v{t2}, v{P}")
        A(f"v_add_f32 v{t1}, v{P+1}, v{P+2}")
        for r in range(4): A(f"v_mul_f32 v{O+r}, v{O+r}, v{t2}")
        A(f"v_add_f32 v{l}, v{l}, v{P+3}")
        A(f"v_add_f32 v{l}, v{l}, v{t1}")
    def pv(O, P, vbase_fn):
        for t in range(4):
            B = vB0 if t % 2 == 0 else vB1
            A(f"v_cvt_pk_bf16_f32 v{vt0}, v{P+t}, v{P+t}")
            for r in range(4): A(f"v_and_b32 v{B+r}, v{vt0}, v{vM+r}")
            A("s_nop 1")
            mfma(O, vbase_fn(t), B, O)
    def issue_k(slot, soff):
        for i in range(4):
            A(f"buffer_load_dwordx4 {vr(kreg(slot,i),4)}, v{vKO}, {SK}, {soff} offen offset:{i*64} {kflags}")
    def issue_v(slot, soff):
        for i in range(4):
            A(f"buffer_load_dwordx4 {vr(vreg(slot,i),4)}, v{vVO}, {SV}, {soff} offen offset:{i*256} {kflags}")
    def poll_begin():
        lab = A.newlabel("L_poll")
        A(f"s_mov_b32 {sTO}, {TMO}")
        A.label(lab)
        return lab
    def poll_end(lab, tagregs, sl):
        done = A.newlabel("L_pdone")
        A("s_waitcnt vmcnt(0)")
        tr = list(tagregs)
        A(f"v_xor_b32 v{vt0}, {sE}, v{tr[0]}")
        k = 1
        while k < len(tr):
            if k + 1 < len(tr):
                A(f"v_xor_b32 v{vt1}, {sE}, v{tr[k]}"); A(f"v_xor_b32 v{vT}, {sE}, v{tr[k+1]}")
                A(f"v_or3_b32 v{vt0}, v{vt0}, v{vt1}, v{vT}"); k += 2
            else:
                A(f"v_xor_b32 v{vt1}, {sE}, v{tr[k]}"); A(f"v_or_b32 v{vt0}, v{vt0}, v{vt1}"); k += 1
        A(f"v_cmp_ne_u32 vcc, 0, v{vt0}")
        A("s_nop 4")
        A(f"s_cbranch_vccz {done}")
        while sl > 0:
            A(f"s_sleep {min(sl,127)}"); sl -= 127
        A(f"s_sub_u32 {sTO}, {sTO}, 1")
        A(f"s_cmp_lg_u32 {sTO}, 0")
        A(f"s_cbranch_scc1 {lab}")
        A.label(done)
    def wo_issue(ptr_lo):
        srd(SW, ptr_lo, 0x400000)
        A(f"v_lshlrev_b32 v{vt1}, 14, v{vG}")
        A(f"v_lshl_add_u32 v{vt1}, v{vN}, 4, v{vt1}")
        A(f"s_lshl_b32 {sT0}, {sH}, 17")
        A(f"s_lshr_b32 {sT1}, {sS}, 2"); A(f"s_lshl_b32 {sT1}, {sT1}, 16"); A(f"s_add_u32 {sT0}, {sT0}, {sT1}")
        A(f"s_and_b32 {sT1}, {sS}, 3"); A(f"s_lshl_b32 {sT1}, {sT1}, 8"); A(f"s_add_u32 {sT0}, {sT0}, {sT1}")
        for a in range(4):
            if a: A(f"s_add_u32 {sT0}, {sT0}, 4096")
            for b in range(4):
                t = a * 4 + b
                A(f"buffer_load_dwordx4 {vr(WO+4*t,4)}, v{vt1}, {SW}, {sT0} offen offset:{b*1024} {kflags}")
    sPA0, sPA1, sMLA, sYP, sYG, sOUTO, sRED = "s84", "s85", "s86", "s87", "s88", "s89", "s94"
    vAML, vA8, vAY, vA16, vAO = 12, 13, 14, 15, 16
    def tail_prep():
        srd(SOUT, 52, 2048)
        A(f"v_and_b32 v{vAML}, 7, v{vLANE}"); A(f"v_lshlrev_b32 v{vAML}, 4, v{vAML}")
        A(f"v_lshlrev_b32 v{vA8}, 3, v{vLANE}")
        A(f"v_lshlrev_b32 v{vAY}, 4, v{vN}"); A(f"v_lshl_add_u32 v{vAY}, v{vG}, 14, v{vAY}")
        A(f"v_lshlrev_b32 v{vA16}, 4, v{vLANE}")
        A(f"v_and_b32 v{vAO}, 7, v{vN}"); A(f"v_lshrrev_b32 v{vt2}, 3, v{vN}"); A(f"v_lshl_add_u32 v{vAO}, v{vt2}, 4, v{vAO}"); A(f"v_lshlrev_b32 v{vAO}, 1, v{vAO}")
        A(f"s_lshl_b32 {sMLA}, {sHD}, 7"); A(f"s_add_u32 {sMLA}, {sMLA}, {WS_ML}")
        A(f"s_lshl_b32 {sPA0}, {sHD}, 13"); A(f"s_lshr_b32 {sT1}, {sS}, 2"); A(f"s_lshl_b32 {sT1}, {sT1}, 9")
        A(f"s_add_u32 {sPA0}, {sPA0}, {sT1}"); A(f"s_add_u32 {sPA0}, {sPA0}, {WS_P}"); A(f"s_add_u32 {sPA1}, {sPA0}, 4096")
        A(f"s_lshr_b32 {sT2}, {sHD}, 5")
        A(f"s_lshl_b32 {sYP}, {sT2}, 18"); A(f"s_add_u32 {sYP}, {sYP}, {WS_Y}"); A(f"s_mov_b32 {sYG}, {sYP}")
        A(f"s_and_b32 {sT0}, {sS}, 3"); A(f"s_lshl_b32 {sT0}, {sT0}, 16"); A(f"s_add_u32 {sYP}, {sYP}, {sT0}")
        A(f"s_lshl_b32 {sT0}, {sH}, 1"); A(f"s_lshr_b32 {sT1}, {sS}, 2"); A(f"s_add_u32 {sT0}, {sT0}, {sT1}"); A(f"s_lshl_b32 {sT0}, {sT0}, 8"); A(f"s_add_u32 {sYP}, {sYP}, {sT0}")
        A(f"s_lshr_b32 {sT3}, {sWG}, 4"); A(f"s_lshl_b32 {sT0}, {sT3}, 14"); A(f"s_add_u32 {sYG}, {sYG}, {sT0}")
        A(f"s_lshl_b32 {sOUTO}, {sT3}, 6"); A(f"s_lshl_b32 {sT0}, {sT2}, 10"); A(f"s_add_u32 {sOUTO}, {sOUTO}, {sT0}")
        A(f"s_and_b32 {sT0}, {sT3}, 7"); A(f"s_lshl_b32 {sT1}, {sT2}, 3"); A(f"s_add_u32 {sT0}, {sT0}, {sT1}")
        A(f"s_and_b32 {sT1}, {sWG}, 15"); A(f"s_cmp_eq_u32 {sT0}, {sT1}"); A(f"s_cselect_b32 {sRED}, 1, 0")
    def tail():
        NP = 8
        lab = poll_begin()
        A(f"buffer_load_dwordx4 {vr(vML,4)}, v{vAML}, {SWS}, {sMLA} offen sc1")
        for p in range(NP):
            A(f"buffer_load_dwordx2 {vr(PO+2*p,2)}, v{vA8}, {SWS}, {sPA0 if p < 4 else sPA1} offen offset:{(p%4)*1024} sc1")
        poll_end(lab, [vML + 1, vML + 3] + [PO + 2 * p + 1 for p in range(NP)], tsleep)
        if not early: stamp(5)
        A(f"v_max_f32_dpp v{vt0}, v{vML}, v{vML} quad_perm:[1,0,3,2] {DPP}"); A("s_nop 1")
        A(f"v_max_f32_dpp v{vt0}, v{vt0}, v{vt0} quad_perm:[2,3,0,1] {DPP}"); A("s_nop 1")
        A(f"v_max_f32_dpp v{vt0}, v{vt0}, v{vt0} row_half_mirror {DPP}")
        A(f"v_sub_f32 v{vt1}, v{vML}, v{vt0}"); A(f"v_mul_f32 v{vt1}, {sC}, v{vt1}"); A(f"v_exp_f32 v{vt1}, v{vt1}")
        A("s_nop 0")
        A(f"v_mul_f32 v{vt2}, v{vt1}, v{vML+2}"); A("s_nop 0")
        A(f"v_mul_f32_dpp v{vt3}, v{vt1}, v{PO} row_newbcast:0 {DPP}")
        A(f"v_add_f32_dpp v{vt2}, v{vt2}, v{vt2} quad_perm:[1,0,3,2] {DPP}")
        A(f"v_fmac_f32_dpp v{vt3}, v{vt1}, v{PO+2} row_newbcast:1 {DPP}")
        A(f"v_fmac_f32_dpp v{vt3}, v{vt1}, v{PO+4} row_newbcast:2 {DPP}")
        A(f"v_add_f32_dpp v{vt2}, v{vt2}, v{vt2} quad_perm:[2,3,0,1] {DPP}")
        A(f"v_fmac_f32_dpp v{vt3}, v{vt1}, v{PO+6} row_newbcast:3 {DPP}")
        A(f"v_fmac_f32_dpp v{vt3}, v{vt1}, v{PO+8} row_newbcast:4 {DPP}")
        A(f"v_add_f32_dpp v{vt2}, v{vt2}, v{vt2} row_half_mirror {DPP}")
        A(f"v_fmac_f32_dpp v{vt3}, v{vt1}, v{PO+10} row_newbcast:5 {DPP}")
        A(f"v_rcp_f32 v{vt2}, v{vt2}")
        A(f"v_fmac_f32_dpp v{vt3}, v{vt1}, v{PO+12} row_newbcast:6 {DPP}")
        A(f"v_fmac_f32_dpp v{vt3}, v{vt1}, v{PO+14} row_newbcast:7 {DPP}")
        A(f"v_mul_f32 v{vt3}, v{vt3}, v{vt2}")
        A(f"v_cvt_pk_bf16_f32 v{vt3}, v{vt3}, v{vt3}")
        A("s_nop 1")
        BS = [PO + 16, PO + 20, PO + 24, PO + 28]
        def build(t):
            for r in range(4): A(f"v_and_b32_dpp v{BS[t%4]+r}, v{vt3}, v{vM+r} row_newbcast:{t} {DPP}")
        build(0); build(1)
        for t in range(16):
            acc = vS if t % 2 == 0 else vP
            mfma(acc, WO + 4 * t, BS[t % 4], None if t < 2 else acc)
            if t + 2 < 16: build(t + 2)
        A(f"v_mov_b32 v{vB0+1}, {sE}"); A(f"v_mov_b32 v{vB0+3}, {sE}")
        A("s_nop 6")
        for r in range(4): A(f"v_add_f32 v{vS+r}, v{vS+r}, v{vP+r}")
        A(f"v_cndmask_b32 v{vB0}, v{vS}, v{vS+2}, {sHALF}")
        A(f"v_cndmask_b32 v{vB0+2}, v{vS+1}, v{vS+3}, {sHALF}")
        A(f"buffer_store_dwordx4 {vr(vB0,4)}, v{vAY}, {SWS}, {sYP} offen sc1")
        if early:
            A(f"s_cmp_ge_u32 {sHD}, 32"); A("s_cbranch_scc1 L_afterB")
        stamp(6)
        A.label("L_tail2")
        A(f"s_cmp_eq_u32 {sRED}, 0"); A("s_cbranch_scc1 L_tail_end")
        A(f"s_add_u32 {sT0}, {sYG}, 4096"); A(f"s_add_u32 {sT1}, {sYG}, 8192"); A(f"s_add_u32 {sT2}, {sYG}, 12288")
        lab = poll_begin()
        for u in range(16):
            A(f"buffer_load_dwordx4 {vr(PO+4*u,4)}, v{vA16}, {SWS}, {[sYG,sT0,sT1,sT2][u//4]} offen offset:{(u%4)*1024} sc1")
        poll_end(lab, [PO + 4 * u + o for u in range(16) for o in (1, 3)], tsleep)
        for u in range(8):
            A(f"v_add_f32 v{PO+4*u}, v{PO+4*u}, v{PO+4*(u+8)}"); A(f"v_add_f32 v{PO+4*u+2}, v{PO+4*u+2}, v{PO+4*(u+8)+2}")
        for u in range(1, 8):
            A(f"v_add_f32 v{PO}, v{PO}, v{PO+4*u}"); A(f"v_add_f32 v{PO+2}, v{PO+2}, v{PO+4*u+2}")
        A(f"v_mov_b32 v{vt0}, v{PO}"); A(f"v_mov_b32 v{vt1}, v{PO+2}"); A("s_nop 0")
        A(f"v_permlane16_swap_b32 v{PO}, v{vt0}"); A(f"v_permlane16_swap_b32 v{PO+2}, v{vt1}")
        A(f"v_add_f32 v{PO}, v{PO}, v{vt0}"); A(f"v_add_f32 v{PO+2}, v{PO+2}, v{vt1}")
        A(f"v_mov_b32 v{vt0}, v{PO}"); A(f"v_mov_b32 v{vt1}, v{PO+2}"); A("s_nop 0")
        A(f"v_permlane32_swap_b32 v{PO}, v{vt0}"); A(f"v_permlane32_swap_b32 v{PO+2}, v{vt1}")
        A(f"v_add_f32 v{PO}, v{PO}, v{vt0}"); A(f"v_add_f32 v{PO+2}, v{PO+2}, v{vt1}")
        A(f"v_cvt_pk_bf16_f32 v{vt0}, v{PO}, v{PO+2}")
        A("s_mov_b64 exec, 0xffff")
        A(f"buffer_store_short v{vt0}, v{vAO}, {SOUT}, {sOUTO} offen")
        A(f"buffer_store_short_d16_hi v{vt0}, v{vAO}, {SOUT}, {sOUTO} offen offset:16")
        A("s_mov_b64 exec, -1")
        A.label("L_tail_end")
        stamp(7)
        A("s_endpgm")

    NBLK = 8 // NSW
    def qprod_issue():
        A(f"s_cmp_lt_u32 {sS}, 2")
        A("s_cselect_b32 s12, s38, s48"); A("s_cselect_b32 s13, s39, s49"); A("s_mov_b32 s14, 0x400000"); A("s_mov_b32 s15, 0x00020000")
        A("s_cselect_b32 s20, s32, s42"); A("s_cselect_b32 s21, s33, s43"); A("s_mov_b32 s22, 1024"); A("s_mov_b32 s23, 0x00020000")
        A(f"v_lshrrev_b32 v{vT}, 3, v{vN}"); A(f"v_lshl_add_u32 v{vT}, v{vG}, 1, v{vT}")
        A(f"v_lshlrev_b32 v{vT+1}, 4, v{vT}")
        A(f"v_lshlrev_b32 v{vT}, 16, v{vT}")
        A(f"v_and_b32 v{vT+2}, 7, v{vN}"); A(f"v_lshl_add_u32 v{vT}, v{vT+2}, 4, v{vT}")
        A(f"s_mul_i32 {sT1}, {sWAVE}, {128*NBLK}")
        for bk in range(NBLK):
            A(f"buffer_load_dwordx4 {vr(vX+4*bk,4)}, v{vT+1}, {SX}, {sT1} offen offset:{128*bk}")
        A(f"s_mul_i32 {sT0}, {sWAVE}, {NBLK << 19}"); A(f"s_lshl_b32 {sT1}, {sH}, 8"); A(f"s_add_u32 {sT0}, {sT0}, {sT1}")
        A(f"s_and_b32 {sT1}, {sS}, 1"); A(f"s_lshl_b32 {sT1}, {sT1}, 7"); A(f"s_add_u32 {sT0}, {sT0}, {sT1}")
        for bk in range(NBLK):
            for t in range(8):
                A(f"buffer_load_dwordx4 {vr(WQ+32*bk+4*t,4)}, v{vT}, {SW}, {sT0} offen {kflags}")
                if t < 7: A(f"s_add_u32 {sT0}, {sT0}, 8192")
            if bk < NBLK - 1: A(f"s_add_u32 {sT0}, {sT0}, {(64-7)*8192}")
    def qprod_compute():
        for bk in range(NBLK):
            for t in range(8):
                B = vB0 if t % 2 == 0 else vB1
                sel = sSELLO if t % 2 == 0 else sSELHI
                A(f"v_perm_b32 v{vt0}, v{vX+4*bk+t//2}, v{vX+4*bk+t//2}, {sel}")
                for r in range(4): A(f"v_and_b32 v{B+r}, v{vt0}, v{vM+r}")
                A("s_nop 1")
                mfma(vS, WQ + 32 * bk + 4 * t, B, None if (t == 0 and bk == 0) else vS)
        A(f"v_and_b32 v{vt1}, 7, v{vN}"); A(f"v_lshl_add_u32 v{vt1}, v{vG}, 5, v{vt1}"); A(f"v_lshlrev_b32 v{vt1}, 2, v{vt1}")
        A(f"s_lshl_b32 {sT0}, {sWAVE}, 9"); A(f"v_add_u32 v{vt1}, {sT0}, v{vt1}")
        A("s_mov_b32 exec_lo, 0x00ff00ff"); A("s_mov_b32 exec_hi, 0xff00ff00")
        A("s_nop 3")
        for r in range(4): A(f"ds_write_b32 v{vt1}, v{vS+r} offset:{L_QPART + r*32}")
        A("s_mov_b64 exec, -1")
        A("s_waitcnt lgkmcnt(0)")
        A("s_barrier")
    def masks():
        A(f"v_and_b32 v{vt0}, 1, v{vN}")
        A(f"v_mov_b32 v{vt1}, 0xffff")
        A(f"v_lshlrev_b32 v{vt0}, 4, v{vt0}")
        A(f"v_lshlrev_b32 v{vt1}, v{vt0}, v{vt1}")
        A(f"v_bfe_u32 v{vt0}, v{vN}, 1, 2")
        for r in range(4):
            A(f"v_cmp_eq_u32 vcc, {r}, v{vt0}"); A("s_nop 1")
            A(f"v_cndmask_b32 v{vM+r}, 0, v{vt1}, vcc")
        A(f"v_cmp_lt_u32 {sHALF}, 7, v{vN}")
        A(f"s_mov_b32 {sC}, {hex(f2u(CSCALE))}")
        A(f"s_mov_b32 {sSELLO}, 0x01000100"); A(f"s_mov_b32 {sSELHI}, 0x03020302")

    if ts: A("s_memrealtime s[86:87]")
    A(f"s_cmp_ge_u32 {sWG}, 256"); A("s_cbranch_scc1 L_end")
    A("s_load_dwordx16 s[32:47], s[0:1], 0")
    A("s_load_dwordx8 s[48:55], s[0:1], 64")
    A("s_load_dwordx2 s[56:57], s[0:1], 96")
    A(f"v_lshrrev_b32 v1, 6, v0"); A("v_and_b32 v0, 63, v0"); A("s_nop 0")
    A(f"v_readfirstlane_b32 {sWAVE}, v1")
    A(f"v_and_b32 v{vN}, 15, v0"); A(f"v_lshrrev_b32 v{vG}, 4, v0")
    A(f"v_lshlrev_b32 v{vKO}, 8, v{vN}"); A(f"v_lshl_add_u32 v{vKO}, v{vG}, 4, v{vKO}")
    A(f"v_lshlrev_b32 v{vVO}, 10, v{vG}"); A(f"v_lshl_add_u32 v{vVO}, v{vN}, 4, v{vVO}")
    A(f"s_lshr_b32 {sH}, {sWG}, 3")
    if hmap == 1: A(f"s_and_b32 {sS}, {sWG}, 7")
    else: A(f"s_add_u32 {sS}, {sWG}, {sH}"); A(f"s_and_b32 {sS}, {sS}, 7")
    A(f"s_lshl_b32 {sBASE}, {sH}, 23")
    a_, b_, c_ = STR
    A(f"s_mul_i32 {sSB}, {sS}, {a_}"); A(f"s_mov_b32 {sSTC}, {a_}")
    A(f"s_mul_i32 {sT0}, {sS}, {b_}"); A(f"s_add_u32 {sT0}, {sT0}, {4*a_ - 4*b_ & 0xffffffff}")
    A(f"s_cmp_ge_u32 {sS}, 4"); A(f"s_cselect_b32 {sSB}, {sT0}, {sSB}"); A(f"s_cselect_b32 {sSTC}, {b_}, {sSTC}")
    A(f"s_mul_i32 {sT0}, {sS}, {c_}"); A(f"s_add_u32 {sT0}, {sT0}, {(4*a_ + 2*b_ - 6*c_) & 0xffffffff}")
    A(f"s_cmp_ge_u32 {sS}, 6"); A(f"s_cselect_b32 {sSB}, {sT0}, {sSB}"); A(f"s_cselect_b32 {sSTC}, {c_}, {sSTC}")
    if ilv: A(f"s_lshl_b32 {sSB}, {sS}, 2")
    A(f"s_add_u32 {sT0}, {sSB}, {sWAVE}"); A(f"s_lshl_b32 {sKOFF}, {sT0}, 12"); A(f"s_add_u32 {sKOFF}, {sKOFF}, {sBASE}")
    A("s_waitcnt lgkmcnt(0)")
    srd(SWS, 56, WS_SIZE)
    stamp(0)
    if ts:
        A(f"s_add_u32 s92, s92, {13*4}"); A(f"v_mov_b32 v{sreg[0]}, s86")
        A(f"buffer_store_dword v{sreg[0]}, v{sreg[1]}, {SWS}, s92 offen")
    A(f"s_cmp_eq_u32 {sWAVE}, {NSW}"); A("s_cbranch_scc1 L_service")

    srd(SK, 34, 0x10000000); srd(SV, 36, 0x10000000)
    vNEXT, vCA, vONE = vT + 2, vT + 1, vT
    vNX = [56 + k for k in range(D)]
    def issue_tile(s):
        issue_k(s, sKOFF); issue_v(s, sKOFF); A(f"s_add_u32 {sKOFF}, {sKOFF}, {NSW*4096*(8 if ilv else 1)}")
    A(f"s_cmp_lt_u32 {sS}, 4"); A("s_cbranch_scc1 L_s_prod")
    for s in range(D + XS):
        issue_tile(s)
        if s == 0: stamp(14)
    masks()
    A.label("L_s_join")
    A(f"v_mov_b32 v{vm}, 0xff800000"); A(f"v_mov_b32 v{vl}, 0")
    for r in range(4): A(f"v_mov_b32 v{vO+r}, 0")
    for s in range(D):
        A(f"s_mov_b32 s{sVAL+s}, 1")
    A(f"s_mov_b32 {sSTOP}, 0")
    sDB, sDN = "s82", "s83"
    A(f"s_mov_b32 {sDB}, -1"); A(f"s_mov_b32 {sDN}, 0")
    A(f"s_mov_b32 {sNREC}, 0x10000000")
    A(f"v_lshlrev_b32 v{vt3}, 4, v{vG}")
    A(f"v_mov_b32 v{vCA}, 0"); A(f"v_mov_b32 v{vONE}, 1")
    A("s_barrier")
    for i in range(4): A(f"ds_read_b128 {vr(vQ+4*i,4)}, v{vt3} offset:{L_QA + i*64}")
    def grab():
        A("s_mov_b64 exec, 1")
        A(f"ds_add_rtn_u32 v{vNEXT}, v{vCA}, v{vONE} offset:{L_CNT}")
        A("s_mov_b64 exec, -1")
    grab()
    sWOF = "s101"
    if latewo & 2:
        A(f"s_cmp_lg_u32 {sWAVE}, 0"); A(f"s_cselect_b32 {sWOF}, 0, 1")
    if not noB and not early and not (latewo & 2):
        A(f"s_cmp_lg_u32 {sWAVE}, 0"); A("s_cbranch_scc1 L_s_nowo")
        wo_issue(50)
        A.label("L_s_nowo")
    A("s_waitcnt lgkmcnt(0)")
    stamp(1)
    NW = 8 * D - 4
    def step(s, nwk, nwv, refill=True, check=True):
        if check: A(f"s_cmp_eq_u32 s{sVAL+s}, 0"); A("s_cbranch_scc1 L_sdone")
        A(f"s_waitcnt vmcnt({nwk})")
        for i in range(4): mfma(vS, kreg(s, i), vQ + 4 * i, None if i == 0 else vS)
        if not refill:
            A("s_nop 7")
            softmax_update(vS, vP, vm, vl, vO, vt0, vt1, vt2)
            A(f"s_waitcnt vmcnt({nwv})")
            pv(vO, vP, lambda t: vreg(s, t))
            return
        A("s_waitcnt lgkmcnt(0)")
        A(f"v_readfirstlane_b32 {sT1}, v{vNEXT}")
        grab()
        ldyn = A.newlabel("L_dyn"); ldec = A.newlabel("L_dec"); lhave = A.newlabel("L_have"); lsp = A.newlabel("L_sp")
        if ts:
            lab = A.newlabel("L_nots")
            A(f"s_and_b32 s92, {sT1}, 15"); A("s_cmp_lg_u32 s92, 0"); A(f"s_cbranch_scc1 {lab}")
            A("s_memrealtime s[90:91]")
            A(f"s_lshl_b32 s92, s2, 7"); A(f"s_lshr_b32 s94, {sT1}, 2"); A("s_add_u32 s92, s92, s94"); A(f"s_add_u32 s92, s92, {WS_TS + 0x100000}")
            A("s_waitcnt lgkmcnt(0)")
            A(f"v_mov_b32 v{vt3}, s90")
            A(f"buffer_store_dword v{vt3}, v{vCA}, {SWS}, s92 offen")
            A.label(lab)
        if ilv:
            A(f"s_lshr_b32 {sT2}, {sT1}, 2"); A(f"s_lshl_b32 {sT2}, {sT2}, 5"); A(f"s_and_b32 {sT3}, {sT1}, 3"); A(f"s_add_u32 {sT2}, {sT2}, {sT3}"); A(f"s_add_u32 {sT2}, {sT2}, {sSB}")
        else:
            A(f"s_add_u32 {sT2}, {sT1}, {sSB}")
        A(f"s_cmp_lt_u32 {sT1}, {sSTC}"); A(f"s_cbranch_scc1 {ldec}")
        A(f"s_cmp_lg_u32 {sDB}, -1"); A(f"s_cbranch_scc1 {lhave}")
        A(f"s_mov_b32 {sTO}, {TMO*16}")
        A.label(lsp)
        A(f"ds_read_b64 {vr(vt2,2)}, v{vCA} offset:{L_DYN}")
        A("s_waitcnt lgkmcnt(0)")
        A(f"v_readfirstlane_b32 {sDB}, v{vt2}"); A(f"v_readfirstlane_b32 {sDN}, v{vt3}")
        A("s_nop 3")
        A(f"s_cmp_lg_u32 {sDB}, -1"); A(f"s_cbranch_scc1 {lhave}")
        A("s_sleep 2")
        A(f"s_sub_u32 {sTO}, {sTO}, 1"); A(f"s_cmp_lg_u32 {sTO}, 0"); A(f"s_cbranch_scc1 {lsp}")
        A(f"s_mov_b32 {sDB}, 0"); A(f"s_mov_b32 {sDN}, 0")
        A.label(lhave)
        A(f"s_sub_u32 {sT0}, {sT1}, {sSTC}")
        A(f"s_add_u32 {sT2}, {sT0}, {sDB}"); A(f"s_and_b32 {sT2}, {sT2}, 2047")
        A(f"s_cmp_lt_u32 {sT0}, {sDN}")
        A(f"s_cselect_b32 {sSTOP}, {sSTOP}, 1")
        A.label(ldec)
        A(f"s_cselect_b32 s{sVAL+s}, 1, 0"); A(f"s_cselect_b32 s6, {sNREC}, 0"); A(f"s_cselect_b32 s10, {sNREC}, 0")
        A(f"s_lshl_b32 {sKOFF}, {sT2}, 12"); A(f"s_add_u32 {sKOFF}, {sKOFF}, {sBASE}")
        issue_k(s, sKOFF)
        softmax_update(vS, vP, vm, vl, vO, vt0, vt1, vt2)
        A(f"s_waitcnt vmcnt({nwv})")
        pv(vO, vP, lambda t: vreg(s, t))
        issue_v(s, sKOFF)
    if XS:
        NX = 8 * (D + XS) - 4
        for s in range(D): step(s, NX, NX, True, False)
        out = 8 * (D + XS)
        for s in range(D, D + XS):
            step(s, out - 4, out - 8, False, False); out -= 8
    A.label("L_loop")
    if latewo & 2:
        A(f"s_and_b32 {sT0}, {sWOF}, {sSTOP}"); A("s_cbranch_scc0 L_s_nowo2")
        wo_issue(50)
        A(f"s_mov_b32 {sWOF}, 0")
        A.label("L_s_nowo2")
    for s in range(D): step(s, NW, NW)
    A("s_branch L_loop")
    A.label("L_sdone")
    xgroup_reduce("v_add_f32", vl, vt0)
    A(f"v_and_b32 v{vt1}, 7, v{vN}"); A(f"v_lshl_add_u32 v{vt1}, v{vG}, 5, v{vt1}"); A(f"v_lshlrev_b32 v{vt1}, 2, v{vt1}")
    A(f"s_lshl_b32 {sT0}, {sWAVE}, 9"); A(f"v_add_u32 v{vt1}, {sT0}, v{vt1}")
    A(f"s_lshl_b32 {sT0}, {sWAVE}, 3"); A(f"v_mov_b32 v{vt2}, {sT0}")
    for r in range(4): A(f"ds_write_b32 v{vt1}, v{vO+r} offset:{L_OPART + r*32}")
    A(f"ds_write_b64 v{vt2}, {vr(vm,2)} offset:{L_ML}")
    A("s_waitcnt lgkmcnt(0)")
    stamp(2)
    A("s_barrier")
    if noB:
        A("s_endpgm")
    else:
        A(f"s_cmp_eq_u32 {sWAVE}, 0"); A("s_cbranch_scc1 L_btail")
        A("s_endpgm")
        A.label("L_btail")
        sreg[0], sreg[1] = 90, 91
        A("s_setprio 3")
        if latewo & 2:
            A(f"s_cmp_eq_u32 {sWOF}, 0"); A("s_cbranch_scc1 L_s_nowo3")
            wo_issue(50)
            A.label("L_s_nowo3")
        A(f"v_mov_b32 v{vt1}, 0")
        A(f"ds_read_b32 v{vt0}, v{vt1} offset:{L_EP}")
        A(f"s_add_u32 {sHD}, {sH}, 32")
        tail_prep()
        A("s_waitcnt lgkmcnt(0)")
        A(f"v_readfirstlane_b32 {sE}, v{vt0}")
        A("s_branch L_tail2" if early else "s_branch L_tail")
    sreg[0], sreg[1] = 54, 55
    A.label("L_s_prod")
    A("s_setprio 2")
    qprod_issue()
    masks()
    A("s_waitcnt vmcnt(0)")
    stamp(12)
    qprod_compute()
    A("s_setprio 0")
    for s in range(D + XS): issue_tile(s)
    A("s_branch L_s_join")

    A.label("L_service")
    sreg[0], sreg[1] = 254, 255
    A("s_setprio 3")
    srd(SDBG, 54, 256)
    A(f"v_mov_b32 v{vt1}, 0")
    A(f"s_cmp_lg_u32 {sWG}, 0"); A("s_cbranch_scc1 L_v_noep0")
    A("s_memrealtime s[90:91]")
    A("s_waitcnt lgkmcnt(0)")
    A(f"s_max_u32 {sE}, s90, 1")
    A(f"v_mov_b32 v{vt0}, {sE}")
    A("s_mov_b64 exec, 1")
    A(f"buffer_store_dword v{vt0}, v{vt1}, {SDBG}, 0 offen sc1")
    A("s_mov_b64 exec, -1")
    A.label("L_v_noep0")
    masks()
    A(f"v_mov_b32 v{vt0}, {(D+XS)*NSW}"); A(f"v_mov_b32 v{vt1}, 0"); A(f"v_mov_b32 v{vt2}, -1")
    A(f"ds_write_b32 v{vt1}, v{vt0} offset:{L_CNT}")
    A(f"ds_write_b32 v{vt1}, v{vt2} offset:{L_DYN}")
    A(f"s_mov_b32 {sTO}, {TMO}")
    A.label("L_ep_loop")
    A(f"buffer_load_dword v{vt0}, v{vt1}, {SDBG}, 0 offen sc1")
    A("s_waitcnt vmcnt(0)")
    A(f"v_readfirstlane_b32 {sE}, v{vt0}")
    A("s_nop 3")
    A(f"s_cmp_lg_u32 {sE}, 0"); A("s_cbranch_scc1 L_ep_done")
    A(f"s_sleep {sleep}")
    A(f"s_sub_u32 {sTO}, {sTO}, 1"); A(f"s_cmp_lg_u32 {sTO}, 0"); A("s_cbranch_scc1 L_ep_loop")
    A.label("L_ep_done")
    stamp(11)
    vLO8 = vt5
    A(f"v_lshlrev_b32 v{vLO8}, 3, v{vLANE}")
    A(f"s_cmp_ge_u32 {sS}, 4"); A("s_cbranch_scc1 L_v_noprod3")
    A(f"v_and_b32 v{vt1}, 31, v{vLANE}"); A(f"v_lshlrev_b32 v{vt1}, 3, v{vt1}")
    A(f"s_lshr_b32 {sT0}, {sS}, 1"); A(f"s_lshl_b32 {sT0}, {sT0}, 5"); A(f"s_add_u32 {sT0}, {sT0}, {sH}"); A(f"s_lshl_b32 {sT0}, {sT0}, 9")
    A(f"s_and_b32 {sT1}, {sS}, 1"); A(f"s_lshl_b32 {sT1}, {sT1}, 8"); A(f"s_add_u32 {sT0}, {sT0}, {sT1}"); A(f"s_add_u32 {sT0}, {sT0}, {WS_QF}")
    A("s_barrier")
    for k in range(2*NSW): A(f"ds_read_b64 {vr(WQ+2*k,2)}, v{vt1} offset:{L_QPART + k*256}")
    A("s_waitcnt lgkmcnt(0)")
    for k in range(1, 2*NSW):
        A(f"v_add_f32 v{WQ}, v{WQ}, v{WQ+2*k}"); A(f"v_add_f32 v{WQ+1}, v{WQ+1}, v{WQ+2*k+1}")
    A(f"v_cvt_pk_bf16_f32 v{vB0}, v{WQ}, v{WQ+1}"); A(f"v_mov_b32 v{vB0+1}, {sE}")
    A("s_mov_b32 exec_hi, 0")
    A(f"buffer_store_dwordx2 {vr(vB0,2)}, v{vt1}, {SWS}, {sT0} offen sc1")
    A("s_mov_b64 exec, -1")
    stamp(3)
    A.label("L_v_noprod3")
    A(f"s_lshl_b32 {sT0}, {sH}, 9"); A(f"s_add_u32 {sT0}, {sT0}, {WS_QF}")
    lab = poll_begin()
    A(f"buffer_load_dwordx2 {vr(vQ,2)}, v{vLO8}, {SWS}, {sT0} offen sc1")
    poll_end(lab, [vQ + 1], sleep)
    A(f"v_lshlrev_b32 v{vt2}, 2, v{vLANE}")
    A(f"ds_write_b32 v{vt2}, v{vQ} offset:{L_QA}")
    A(f"v_mov_b32 v{vt0}, {sE}"); A(f"v_mov_b32 v{vt1}, 0")
    A(f"ds_write_b32 v{vt1}, v{vt0} offset:{L_EP}")
    A("s_waitcnt lgkmcnt(0)")
    A("s_barrier")
    if noB:
        A("s_barrier"); A("s_endpgm")
    PBR = 64
    A(f"s_cmp_lt_u32 {sS}, 6"); A("s_cbranch_scc1 L_v_noB")
    srd(SK, 44, 0x4000000); srd(SV, 46, 0x4000000)
    A(f"s_lshl_b32 {sT0}, {sH}, 1"); A(f"s_add_u32 {sT0}, {sT0}, {sS}"); A(f"s_sub_u32 {sT0}, {sT0}, 6")
    A(f"s_lshr_b32 {sT1}, {sT0}, 3"); A(f"s_and_b32 {sBU}, {sT0}, 7")
    A(f"s_lshl_b32 {sBB}, {sT1}, 23"); A(f"s_add_u32 {sBB}, {sBB}, {28672*256}"); A(f"s_lshl_b32 {sT2}, {sBU}, 12"); A(f"s_add_u32 {sBB}, {sBB}, {sT2}")
    A(f"s_mul_i32 {sBJ}, {sT0}, {brot}")
    A(f"s_mov_b32 {sBN}, 28")
    A(f"s_mov_b32 {sNREC}, 0x4000000")
    def boff():
        A(f"s_and_b32 {sKOFF}, {sBJ}, 31"); A(f"s_lshl_b32 {sKOFF}, {sKOFF}, 15"); A(f"s_add_u32 {sKOFF}, {sKOFF}, {sBB}"); A(f"s_add_u32 {sBJ}, {sBJ}, 1")
    for s in range(4):
        boff(); issue_k(s, sKOFF); issue_v(s, sKOFF)
    A(f"s_lshl_b32 {sT0}, {sT1}, 11"); A(f"s_add_u32 {sT0}, {sT0}, {WS_QF + 32*512}")
    lab = poll_begin()
    for hh in range(4):
        A(f"buffer_load_dwordx2 {vr(vQ+2*hh,2)}, v{vLO8}, {SWS}, {sT0} offen offset:{hh*512} sc1")
    poll_end(lab, [vQ + 2 * hh + 1 for hh in range(4)], 16)
    for hh in range(4): A(f"ds_write_b32 v{vt2}, v{vQ+2*hh} offset:{L_QB + hh*256}")
    A("s_waitcnt lgkmcnt(0)")
    QBp = [vQ, WQ]
    stO = [vO, 232]; stS = [vS, 236]; stP = [vP, 240]; stm = [vm, 244]; stl = [vl, 245]
    A(f"v_lshrrev_b32 v{vt3}, 3, v{vN}"); A(f"v_lshlrev_b32 v{vt3}, 8, v{vt3}"); A(f"v_lshl_add_u32 v{vt3}, v{vG}, 4, v{vt3}")
    for pp in range(2):
        for i in range(4): A(f"ds_read_b128 {vr(QBp[pp]+4*i,4)}, v{vt3} offset:{L_QB + pp*512 + i*64}")
        A(f"v_mov_b32 v{stm[pp]}, 0xff800000"); A(f"v_mov_b32 v{stl[pp]}, 0")
        for r in range(4): A(f"v_mov_b32 v{stO[pp]+r}, 0")
    A("s_waitcnt lgkmcnt(0)")
    stamp(4)
    A.label("L_bloop")
    for s in range(4):
        A("s_waitcnt vmcnt(28)")
        for pp in range(2):
            for i in range(4): mfma(stS[pp], kreg(s, i), QBp[pp] + 4 * i, None if i == 0 else stS[pp])
        A(f"s_cmp_gt_i32 {sBN}, 0"); A(f"s_cselect_b32 s6, {sNREC}, 0"); A(f"s_cselect_b32 s10, {sNREC}, 0")
        boff(); issue_k(s, sKOFF)
        for pp in range(2): softmax_update(stS[pp], stP[pp], stm[pp], stl[pp], stO[pp], vt0, vt1, vt2)
        A("s_waitcnt vmcnt(28)")
        for pp in range(2): pv(stO[pp], stP[pp], lambda t: vreg(s, t))
        issue_v(s, sKOFF)
        A(f"s_sub_u32 {sBN}, {sBN}, 1")
    A(f"s_cmp_gt_i32 {sBN}, -4"); A("s_cbranch_scc1 L_bloop")
    stamp(10)
    A("s_waitcnt vmcnt(0)")
    A(f"v_and_b32 v{vt1}, 7, v{vN}"); A(f"v_lshl_add_u32 v{vt1}, v{vG}, 5, v{vt1}"); A(f"v_lshrrev_b32 v{vt2}, 3, v{vN}"); A(f"v_lshl_add_u32 v{vt1}, v{vt2}, 7, v{vt1}")
    A(f"v_lshlrev_b32 v{vt1}, 2, v{vt1}")
    A("s_nop 3")
    for pp in range(2):
        for r in range(4): A(f"ds_write_b32 v{vt1}, v{stO[pp]+r} offset:{L_OB + pp*1024 + r*32}")
        xgroup_reduce("v_add_f32", stl[pp], vt0)
        R = PBR + 16 + pp * 4
        A(f"v_mov_b32 v{R}, v{stm[pp]}"); A(f"v_mov_b32 v{R+1}, {sE}"); A(f"v_mov_b32 v{R+2}, v{stl[pp]}"); A(f"v_mov_b32 v{R+3}, {sE}")
    A("s_waitcnt lgkmcnt(0)")
    for hh in range(4): A(f"ds_read_b64 {vr(vQ+2*hh,2)}, v{vLO8} offset:{L_OB + hh*512}")
    A("s_waitcnt lgkmcnt(0)")
    for hh in range(4):
        R = PBR + hh * 4
        A(f"v_mov_b32 v{R}, v{vQ+2*hh}"); A(f"v_mov_b32 v{R+1}, {sE}"); A(f"v_mov_b32 v{R+2}, v{vQ+2*hh+1}"); A(f"v_mov_b32 v{R+3}, {sE}")
    sPB0, sPB1, sML0 = "s76", "s77", "s78"
    vBML = 88
    A(f"s_lshr_b32 {sT0}, {sH}, 2"); A(f"s_lshl_b32 {sT0}, {sT0}, 5"); A(f"s_add_u32 {sT0}, {sT0}, {sBU}"); A(f"s_add_u32 {sT0}, {sT0}, 256")
    A(f"s_lshl_b32 {sPB0}, {sT0}, 10"); A(f"s_add_u32 {sPB0}, {sPB0}, {WS_P}")
    A(f"s_lshl_b32 {sML0}, {sT0}, 4"); A(f"s_add_u32 {sML0}, {sML0}, {WS_ML}")
    A.label("L_v_noB")
    sreg[0], sreg[1] = 90, 91
    A(f"v_lshrrev_b32 v{vBML}, 3, v{vN}"); A(f"v_lshlrev_b32 v{vBML}, 7, v{vBML}")
    def pb_publish(lab):
        A(f"s_cmp_lt_u32 {sS}, 6"); A(f"s_cbranch_scc1 {lab}")
        for hh in range(4):
            A(f"buffer_store_dwordx4 {vr(PBR+hh*4,4)}, v{vA16}, {SWS}, {sPB0} offen sc1")
            if hh < 3: A(f"s_add_u32 {sPB0}, {sPB0}, 8192")
        A("s_mov_b64 exec, 0x101")
        for pp in range(2):
            A(f"buffer_store_dwordx4 {vr(PBR+16+pp*4,4)}, v{vBML}, {SWS}, {sML0} offen offset:{pp*256} sc1")
        A("s_mov_b64 exec, -1")
        A.label(lab)
    def cntwait(thr_s):
        l1 = A.newlabel("L_cw"); l2 = A.newlabel("L_cwok")
        A(f"v_mov_b32 v{vt1}, 0"); A(f"s_mov_b32 {sTO}, {TMO}")
        A.label(l1)
        A(f"ds_read_b32 v{vt0}, v{vt1} offset:{L_CNT}")
        A("s_waitcnt lgkmcnt(0)")
        A(f"v_readfirstlane_b32 {sT0}, v{vt0}")
        A("s_nop 3")
        A(f"s_cmp_ge_u32 {sT0}, {thr_s}"); A(f"s_cbranch_scc1 {l2}")
        A(f"s_sleep {bsl}")
        A(f"s_sub_u32 {sTO}, {sTO}, 1"); A(f"s_cmp_lg_u32 {sTO}, 0"); A(f"s_cbranch_scc1 {l1}")
        A.label(l2)
    sK1, sTT1 = "s80", "s81"
    A(f"s_mov_b32 {sHD}, {sH}")
    tail_prep()
    sSMP = "s79"
    A(f"s_mov_b32 {sSMP}, {sSTC}")
    if ilv:
        A(f"s_cmp_lt_u32 {sS}, 4"); A(f"s_cselect_b32 {sT0}, {KP}, 0"); A(f"s_cmp_ge_u32 {sS}, 6"); A(f"s_cselect_b32 {sT0}, {KB}, {sT0}"); A(f"s_sub_u32 {sSMP}, {sSTC}, {sT0}")
    A(f"s_sub_u32 {sT3}, {sSMP}, {K1}")
    cntwait(sT3)
    A("s_memrealtime s[90:91]"); A(f"s_mov_b32 {sK1}, {sT0}"); A("s_waitcnt lgkmcnt(0)"); A(f"s_mov_b32 {sTT1}, s90")
    A(f"s_sub_u32 {sT3}, {sSMP}, {K2}"); A(f"s_add_u32 {sT1}, {sK1}, 16"); A(f"s_max_u32 {sT3}, {sT3}, {sT1}"); A(f"s_min_u32 {sT3}, {sT3}, {sSTC}")
    cntwait(sT3)
    A("s_memrealtime s[90:91]"); A("s_waitcnt lgkmcnt(0)")
    A(f"s_sub_u32 {sT1}, {sT0}, {sK1}"); A(f"s_max_u32 {sT1}, {sT1}, 1")
    A(f"s_sub_u32 {sT2}, s90, {sTT1}")
    A(f"s_max_u32 {sT2}, {sT2}, 1")
    A(f"s_sub_u32 {sT3}, s90, {sE}")
    A(f"s_sub_i32 {sT0}, {sSTC}, {sT0}")
    A(f"v_cvt_f32_u32 v{vt0}, {sT1}"); A(f"v_cvt_f32_u32 v{vt1}, {sT2}"); A(f"v_cvt_f32_u32 v{vt2}, {sT3}"); A(f"v_cvt_f32_i32 v{vt3}, {sT0}")
    A(f"v_rcp_f32 v{vt4}, v{vt1}"); A(f"v_rcp_f32 v{vT}, v{vt0}"); A("s_nop 0")
    A(f"v_mul_f32 v{vB0}, v{vt0}, v{vt4}")
    A(f"v_mul_f32 v{vT}, v{vT}, v{vt1}")
    A(f"v_fma_f32 v{vB0+2}, v{vt3}, v{vT}, v{vt2}")
    A(f"v_mov_b32 v{vB0+1}, {sE}"); A(f"v_mov_b32 v{vB0+3}, {sE}")
    A(f"s_lshl_b32 {sT2}, {sH}, 7"); A(f"s_add_u32 {sT2}, {sT2}, {WS_BAL}"); A(f"s_lshl_b32 {sT1}, {sS}, 4"); A(f"s_add_u32 {sT1}, {sT1}, {sT2}")
    A(f"v_mov_b32 v{vt1}, 0")
    A("s_mov_b64 exec, 1")
    A(f"buffer_store_dwordx4 {vr(vB0,4)}, v{vt1}, {SWS}, {sT1} offen sc1")
    A("s_mov_b64 exec, -1")
    pb_publish("L_v_pbdone")
    lab = poll_begin()
    A(f"buffer_load_dwordx4 {vr(vML,4)}, v{vAML}, {SWS}, {sT2} offen sc1")
    poll_end(lab, [vML + 1, vML + 3], 4)
    def bsum8(v):
        A("s_nop 1"); A(f"v_add_f32_dpp v{v}, v{v}, v{v} quad_perm:[1,0,3,2] {DPP}")
        A("s_nop 1"); A(f"v_add_f32_dpp v{v}, v{v}, v{v} quad_perm:[2,3,0,1] {DPP}")
        A("s_nop 1"); A(f"v_add_f32_dpp v{v}, v{v}, v{v} row_half_mirror {DPP}")
    A(f"v_mov_b32 v{vt0}, v{vML}"); A(f"v_mul_f32 v{vt1}, v{vML}, v{vML+2}")
    bsum8(vt0); bsum8(vt1)
    A(f"v_add_f32 v{vt1}, {hex(f2u(float(RT)))}, v{vt1}")
    A(f"v_rcp_f32 v{vt0}, v{vt0}"); A("s_nop 0")
    A(f"v_mul_f32 v{vt1}, v{vt1}, v{vt0}")
    A(f"v_sub_f32 v{vt1}, v{vt1}, v{vML+2}"); A(f"v_mul_f32 v{vt1}, v{vt1}, v{vML}")
    A(f"v_max_f32 v{vt1}, 0, v{vt1}")
    A(f"v_min_f32 v{vt1}, {hex(f2u(4096.0))}, v{vt1}")
    A(f"v_add_f32 v{vt1}, {hex(f2u(1e-3))}, v{vt1}")
    for sh in (1, 2, 4):
        A("s_nop 1"); A(f"v_add_f32_dpp v{vt1}, v{vt1}, v{vt1} row_shr:{sh} row_mask:0xf bank_mask:0xf bound_ctrl:0")
    A("s_nop 1")
    A(f"v_readlane_b32 {sT0}, v{vt1}, 7"); A("s_nop 1")
    A(f"v_rcp_f32 v{vt0}, {sT0}"); A("s_nop 0")
    A(f"v_mul_f32 v{vt0}, {hex(f2u(float(RT)))}, v{vt0}")
    A(f"v_mul_f32 v{vt1}, v{vt1}, v{vt0}"); A(f"v_rndne_f32 v{vt1}, v{vt1}"); A(f"v_cvt_u32_f32 v{vt1}, v{vt1}")
    A(f"v_min_u32 v{vt1}, {RT}, v{vt1}")
    A(f"s_sub_u32 {sT1}, {sS}, 1"); A(f"s_and_b32 {sT1}, {sT1}, 7"); A("s_nop 1")
    A(f"v_readlane_b32 {sT2}, v{vt1}, {sS}"); A(f"v_readlane_b32 {sT3}, v{vt1}, {sT1}")
    A("s_nop 3")
    A(f"s_cmp_eq_u32 {sS}, 7"); A(f"s_cselect_b32 {sT2}, {RT}, {sT2}")
    A(f"s_cmp_eq_u32 {sS}, 0"); A(f"s_cselect_b32 {sT3}, 0, {sT3}")
    A(f"s_sub_u32 {sT2}, {sT2}, {sT3}")
    A(f"s_add_u32 {sT3}, {sT3}, {DYN0}")
    A(f"v_mov_b32 v{vt2}, {sT3}"); A(f"v_mov_b32 v{vt3}, {sT2}"); A(f"v_mov_b32 v{vt1}, 0")
    A(f"ds_write_b64 v{vt1}, {vr(vt2,2)} offset:{L_DYN}")
    if ts:
        A(f"s_lshl_b32 s92, s2, 6"); A(f"s_add_u32 s92, s92, {WS_TS + 0x200000}")
        A(f"buffer_store_dword v{vt3}, v{vt1}, {SWS}, s92 offen")
    stamp(9)
    A(f"s_add_u32 {sT3}, {sT2}, {sSTC}"); A(f"s_add_u32 {sT3}, {sT3}, {X2}")
    cntwait(sT3)
    wo_issue(40)
    A(f"v_mov_b32 v{vt2}, 0")
    A(f"s_lshl_b32 {sT0}, {sH}, 3"); A(f"s_add_u32 {sT0}, {sT0}, {sS}"); A(f"s_lshl_b32 {sT1}, {sT0}, 4"); A(f"s_lshl_b32 {sT0}, {sT0}, 10")
    A(f"s_add_u32 {sT0}, {sT0}, {WS_P}"); A(f"s_add_u32 {sT1}, {sT1}, {WS_ML}")
    A(f"v_mov_b32 v{vB0+1}, {sE}"); A(f"v_mov_b32 v{vB0+3}, {sE}"); A(f"v_mov_b32 v{vB1+1}, {sE}"); A(f"v_mov_b32 v{vB1+3}, {sE}")
    A("s_barrier")
    stamp(8)
    MLW = PO + 16
    for w in range(NSW):
        A(f"ds_read_b64 {vr(MLW+2*w,2)}, v{vt2} offset:{L_ML + w*8}")
    for w in range(NSW):
        A(f"ds_read_b64 {vr(PO+2*w,2)}, v{vA8} offset:{L_OPART + w*512}")
    A(f"s_waitcnt lgkmcnt({NSW})")
    A(f"v_max_f32 v{vB1}, v{MLW}, v{MLW+2}")
    A(f"v_max3_f32 v{vB1}, v{MLW+4}, v{MLW+6}, v{vB1}")
    for w in range(NSW): A(f"v_sub_f32 v{MLW+2*w}, v{MLW+2*w}, v{vB1}")
    for w in range(NSW): A(f"v_mul_f32 v{MLW+2*w}, {sC}, v{MLW+2*w}")
    for w in range(NSW): A(f"v_exp_f32 v{MLW+2*w}, v{MLW+2*w}")
    A("s_waitcnt lgkmcnt(0)")
    A(f"v_mul_f32 v{vB0}, v{PO}, v{MLW}"); A(f"v_mul_f32 v{vB0+2}, v{PO+1}, v{MLW}"); A(f"v_mul_f32 v{vB1+2}, v{MLW+1}, v{MLW}")
    for w in range(1, NSW):
        A(f"v_fma_f32 v{vB0}, v{PO+2*w}, v{MLW+2*w}, v{vB0}"); A(f"v_fma_f32 v{vB0+2}, v{PO+2*w+1}, v{MLW+2*w}, v{vB0+2}")
        A(f"v_fma_f32 v{vB1+2}, v{MLW+2*w+1}, v{MLW+2*w}, v{vB1+2}")
    A(f"buffer_store_dwordx4 {vr(vB0,4)}, v{vA16}, {SWS}, {sT0} offen sc1")
    A("s_mov_b64 exec, 1")
    A(f"buffer_store_dwordx4 {vr(vB1,4)}, v{vt2}, {SWS}, {sT1} offen sc1")
    A("s_mov_b64 exec, -1")
    A.label("L_tail")
    tail()
    A.label("L_end")
    A("s_endpgm")

    out = HEADER + f"; @launch grid=(256,1,1) block=({(NSW+1)*64},1,1) lds={LDS_SIZE}\n"
    out += '.amdgcn_target "amdgcn-amd-amdhsa--gfx950"\n.text\n' + f".globl {KNAME}\n.p2align 8\n.type {KNAME},@function\n{KNAME}:\n"
    out += "\n".join(A.L) + "\n"
    out += f""".section .rodata,"a"
.p2align 6
.amdhsa_kernel {KNAME}
  .amdhsa_next_free_vgpr 256
  .amdhsa_next_free_sgpr 102
  .amdhsa_accum_offset 256
  .amdhsa_group_segment_fixed_size 0
  .amdhsa_kernarg_size 104
  .amdhsa_user_sgpr_count 2
  .amdhsa_user_sgpr_kernarg_segment_ptr 1
  .amdhsa_system_sgpr_workgroup_id_x 1
.end_amdhsa_kernel
"""
    return out

if __name__ == "__main__":
    cfg = json.loads(sys.argv[2]) if len(sys.argv) > 2 else {}
    open(sys.argv[1], "w").write(gen(**cfg))
```

```python
import sys, json, math, struct
from gen import HEADER, KNAME, G, vr, f2u, CSCALE

WS_CNT  = 0x1000
WS_QF   = 0x10000
WS_BAL  = 0x18000
WS_ML   = 0x20000
WS_P    = 0x100000
WS_Y    = 0x200000
WS_TS   = 0x800000
WS_SIZE = 0x1000000

L_QPART = 0
L_QA    = 4096
L_QB    = 4352
L_OPART = 6144
L_OB    = 8192
L_ML    = 10240
L_CNT   = 10304
L_EP    = 10312
L_DYN   = 10320
LDS_SIZE = 12288

def gen(ts=False, kflags="nt", sleep=2, tsleep=1, hmap=1, ST=224, noB=False, D=4, pbthr=0, TMO=0x8000, NSW=4, brot=5, STR=None, xflag=True, early=False, X1=16, X2=0, bsl=4, latewo=3, K1=64, K2=24, XS=0, ilv=False, KB=32, KP=8, fixed=0, drain=True, WOK=0, pp2=False, stag=4):
    A = G()
    if STR is None: STR = [ST] * 3
    roles = True
    RT = 2048 - (4 * STR[0] + 2 * STR[1] + 2 * STR[2])
    DYN0 = 2048 - RT
    sreg = [54, 55]
    sWG, sWAVE = "s2", "s3"
    SK, SV, SW, SWS, SX, SDBG, SOUT = "s[4:7]", "s[8:11]", "s[12:15]", "s[16:19]", "s[20:23]", "s[24:27]", "s[28:31]"
    sC = "s58"; sHD = "s59"; sH, sS = "s60", "s61"; sKOFF = "s62"; sSTOP = "s63"; sCOFF = "s64"
    sT0, sT1, sT2, sT3 = "s65", "s66", "s67", "s68"
    sE = "s69"; sSELLO, sSELHI = "s70", "s71"; sHALF = "s[72:73]"; sTO = "s74"; sNREC = "s75"
    sVAL = 76
    sBASE, sSB, sBB, sBU, sBJ, sBN = "s95", "s96", "s97", "s98", "s99", "s100"
    sSTC = "s93"
    vLANE, vN, vG, vKO, vVO = 0, 1, 2, 3, 4
    vM = 5; vT = 9
    vQ = 12; vO = 28; vS = 32; vP = 36; vB0 = 40; vB1 = 44; vm = 48; vl = 49
    vt0, vt1, vt2, vt3, vt4, vt5 = 50, 51, 52, 53, 54, 55
    vX = 56; vML = 60
    RING = 64
    def kreg(slot, i): return RING + slot * 32 + i * 4
    def vreg(slot, i): return RING + slot * 32 + 16 + i * 4
    WQ = 192
    WO = 192; PO = RING + 64
    assert D <= 4
    DPP = "row_mask:0xf bank_mask:0xf"

    def srd(dst, ptr_lo, nbytes):
        b = int(dst[2:].split(":")[0])
        A(f"s_mov_b32 s{b}, s{ptr_lo}"); A(f"s_mov_b32 s{b+1}, s{ptr_lo+1}")
        A(f"s_mov_b32 s{b+2}, {hex(nbytes)}"); A(f"s_mov_b32 s{b+3}, 0x00020000")
    def stamp(idx):
        if not ts: return
        A("s_memrealtime s[90:91]")
        A("s_lshl_b32 s92, s2, 3"); A("s_add_u32 s92, s92, s3"); A("s_lshl_b32 s92, s92, 6")
        A(f"s_add_u32 s92, s92, {WS_TS + idx*4}")
        A("s_waitcnt lgkmcnt(0)")
        A(f"v_mov_b32 v{sreg[0]}, s90"); A(f"v_mov_b32 v{sreg[1]}, 0")
        A(f"buffer_store_dword v{sreg[0]}, v{sreg[1]}, {SWS}, s92 offen")
    def xgroup_reduce(op, v, tmp):
        A(f"v_mov_b32 v{tmp}, v{v}"); A("s_nop 1")
        A(f"v_permlane16_swap_b32 v{v}, v{tmp}")
        A(f"{op} v{v}, v{v}, v{tmp}")
        A(f"v_mov_b32 v{tmp}, v{v}"); A("s_nop 1")
        A(f"v_permlane32_swap_b32 v{v}, v{tmp}")
        A(f"{op} v{v}, v{v}, v{tmp}")
    def mfma(d, a, b, c):
        cs = "0" if c is None else vr(c, 4)
        A(f"v_mfma_f32_16x16x32_bf16 {vr(d,4)}, {vr(a,4)}, {vr(b,4)}, {cs}")
    def softmax_update(S, P, m, l, O, t0, t1, t2):
        A(f"v_max_f32 v{t0}, v{S}, v{S+1}")
        A(f"v_max3_f32 v{t0}, v{S+2}, v{S+3}, v{t0}")
        A(f"v_mov_b32 v{t1}, v{t0}"); A("s_nop 1")
        A(f"v_permlane16_swap_b32 v{t0}, v{t1}")
        A(f"v_max_f32 v{t0}, v{t0}, v{t1}")
        A(f"v_mov_b32 v{t1}, v{t0}"); A("s_nop 1")
        A(f"v_permlane32_swap_b32 v{t0}, v{t1}")
        A(f"v_max3_f32 v{t0}, v{t0}, v{t1}, v{m}")
        A(f"v_mul_f32 v{t1}, {sC}, v{t0}")
        A(f"v_fma_f32 v{t2}, v{m}, {sC}, -v{t1}")
        for r in range(4): A(f"v_fma_f32 v{P+r}, v{S+r}, {sC}, -v{t1}")
        A(f"v_exp_f32 v{t2}, v{t2}")
        for r in range(4): A(f"v_exp_f32 v{P+r}, v{P+r}")
        A(f"v_mov_b32 v{m}, v{t0}")
        A(f"v_fma_f32 v{l}, v{l}, v{t2}, v{P}")
        A(f"v_add_f32 v{t1}, v{P+1}, v{P+2}")
        for r in range(4): A(f"v_mul_f32 v{O+r}, v{O+r}, v{t2}")
        A(f"v_add_f32 v{l}, v{l}, v{P+3}")
        A(f"v_add_f32 v{l}, v{l}, v{t1}")
    def pv(O, P, vbase_fn):
        for t in range(4):
            B = vB0 if t % 2 == 0 else vB1
            A(f"v_cvt_pk_bf16_f32 v{vt0}, v{P+t}, v{P+t}")
            for r in range(4): A(f"v_and_b32 v{B+r}, v{vt0}, v{vM+r}")
            A("s_nop 1")
            mfma(O, vbase_fn(t), B, O)
    def issue_k(slot, soff):
        for i in range(4):
            A(f"buffer_load_dwordx4 {vr(kreg(slot,i),4)}, v{vKO}, {SK}, {soff} offen offset:{i*64} {kflags}")
    def issue_v(slot, soff):
        for i in range(4):
            A(f"buffer_load_dwordx4 {vr(vreg(slot,i),4)}, v{vVO}, {SV}, {soff} offen offset:{i*256} {kflags}")
    def poll_begin():
        lab = A.newlabel("L_poll")
        A(f"s_mov_b32 {sTO}, {TMO}")
        A.label(lab)
        return lab
    def poll_end(lab, tagregs, sl):
        done = A.newlabel("L_pdone")
        A("s_waitcnt vmcnt(0)")
        tr = list(tagregs)
        A(f"v_xor_b32 v{vt0}, {sE}, v{tr[0]}")
        k = 1
        while k < len(tr):
            if k + 1 < len(tr):
                A(f"v_xor_b32 v{vt1}, {sE}, v{tr[k]}"); A(f"v_xor_b32 v{vT}, {sE}, v{tr[k+1]}")
                A(f"v_or3_b32 v{vt0}, v{vt0}, v{vt1}, v{vT}"); k += 2
            else:
                A(f"v_xor_b32 v{vt1}, {sE}, v{tr[k]}"); A(f"v_or_b32 v{vt0}, v{vt0}, v{vt1}"); k += 1
        A(f"v_cmp_ne_u32 vcc, 0, v{vt0}")
        A("s_nop 4")
        A(f"s_cbranch_vccz {done}")
        while sl > 0:
            A(f"s_sleep {min(sl,127)}"); sl -= 127
        A(f"s_sub_u32 {sTO}, {sTO}, 1")
        A(f"s_cmp_lg_u32 {sTO}, 0")
        A(f"s_cbranch_scc1 {lab}")
        A.label(done)
    def tagcheck(tagregs):
        tr = list(tagregs)
        A(f"v_xor_b32 v{vt0}, {sE}, v{tr[0]}")
        k = 1
        while k < len(tr):
            if k + 1 < len(tr):
                A(f"v_xor_b32 v{vt1}, {sE}, v{tr[k]}"); A(f"v_xor_b32 v{vT}, {sE}, v{tr[k+1]}")
                A(f"v_or3_b32 v{vt0}, v{vt0}, v{vt1}, v{vT}"); k += 2
            else:
                A(f"v_xor_b32 v{vt1}, {sE}, v{tr[k]}"); A(f"v_or_b32 v{vt0}, v{vt0}, v{vt1}"); k += 1
        A(f"v_cmp_ne_u32 vcc, 0, v{vt0}")
        A("s_nop 4")
    def poll2(issue, tags, n, finish):
        lab = A.newlabel("L_pp"); d0 = A.newlabel("L_pp0"); d1 = A.newlabel("L_pp1"); dn = A.newlabel("L_ppd")
        A(f"s_mov_b32 {sTO}, {TMO}")
        issue(0)
        A(f"s_sleep {stag}")
        A.label(lab)
        issue(1)
        A(f"s_waitcnt vmcnt({n})")
        tagcheck(tags(0)); A(f"s_cbranch_vccz {d0}")
        issue(0)
        A(f"s_waitcnt vmcnt({n})")
        tagcheck(tags(1)); A(f"s_cbranch_vccz {d1}")
        A(f"s_sub_u32 {sTO}, {sTO}, 1"); A(f"s_cmp_lg_u32 {sTO}, 0"); A(f"s_cbranch_scc1 {lab}")
        A.label(d1)
        finish(1)
        A(f"s_branch {dn}")
        A.label(d0)
        finish(0)
        A.label(dn)
    def wo_issue(ptr_lo):
        srd(SW, ptr_lo, 0x400000)
        A(f"v_lshlrev_b32 v{vt1}, 14, v{vG}")
        A(f"v_lshl_add_u32 v{vt1}, v{vN}, 4, v{vt1}")
        A(f"s_lshl_b32 {sT0}, {sH}, 17")
        A(f"s_lshr_b32 {sT1}, {sS}, 2"); A(f"s_lshl_b32 {sT1}, {sT1}, 16"); A(f"s_add_u32 {sT0}, {sT0}, {sT1}")
        A(f"s_and_b32 {sT1}, {sS}, 3"); A(f"s_lshl_b32 {sT1}, {sT1}, 8"); A(f"s_add_u32 {sT0}, {sT0}, {sT1}")
        for a in range(4):
            if a: A(f"s_add_u32 {sT0}, {sT0}, 4096")
            for b in range(4):
                t = a * 4 + b
                A(f"buffer_load_dwordx4 {vr(WO+4*t,4)}, v{vt1}, {SW}, {sT0} offen offset:{b*1024} {kflags}")
    sPA0, sPA1, sMLA, sYP, sYG, sOUTO, sRED = "s84", "s85", "s86", "s87", "s88", "s89", "s94"
    vAML, vA8, vAY, vA16, vAO = 12, 13, 14, 15, 16
    def tail_prep():
        srd(SOUT, 52, 2048)
        A(f"v_and_b32 v{vAML}, 7, v{vLANE}"); A(f"v_lshlrev_b32 v{vAML}, 4, v{vAML}")
        A(f"v_lshlrev_b32 v{vA8}, 3, v{vLANE}")
        A(f"v_lshlrev_b32 v{vAY}, 4, v{vN}"); A(f"v_lshl_add_u32 v{vAY}, v{vG}, 14, v{vAY}")
        A(f"v_lshlrev_b32 v{vA16}, 4, v{vLANE}")
        A(f"v_and_b32 v{vAO}, 7, v{vN}"); A(f"v_lshrrev_b32 v{vt2}, 3, v{vN}"); A(f"v_lshl_add_u32 v{vAO}, v{vt2}, 4, v{vAO}"); A(f"v_lshlrev_b32 v{vAO}, 1, v{vAO}")
        A(f"s_lshl_b32 {sMLA}, {sHD}, 7"); A(f"s_add_u32 {sMLA}, {sMLA}, {WS_ML}")
        A(f"s_lshl_b32 {sPA0}, {sHD}, 13"); A(f"s_lshr_b32 {sT1}, {sS}, 2"); A(f"s_lshl_b32 {sT1}, {sT1}, 9")
        A(f"s_add_u32 {sPA0}, {sPA0}, {sT1}"); A(f"s_add_u32 {sPA0}, {sPA0}, {WS_P}"); A(f"s_add_u32 {sPA1}, {sPA0}, 4096")
        A(f"s_lshr_b32 {sT2}, {sHD}, 5")
        A(f"s_lshl_b32 {sYP}, {sT2}, 18"); A(f"s_add_u32 {sYP}, {sYP}, {WS_Y}"); A(f"s_mov_b32 {sYG}, {sYP}")
        A(f"s_and_b32 {sT0}, {sS}, 3"); A(f"s_lshl_b32 {sT0}, {sT0}, 16"); A(f"s_add_u32 {sYP}, {sYP}, {sT0}")
        A(f"s_lshl_b32 {sT0}, {sH}, 1"); A(f"s_lshr_b32 {sT1}, {sS}, 2"); A(f"s_add_u32 {sT0}, {sT0}, {sT1}"); A(f"s_lshl_b32 {sT0}, {sT0}, 8"); A(f"s_add_u32 {sYP}, {sYP}, {sT0}")
        A(f"s_lshr_b32 {sT3}, {sWG}, 4"); A(f"s_lshl_b32 {sT0}, {sT3}, 14"); A(f"s_add_u32 {sYG}, {sYG}, {sT0}")
        A(f"s_lshl_b32 {sOUTO}, {sT3}, 6"); A(f"s_lshl_b32 {sT0}, {sT2}, 10"); A(f"s_add_u32 {sOUTO}, {sOUTO}, {sT0}")
        A(f"s_and_b32 {sT0}, {sT3}, 7"); A(f"s_lshl_b32 {sT1}, {sT2}, 3"); A(f"s_add_u32 {sT0}, {sT0}, {sT1}")
        A(f"s_and_b32 {sT1}, {sWG}, 15"); A(f"s_cmp_eq_u32 {sT0}, {sT1}"); A(f"s_cselect_b32 {sRED}, 1, 0")
    def tail():
        NP = 8
        if pp2:
            ML2 = [100, 160]; PO2 = [104, 164]
            def iss(k):
                A(f"buffer_load_dwordx4 {vr(ML2[k],4)}, v{vAML}, {SWS}, {sMLA} offen sc1")
                for p in range(NP):
                    A(f"buffer_load_dwordx2 {vr(PO2[k]+2*p,2)}, v{vA8}, {SWS}, {sPA0 if p < 4 else sPA1} offen offset:{(p%4)*1024} sc1")
            def fin(k):
                A(f"v_mov_b32 v{vML}, v{ML2[k]}"); A(f"v_mov_b32 v{vML+2}, v{ML2[k]+2}")
                for p in range(NP): A(f"v_mov_b32 v{PO+2*p}, v{PO2[k]+2*p}")
            poll2(iss, lambda k: [ML2[k] + 1, ML2[k] + 3] + [PO2[k] + 2 * p + 1 for p in range(NP)], 9, fin)
            A("s_nop 1")
        else:
            lab = poll_begin()
            A(f"buffer_load_dwordx4 {vr(vML,4)}, v{vAML}, {SWS}, {sMLA} offen sc1")
            for p in range(NP):
                A(f"buffer_load_dwordx2 {vr(PO+2*p,2)}, v{vA8}, {SWS}, {sPA0 if p < 4 else sPA1} offen offset:{(p%4)*1024} sc1")
            poll_end(lab, [vML + 1, vML + 3] + [PO + 2 * p + 1 for p in range(NP)], tsleep)
        if not early: stamp(5)
        A(f"v_max_f32_dpp v{vt0}, v{vML}, v{vML} quad_perm:[1,0,3,2] {DPP}"); A("s_nop 1")
        A(f"v_max_f32_dpp v{vt0}, v{vt0}, v{vt0} quad_perm:[2,3,0,1] {DPP}"); A("s_nop 1")
        A(f"v_max_f32_dpp v{vt0}, v{vt0}, v{vt0} row_half_mirror {DPP}")
        A(f"v_sub_f32 v{vt1}, v{vML}, v{vt0}"); A(f"v_mul_f32 v{vt1}, {sC}, v{vt1}"); A(f"v_exp_f32 v{vt1}, v{vt1}")
        A("s_nop 0")
        A(f"v_mul_f32 v{vt2}, v{vt1}, v{vML+2}"); A("s_nop 0")
        A(f"v_mul_f32_dpp v{vt3}, v{vt1}, v{PO} row_newbcast:0 {DPP}")
        A(f"v_add_f32_dpp v{vt2}, v{vt2}, v{vt2} quad_perm:[1,0,3,2] {DPP}")
        A(f"v_fmac_f32_dpp v{vt3}, v{vt1}, v{PO+2} row_newbcast:1 {DPP}")
        A(f"v_fmac_f32_dpp v{vt3}, v{vt1}, v{PO+4} row_newbcast:2 {DPP}")
        A(f"v_add_f32_dpp v{vt2}, v{vt2}, v{vt2} quad_perm:[2,3,0,1] {DPP}")
        A(f"v_fmac_f32_dpp v{vt3}, v{vt1}, v{PO+6} row_newbcast:3 {DPP}")
        A(f"v_fmac_f32_dpp v{vt3}, v{vt1}, v{PO+8} row_newbcast:4 {DPP}")
        A(f"v_add_f32_dpp v{vt2}, v{vt2}, v{vt2} row_half_mirror {DPP}")
        A(f"v_fmac_f32_dpp v{vt3}, v{vt1}, v{PO+10} row_newbcast:5 {DPP}")
        A(f"v_rcp_f32 v{vt2}, v{vt2}")
        A(f"v_fmac_f32_dpp v{vt3}, v{vt1}, v{PO+12} row_newbcast:6 {DPP}")
        A(f"v_fmac_f32_dpp v{vt3}, v{vt1}, v{PO+14} row_newbcast:7 {DPP}")
        A(f"v_mul_f32 v{vt3}, v{vt3}, v{vt2}")
        A(f"v_cvt_pk_bf16_f32 v{vt3}, v{vt3}, v{vt3}")
        A("s_nop 1")
        BS = [PO + 16, PO + 20, PO + 24, PO + 28]
        def build(t):
            for r in range(4): A(f"v_and_b32_dpp v{BS[t%4]+r}, v{vt3}, v{vM+r} row_newbcast:{t} {DPP}")
        build(0); build(1)
        for t in range(16):
            acc = vS if t % 2 == 0 else vP
            mfma(acc, WO + 4 * t, BS[t % 4], None if t < 2 else acc)
            if t + 2 < 16: build(t + 2)
        A(f"v_mov_b32 v{vB0+1}, {sE}"); A(f"v_mov_b32 v{vB0+3}, {sE}")
        A("s_nop 6")
        for r in range(4): A(f"v_add_f32 v{vS+r}, v{vS+r}, v{vP+r}")
        A(f"v_cndmask_b32 v{vB0}, v{vS}, v{vS+2}, {sHALF}")
        A(f"v_cndmask_b32 v{vB0+2}, v{vS+1}, v{vS+3}, {sHALF}")
        A(f"buffer_store_dwordx4 {vr(vB0,4)}, v{vAY}, {SWS}, {sYP} offen sc1")
        if early:
            A(f"s_cmp_ge_u32 {sHD}, 32"); A("s_cbranch_scc1 L_afterB")
        stamp(6)
        A.label("L_tail2")
        A(f"s_cmp_eq_u32 {sRED}, 0"); A("s_cbranch_scc1 L_tail_end")
        A(f"s_add_u32 {sT0}, {sYG}, 4096"); A(f"s_add_u32 {sT1}, {sYG}, 8192"); A(f"s_add_u32 {sT2}, {sYG}, 12288")
        if pp2:
            Y2 = [64, 192]
            A("s_waitcnt vmcnt(0)")
            def issy(k):
                for u in range(16):
                    A(f"buffer_load_dwordx4 {vr(Y2[k]+4*u,4)}, v{vA16}, {SWS}, {[sYG,sT0,sT1,sT2][u//4]} offen offset:{(u%4)*1024} sc1")
            def finy(k):
                for u in range(8):
                    A(f"v_add_f32 v{PO+4*u}, v{Y2[k]+4*u}, v{Y2[k]+4*(u+8)}"); A(f"v_add_f32 v{PO+4*u+2}, v{Y2[k]+4*u+2}, v{Y2[k]+4*(u+8)+2}")
            poll2(issy, lambda k: [Y2[k] + 4 * u + o for u in range(16) for o in (1, 3)], 16, finy)
        else:
            lab = poll_begin()
            for u in range(16):
                A(f"buffer_load_dwordx4 {vr(PO+4*u,4)}, v{vA16}, {SWS}, {[sYG,sT0,sT1,sT2][u//4]} offen offset:{(u%4)*1024} sc1")
            poll_end(lab, [PO + 4 * u + o for u in range(16) for o in (1, 3)], tsleep)
        for u in range(8):
            if not pp2: A(f"v_add_f32 v{PO+4*u}, v{PO+4*u}, v{PO+4*(u+8)}"); A(f"v_add_f32 v{PO+4*u+2}, v{PO+4*u+2}, v{PO+4*(u+8)+2}")
        for u in range(1, 8):
            A(f"v_add_f32 v{PO}, v{PO}, v{PO+4*u}"); A(f"v_add_f32 v{PO+2}, v{PO+2}, v{PO+4*u+2}")
        A(f"v_mov_b32 v{vt0}, v{PO}"); A(f"v_mov_b32 v{vt1}, v{PO+2}"); A("s_nop 0")
        A(f"v_permlane16_swap_b32 v{PO}, v{vt0}"); A(f"v_permlane16_swap_b32 v{PO+2}, v{vt1}")
        A(f"v_add_f32 v{PO}, v{PO}, v{vt0}"); A(f"v_add_f32 v{PO+2}, v{PO+2}, v{vt1}")
        A(f"v_mov_b32 v{vt0}, v{PO}"); A(f"v_mov_b32 v{vt1}, v{PO+2}"); A("s_nop 0")
        A(f"v_permlane32_swap_b32 v{PO}, v{vt0}"); A(f"v_permlane32_swap_b32 v{PO+2}, v{vt1}")
        A(f"v_add_f32 v{PO}, v{PO}, v{vt0}"); A(f"v_add_f32 v{PO+2}, v{PO+2}, v{vt1}")
        A(f"v_cvt_pk_bf16_f32 v{vt0}, v{PO}, v{PO+2}")
        if fixed:
            A.label("L_fix")
            A("s_memrealtime s[90:91]"); A("s_waitcnt lgkmcnt(0)")
            A(f"s_sub_u32 s90, s90, {sE}"); A(f"s_cmp_lt_u32 s90, {fixed}"); A("s_cbranch_scc1 L_fix")
        A("s_mov_b64 exec, 0xffff")
        A(f"buffer_store_short v{vt0}, v{vAO}, {SOUT}, {sOUTO} offen")
        A(f"buffer_store_short_d16_hi v{vt0}, v{vAO}, {SOUT}, {sOUTO} offen offset:16")
        A("s_mov_b64 exec, -1")
        A.label("L_tail_end")
        stamp(7)
        A("s_endpgm")

    NBLK = 8 // NSW
    def qprod_issue():
        A(f"s_cmp_lt_u32 {sS}, 2")
        A("s_cselect_b32 s12, s38, s48"); A("s_cselect_b32 s13, s39, s49"); A("s_mov_b32 s14, 0x400000"); A("s_mov_b32 s15, 0x00020000")
        A("s_cselect_b32 s20, s32, s42"); A("s_cselect_b32 s21, s33, s43"); A("s_mov_b32 s22, 1024"); A("s_mov_b32 s23, 0x00020000")
        A(f"v_lshrrev_b32 v{vT}, 3, v{vN}"); A(f"v_lshl_add_u32 v{vT}, v{vG}, 1, v{vT}")
        A(f"v_lshlrev_b32 v{vT+1}, 4, v{vT}")
        A(f"v_lshlrev_b32 v{vT}, 16, v{vT}")
        A(f"v_and_b32 v{vT+2}, 7, v{vN}"); A(f"v_lshl_add_u32 v{vT}, v{vT+2}, 4, v{vT}")
        A(f"s_mul_i32 {sT1}, {sWAVE}, {128*NBLK}")
        for bk in range(NBLK):
            A(f"buffer_load_dwordx4 {vr(vX+4*bk,4)}, v{vT+1}, {SX}, {sT1} offen offset:{128*bk}")
        A(f"s_mul_i32 {sT0}, {sWAVE}, {NBLK << 19}"); A(f"s_lshl_b32 {sT1}, {sH}, 8"); A(f"s_add_u32 {sT0}, {sT0}, {sT1}")
        A(f"s_and_b32 {sT1}, {sS}, 1"); A(f"s_lshl_b32 {sT1}, {sT1}, 7"); A(f"s_add_u32 {sT0}, {sT0}, {sT1}")
        for bk in range(NBLK):
            for t in range(8):
                A(f"buffer_load_dwordx4 {vr(WQ+32*bk+4*t,4)}, v{vT}, {SW}, {sT0} offen {kflags}")
                if t < 7: A(f"s_add_u32 {sT0}, {sT0}, 8192")
            if bk < NBLK - 1: A(f"s_add_u32 {sT0}, {sT0}, {(64-7)*8192}")
    def qprod_compute():
        for bk in range(NBLK):
            for t in range(8):
                B = vB0 if t % 2 == 0 else vB1
                sel = sSELLO if t % 2 == 0 else sSELHI
                A(f"v_perm_b32 v{vt0}, v{vX+4*bk+t//2}, v{vX+4*bk+t//2}, {sel}")
                for r in range(4): A(f"v_and_b32 v{B+r}, v{vt0}, v{vM+r}")
                A("s_nop 1")
                mfma(vS, WQ + 32 * bk + 4 * t, B, None if (t == 0 and bk == 0) else vS)
        A(f"v_and_b32 v{vt1}, 7, v{vN}"); A(f"v_lshl_add_u32 v{vt1}, v{vG}, 5, v{vt1}"); A(f"v_lshlrev_b32 v{vt1}, 2, v{vt1}")
        A(f"s_lshl_b32 {sT0}, {sWAVE}, 9"); A(f"v_add_u32 v{vt1}, {sT0}, v{vt1}")
        A("s_mov_b32 exec_lo, 0x00ff00ff"); A("s_mov_b32 exec_hi, 0xff00ff00")
        A("s_nop 3")
        for r in range(4): A(f"ds_write_b32 v{vt1}, v{vS+r} offset:{L_QPART + r*32}")
        A("s_mov_b64 exec, -1")
        A("s_waitcnt lgkmcnt(0)")
        A("s_barrier")
    def masks():
        A(f"v_and_b32 v{vt0}, 1, v{vN}")
        A(f"v_mov_b32 v{vt1}, 0xffff")
        A(f"v_lshlrev_b32 v{vt0}, 4, v{vt0}")
        A(f"v_lshlrev_b32 v{vt1}, v{vt0}, v{vt1}")
        A(f"v_bfe_u32 v{vt0}, v{vN}, 1, 2")
        for r in range(4):
            A(f"v_cmp_eq_u32 vcc, {r}, v{vt0}"); A("s_nop 1")
            A(f"v_cndmask_b32 v{vM+r}, 0, v{vt1}, vcc")
        A(f"v_cmp_lt_u32 {sHALF}, 7, v{vN}")
        A(f"s_mov_b32 {sC}, {hex(f2u(CSCALE))}")
        A(f"s_mov_b32 {sSELLO}, 0x01000100"); A(f"s_mov_b32 {sSELHI}, 0x03020302")

    if ts: A("s_memrealtime s[86:87]")
    A(f"s_cmp_ge_u32 {sWG}, 256"); A("s_cbranch_scc1 L_end")
    A("s_load_dwordx16 s[32:47], s[0:1], 0")
    A("s_load_dwordx8 s[48:55], s[0:1], 64")
    A("s_load_dwordx2 s[56:57], s[0:1], 96")
    A(f"v_lshrrev_b32 v1, 6, v0"); A("v_and_b32 v0, 63, v0"); A("s_nop 0")
    A(f"v_readfirstlane_b32 {sWAVE}, v1")
    A(f"v_and_b32 v{vN}, 15, v0"); A(f"v_lshrrev_b32 v{vG}, 4, v0")
    A(f"v_lshlrev_b32 v{vKO}, 8, v{vN}"); A(f"v_lshl_add_u32 v{vKO}, v{vG}, 4, v{vKO}")
    A(f"v_lshlrev_b32 v{vVO}, 10, v{vG}"); A(f"v_lshl_add_u32 v{vVO}, v{vN}, 4, v{vVO}")
    A(f"s_lshr_b32 {sH}, {sWG}, 3")
    if hmap == 1: A(f"s_and_b32 {sS}, {sWG}, 7")
    else: A(f"s_add_u32 {sS}, {sWG}, {sH}"); A(f"s_and_b32 {sS}, {sS}, 7")
    A(f"s_lshl_b32 {sBASE}, {sH}, 23")
    a_, b_, c_ = STR
    A(f"s_mul_i32 {sSB}, {sS}, {a_}"); A(f"s_mov_b32 {sSTC}, {a_}")
    A(f"s_mul_i32 {sT0}, {sS}, {b_}"); A(f"s_add_u32 {sT0}, {sT0}, {4*a_ - 4*b_ & 0xffffffff}")
    A(f"s_cmp_ge_u32 {sS}, 4"); A(f"s_cselect_b32 {sSB}, {sT0}, {sSB}"); A(f"s_cselect_b32 {sSTC}, {b_}, {sSTC}")
    A(f"s_mul_i32 {sT0}, {sS}, {c_}"); A(f"s_add_u32 {sT0}, {sT0}, {(4*a_ + 2*b_ - 6*c_) & 0xffffffff}")
    A(f"s_cmp_ge_u32 {sS}, 6"); A(f"s_cselect_b32 {sSB}, {sT0}, {sSB}"); A(f"s_cselect_b32 {sSTC}, {c_}, {sSTC}")
    if ilv: A(f"s_lshl_b32 {sSB}, {sS}, 2")
    A(f"s_add_u32 {sT0}, {sSB}, {sWAVE}"); A(f"s_lshl_b32 {sKOFF}, {sT0}, 12"); A(f"s_add_u32 {sKOFF}, {sKOFF}, {sBASE}")
    A("s_waitcnt lgkmcnt(0)")
    srd(SWS, 56, WS_SIZE)
    stamp(0)
    if ts:
        A(f"s_add_u32 s92, s92, {13*4}"); A(f"v_mov_b32 v{sreg[0]}, s86")
        A(f"buffer_store_dword v{sreg[0]}, v{sreg[1]}, {SWS}, s92 offen")
    A(f"s_cmp_eq_u32 {sWAVE}, {NSW}"); A("s_cbranch_scc1 L_service")

    srd(SK, 34, 0x10000000); srd(SV, 36, 0x10000000)
    vNEXT, vCA, vONE = vT + 2, vT + 1, vT
    vNX = [56 + k for k in range(D)]
    def issue_tile(s):
        issue_k(s, sKOFF); issue_v(s, sKOFF); A(f"s_add_u32 {sKOFF}, {sKOFF}, {NSW*4096*(8 if ilv else 1)}")
    A(f"s_cmp_lt_u32 {sS}, 4"); A("s_cbranch_scc1 L_s_prod")
    for s in range(D + XS):
        issue_tile(s)
        if s == 0: stamp(14)
    masks()
    A.label("L_s_join")
    A(f"v_mov_b32 v{vm}, 0xff800000"); A(f"v_mov_b32 v{vl}, 0")
    for r in range(4): A(f"v_mov_b32 v{vO+r}, 0")
    for s in range(D):
        A(f"s_mov_b32 s{sVAL+s}, 1")
    A(f"s_mov_b32 {sSTOP}, 0")
    sDB, sDN = "s82", "s83"
    A(f"s_mov_b32 {sDB}, -1"); A(f"s_mov_b32 {sDN}, 0")
    A(f"s_mov_b32 {sNREC}, 0x10000000")
    A(f"v_lshlrev_b32 v{vt3}, 4, v{vG}")
    A(f"v_mov_b32 v{vCA}, 0"); A(f"v_mov_b32 v{vONE}, 1")
    A("s_barrier")
    for i in range(4): A(f"ds_read_b128 {vr(vQ+4*i,4)}, v{vt3} offset:{L_QA + i*64}")
    def grab():
        A("s_mov_b64 exec, 1")
        A(f"ds_add_rtn_u32 v{vNEXT}, v{vCA}, v{vONE} offset:{L_CNT}")
        A("s_mov_b64 exec, -1")
    grab()
    sWOF = "s101"
    if latewo & 2:
        A(f"s_cmp_lg_u32 {sWAVE}, 0"); A(f"s_cselect_b32 {sWOF}, 0, 1")
    if not noB and not early and not (latewo & 2):
        A(f"s_cmp_lg_u32 {sWAVE}, 0"); A("s_cbranch_scc1 L_s_nowo")
        wo_issue(50)
        A.label("L_s_nowo")
    A("s_waitcnt lgkmcnt(0)")
    stamp(1)
    NW = 8 * D - 4
    def step(s, nwk, nwv, refill=True, check=True):
        if check and not drain: A(f"s_cmp_eq_u32 s{sVAL+s}, 0"); A("s_cbranch_scc1 L_sdone")
        A(f"s_waitcnt vmcnt({nwk})")
        for i in range(4): mfma(vS, kreg(s, i), vQ + 4 * i, None if i == 0 else vS)
        if not refill:
            A("s_nop 7")
            softmax_update(vS, vP, vm, vl, vO, vt0, vt1, vt2)
            A(f"s_waitcnt vmcnt({nwv})")
            pv(vO, vP, lambda t: vreg(s, t))
            return
        A("s_waitcnt lgkmcnt(0)")
        A(f"v_readfirstlane_b32 {sT1}, v{vNEXT}")
        grab()
        ldyn = A.newlabel("L_dyn"); ldec = A.newlabel("L_dec"); lhave = A.newlabel("L_have"); lsp = A.newlabel("L_sp")
        if ts:
            lab = A.newlabel("L_nots")
            A(f"s_and_b32 s92, {sT1}, 15"); A("s_cmp_lg_u32 s92, 0"); A(f"s_cbranch_scc1 {lab}")
            A("s_memrealtime s[90:91]")
            A(f"s_lshl_b32 s92, s2, 7"); A(f"s_lshr_b32 s94, {sT1}, 2"); A("s_add_u32 s92, s92, s94"); A(f"s_add_u32 s92, s92, {WS_TS + 0x100000}")
            A("s_waitcnt lgkmcnt(0)")
            A(f"v_mov_b32 v{vt3}, s90")
            A(f"buffer_store_dword v{vt3}, v{vCA}, {SWS}, s92 offen")
            A.label(lab)
        if ilv:
            A(f"s_lshr_b32 {sT2}, {sT1}, 2"); A(f"s_lshl_b32 {sT2}, {sT2}, 5"); A(f"s_and_b32 {sT3}, {sT1}, 3"); A(f"s_add_u32 {sT2}, {sT2}, {sT3}"); A(f"s_add_u32 {sT2}, {sT2}, {sSB}")
        else:
            A(f"s_add_u32 {sT2}, {sT1}, {sSB}")
        A(f"s_cmp_lt_u32 {sT1}, {sSTC}"); A(f"s_cbranch_scc1 {ldec}")
        A(f"s_cmp_lg_u32 {sDB}, -1"); A(f"s_cbranch_scc1 {lhave}")
        A(f"s_mov_b32 {sTO}, {TMO*16}")
        A.label(lsp)
        A(f"ds_read_b64 {vr(vt2,2)}, v{vCA} offset:{L_DYN}")
        A("s_waitcnt lgkmcnt(0)")
        A(f"v_readfirstlane_b32 {sDB}, v{vt2}"); A(f"v_readfirstlane_b32 {sDN}, v{vt3}")
        A("s_nop 3")
        A(f"s_cmp_lg_u32 {sDB}, -1"); A(f"s_cbranch_scc1 {lhave}")
        A("s_sleep 2")
        A(f"s_sub_u32 {sTO}, {sTO}, 1"); A(f"s_cmp_lg_u32 {sTO}, 0"); A(f"s_cbranch_scc1 {lsp}")
        A(f"s_mov_b32 {sDB}, 0"); A(f"s_mov_b32 {sDN}, 0")
        A.label(lhave)
        A(f"s_sub_u32 {sT0}, {sT1}, {sSTC}")
        A(f"s_add_u32 {sT2}, {sT0}, {sDB}"); A(f"s_and_b32 {sT2}, {sT2}, 2047")
        if drain:
            A(f"s_add_u32 {sT3}, {sT0}, {WOK}"); A(f"s_cmp_lt_u32 {sT3}, {sDN}"); A(f"s_cselect_b32 {sSTOP}, {sSTOP}, 1")
            A(f"s_cmp_lt_u32 {sT0}, {sDN}"); A(f"s_cbranch_scc0 L_drain{s}")
            A.label(ldec)
        else:
            A(f"s_cmp_lt_u32 {sT0}, {sDN}")
            A(f"s_cselect_b32 {sSTOP}, {sSTOP}, 1")
            A.label(ldec)
            A(f"s_cselect_b32 s{sVAL+s}, 1, 0"); A(f"s_cselect_b32 s6, {sNREC}, 0"); A(f"s_cselect_b32 s10, {sNREC}, 0")
        A(f"s_lshl_b32 {sKOFF}, {sT2}, 12"); A(f"s_add_u32 {sKOFF}, {sKOFF}, {sBASE}")
        issue_k(s, sKOFF)
        softmax_update(vS, vP, vm, vl, vO, vt0, vt1, vt2)
        A(f"s_waitcnt vmcnt({nwv})")
        pv(vO, vP, lambda t: vreg(s, t))
        issue_v(s, sKOFF)
    if XS:
        NX = 8 * (D + XS) - 4
        for s in range(D): step(s, NX, NX, True, False)
        out = 8 * (D + XS)
        for s in range(D, D + XS):
            step(s, out - 4, out - 8, False, False); out -= 8
    A.label("L_loop")
    if latewo & 2:
        A(f"s_and_b32 {sT0}, {sWOF}, {sSTOP}"); A("s_cbranch_scc0 L_s_nowo2")
        wo_issue(50)
        A(f"s_mov_b32 {sWOF}, 0")
        A.label("L_s_nowo2")
    for s in range(D): step(s, NW, NW)
    A("s_branch L_loop")
    if drain:
        assert XS == 0
        for s0 in range(D):
            A.label(f"L_drain{s0}")
            stamp(15)
            softmax_update(vS, vP, vm, vl, vO, vt0, vt1, vt2)
            A(f"s_waitcnt vmcnt({8*(D-1)})")
            pv(vO, vP, lambda t: vreg(s0, t))
            for j in range(1, D):
                step((s0 + j) % D, 8 * (D - j) - 4, 8 * (D - j - 1), False, False)
            if s0 < D - 1: A("s_branch L_sdone")
        A("s_nop 3")
    A.label("L_sdone")
    xgroup_reduce("v_add_f32", vl, vt0)
    A(f"v_and_b32 v{vt1}, 7, v{vN}"); A(f"v_lshl_add_u32 v{vt1}, v{vG}, 5, v{vt1}"); A(f"v_lshlrev_b32 v{vt1}, 2, v{vt1}")
    A(f"s_lshl_b32 {sT0}, {sWAVE}, 9"); A(f"v_add_u32 v{vt1}, {sT0}, v{vt1}")
    A(f"s_lshl_b32 {sT0}, {sWAVE}, 3"); A(f"v_mov_b32 v{vt2}, {sT0}")
    for r in range(4): A(f"ds_write_b32 v{vt1}, v{vO+r} offset:{L_OPART + r*32}")
    A(f"ds_write_b64 v{vt2}, {vr(vm,2)} offset:{L_ML}")
    A("s_waitcnt lgkmcnt(0)")
    stamp(2)
    A("s_barrier")
    if noB:
        A("s_endpgm")
    else:
        A(f"s_cmp_eq_u32 {sWAVE}, 0"); A("s_cbranch_scc1 L_btail")
        A("s_endpgm")
        A.label("L_btail")
        sreg[0], sreg[1] = 20, 21
        A("s_setprio 3")
        if latewo & 2:
            A(f"s_cmp_eq_u32 {sWOF}, 0"); A("s_cbranch_scc1 L_s_nowo3")
            wo_issue(50)
            A.label("L_s_nowo3")
        A(f"v_mov_b32 v{vt1}, 0")
        A(f"ds_read_b32 v{vt0}, v{vt1} offset:{L_EP}")
        A(f"s_add_u32 {sHD}, {sH}, 32")
        tail_prep()
        A("s_waitcnt lgkmcnt(0)")
        A(f"v_readfirstlane_b32 {sE}, v{vt0}")
        A("s_branch L_tail2" if early else "s_branch L_tail")
    sreg[0], sreg[1] = 54, 55
    A.label("L_s_prod")
    A("s_setprio 2")
    qprod_issue()
    masks()
    A("s_waitcnt vmcnt(0)")
    stamp(12)
    qprod_compute()
    A("s_setprio 0")
    for s in range(D + XS): issue_tile(s)
    A("s_branch L_s_join")

    A.label("L_service")
    sreg[0], sreg[1] = 254, 255
    A("s_setprio 3")
    srd(SDBG, 54, 256)
    A(f"v_mov_b32 v{vt1}, 0")
    A(f"s_cmp_lg_u32 {sWG}, 0"); A("s_cbranch_scc1 L_v_noep0")
    A("s_memrealtime s[90:91]")
    A("s_waitcnt lgkmcnt(0)")
    A(f"s_max_u32 {sE}, s90, 1")
    A(f"v_mov_b32 v{vt0}, {sE}")
    A("s_mov_b64 exec, 1")
    A(f"buffer_store_dword v{vt0}, v{vt1}, {SDBG}, 0 offen sc1")
    A("s_mov_b64 exec, -1")
    A.label("L_v_noep0")
    masks()
    A(f"v_mov_b32 v{vt0}, {(D+XS)*NSW}"); A(f"v_mov_b32 v{vt1}, 0"); A(f"v_mov_b32 v{vt2}, -1")
    A(f"ds_write_b32 v{vt1}, v{vt0} offset:{L_CNT}")
    A(f"ds_write_b32 v{vt1}, v{vt2} offset:{L_DYN}")
    A(f"s_mov_b32 {sTO}, {TMO}")
    A.label("L_ep_loop")
    A(f"buffer_load_dword v{vt0}, v{vt1}, {SDBG}, 0 offen sc1")
    A("s_waitcnt vmcnt(0)")
    A(f"v_readfirstlane_b32 {sE}, v{vt0}")
    A("s_nop 3")
    A(f"s_cmp_lg_u32 {sE}, 0"); A("s_cbranch_scc1 L_ep_done")
    A(f"s_sleep {sleep}")
    A(f"s_sub_u32 {sTO}, {sTO}, 1"); A(f"s_cmp_lg_u32 {sTO}, 0"); A("s_cbranch_scc1 L_ep_loop")
    A.label("L_ep_done")
    stamp(11)
    vLO8 = vt5
    A(f"v_lshlrev_b32 v{vLO8}, 3, v{vLANE}")
    A(f"s_cmp_ge_u32 {sS}, 4"); A("s_cbranch_scc1 L_v_noprod3")
    A(f"v_and_b32 v{vt1}, 31, v{vLANE}"); A(f"v_lshlrev_b32 v{vt1}, 3, v{vt1}")
    A(f"s_lshr_b32 {sT0}, {sS}, 1"); A(f"s_lshl_b32 {sT0}, {sT0}, 5"); A(f"s_add_u32 {sT0}, {sT0}, {sH}"); A(f"s_lshl_b32 {sT0}, {sT0}, 9")
    A(f"s_and_b32 {sT1}, {sS}, 1"); A(f"s_lshl_b32 {sT1}, {sT1}, 8"); A(f"s_add_u32 {sT0}, {sT0}, {sT1}"); A(f"s_add_u32 {sT0}, {sT0}, {WS_QF}")
    A("s_barrier")
    for k in range(2*NSW): A(f"ds_read_b64 {vr(WQ+2*k,2)}, v{vt1} offset:{L_QPART + k*256}")
    A("s_waitcnt lgkmcnt(0)")
    for k in range(1, 2*NSW):
        A(f"v_add_f32 v{WQ}, v{WQ}, v{WQ+2*k}"); A(f"v_add_f32 v{WQ+1}, v{WQ+1}, v{WQ+2*k+1}")
    A(f"v_cvt_pk_bf16_f32 v{vB0}, v{WQ}, v{WQ+1}"); A(f"v_mov_b32 v{vB0+1}, {sE}")
    A("s_mov_b32 exec_hi, 0")
    A(f"buffer_store_dwordx2 {vr(vB0,2)}, v{vt1}, {SWS}, {sT0} offen sc1")
    A("s_mov_b64 exec, -1")
    stamp(3)
    A.label("L_v_noprod3")
    A(f"s_lshl_b32 {sT0}, {sH}, 9"); A(f"s_add_u32 {sT0}, {sT0}, {WS_QF}")
    lab = poll_begin()
    A(f"buffer_load_dwordx2 {vr(vQ,2)}, v{vLO8}, {SWS}, {sT0} offen sc1")
    poll_end(lab, [vQ + 1], sleep)
    A(f"v_lshlrev_b32 v{vt2}, 2, v{vLANE}")
    A(f"ds_write_b32 v{vt2}, v{vQ} offset:{L_QA}")
    A(f"v_mov_b32 v{vt0}, {sE}"); A(f"v_mov_b32 v{vt1}, 0")
    A(f"ds_write_b32 v{vt1}, v{vt0} offset:{L_EP}")
    A("s_waitcnt lgkmcnt(0)")
    A("s_barrier")
    if noB:
        A("s_barrier"); A("s_endpgm")
    PBR = 64
    A(f"s_cmp_lt_u32 {sS}, 6"); A("s_cbranch_scc1 L_v_noB")
    srd(SK, 44, 0x4000000); srd(SV, 46, 0x4000000)
    A(f"s_lshl_b32 {sT0}, {sH}, 1"); A(f"s_add_u32 {sT0}, {sT0}, {sS}"); A(f"s_sub_u32 {sT0}, {sT0}, 6")
    A(f"s_lshr_b32 {sT1}, {sT0}, 3"); A(f"s_and_b32 {sBU}, {sT0}, 7")
    A(f"s_lshl_b32 {sBB}, {sT1}, 23"); A(f"s_add_u32 {sBB}, {sBB}, {28672*256}"); A(f"s_lshl_b32 {sT2}, {sBU}, 12"); A(f"s_add_u32 {sBB}, {sBB}, {sT2}")
    A(f"s_mul_i32 {sBJ}, {sT0}, {brot}")
    A(f"s_mov_b32 {sBN}, 28")
    A(f"s_mov_b32 {sNREC}, 0x4000000")
    def boff():
        A(f"s_and_b32 {sKOFF}, {sBJ}, 31"); A(f"s_lshl_b32 {sKOFF}, {sKOFF}, 15"); A(f"s_add_u32 {sKOFF}, {sKOFF}, {sBB}"); A(f"s_add_u32 {sBJ}, {sBJ}, 1")
    for s in range(4):
        boff(); issue_k(s, sKOFF); issue_v(s, sKOFF)
    A(f"s_lshl_b32 {sT0}, {sT1}, 11"); A(f"s_add_u32 {sT0}, {sT0}, {WS_QF + 32*512}")
    lab = poll_begin()
    for hh in range(4):
        A(f"buffer_load_dwordx2 {vr(vQ+2*hh,2)}, v{vLO8}, {SWS}, {sT0} offen offset:{hh*512} sc1")
    poll_end(lab, [vQ + 2 * hh + 1 for hh in range(4)], 16)
    for hh in range(4): A(f"ds_write_b32 v{vt2}, v{vQ+2*hh} offset:{L_QB + hh*256}")
    A("s_waitcnt lgkmcnt(0)")
    QBp = [vQ, WQ]
    stO = [vO, 232]; stS = [vS, 236]; stP = [vP, 240]; stm = [vm, 244]; stl = [vl, 245]
    A(f"v_lshrrev_b32 v{vt3}, 3, v{vN}"); A(f"v_lshlrev_b32 v{vt3}, 8, v{vt3}"); A(f"v_lshl_add_u32 v{vt3}, v{vG}, 4, v{vt3}")
    for pp in range(2):
        for i in range(4): A(f"ds_read_b128 {vr(QBp[pp]+4*i,4)}, v{vt3} offset:{L_QB + pp*512 + i*64}")
        A(f"v_mov_b32 v{stm[pp]}, 0xff800000"); A(f"v_mov_b32 v{stl[pp]}, 0")
        for r in range(4): A(f"v_mov_b32 v{stO[pp]+r}, 0")
    A("s_waitcnt lgkmcnt(0)")
    stamp(4)
    A.label("L_bloop")
    for s in range(4):
        A("s_waitcnt vmcnt(28)")
        for pp in range(2):
            for i in range(4): mfma(stS[pp], kreg(s, i), QBp[pp] + 4 * i, None if i == 0 else stS[pp])
        A(f"s_cmp_gt_i32 {sBN}, 0"); A(f"s_cselect_b32 s6, {sNREC}, 0"); A(f"s_cselect_b32 s10, {sNREC}, 0")
        boff(); issue_k(s, sKOFF)
        for pp in range(2): softmax_update(stS[pp], stP[pp], stm[pp], stl[pp], stO[pp], vt0, vt1, vt2)
        A("s_waitcnt vmcnt(28)")
        for pp in range(2): pv(stO[pp], stP[pp], lambda t: vreg(s, t))
        issue_v(s, sKOFF)
        A(f"s_sub_u32 {sBN}, {sBN}, 1")
    A(f"s_cmp_gt_i32 {sBN}, -4"); A("s_cbranch_scc1 L_bloop")
    stamp(10)
    A("s_waitcnt vmcnt(0)")
    A(f"v_and_b32 v{vt1}, 7, v{vN}"); A(f"v_lshl_add_u32 v{vt1}, v{vG}, 5, v{vt1}"); A(f"v_lshrrev_b32 v{vt2}, 3, v{vN}"); A(f"v_lshl_add_u32 v{vt1}, v{vt2}, 7, v{vt1}")
    A(f"v_lshlrev_b32 v{vt1}, 2, v{vt1}")
    A("s_nop 3")
    for pp in range(2):
        for r in range(4): A(f"ds_write_b32 v{vt1}, v{stO[pp]+r} offset:{L_OB + pp*1024 + r*32}")
        xgroup_reduce("v_add_f32", stl[pp], vt0)
        R = PBR + 16 + pp * 4
        A(f"v_mov_b32 v{R}, v{stm[pp]}"); A(f"v_mov_b32 v{R+1}, {sE}"); A(f"v_mov_b32 v{R+2}, v{stl[pp]}"); A(f"v_mov_b32 v{R+3}, {sE}")
    A("s_waitcnt lgkmcnt(0)")
    for hh in range(4): A(f"ds_read_b64 {vr(vQ+2*hh,2)}, v{vLO8} offset:{L_OB + hh*512}")
    A("s_waitcnt lgkmcnt(0)")
    for hh in range(4):
        R = PBR + hh * 4
        A(f"v_mov_b32 v{R}, v{vQ+2*hh}"); A(f"v_mov_b32 v{R+1}, {sE}"); A(f"v_mov_b32 v{R+2}, v{vQ+2*hh+1}"); A(f"v_mov_b32 v{R+3}, {sE}")
    sPB0, sPB1, sML0 = "s76", "s77", "s78"
    vBML = 88
    A(f"s_lshr_b32 {sT0}, {sH}, 2"); A(f"s_lshl_b32 {sT0}, {sT0}, 5"); A(f"s_add_u32 {sT0}, {sT0}, {sBU}"); A(f"s_add_u32 {sT0}, {sT0}, 256")
    A(f"s_lshl_b32 {sPB0}, {sT0}, 10"); A(f"s_add_u32 {sPB0}, {sPB0}, {WS_P}")
    A(f"s_lshl_b32 {sML0}, {sT0}, 4"); A(f"s_add_u32 {sML0}, {sML0}, {WS_ML}")
    A.label("L_v_noB")
    sreg[0], sreg[1] = 20, 21
    A(f"v_lshrrev_b32 v{vBML}, 3, v{vN}"); A(f"v_lshlrev_b32 v{vBML}, 7, v{vBML}")
    def pb_publish(lab):
        A(f"s_cmp_lt_u32 {sS}, 6"); A(f"s_cbranch_scc1 {lab}")
        for hh in range(4):
            A(f"buffer_store_dwordx4 {vr(PBR+hh*4,4)}, v{vA16}, {SWS}, {sPB0} offen sc1")
            if hh < 3: A(f"s_add_u32 {sPB0}, {sPB0}, 8192")
        A("s_mov_b64 exec, 0x101")
        for pp in range(2):
            A(f"buffer_store_dwordx4 {vr(PBR+16+pp*4,4)}, v{vBML}, {SWS}, {sML0} offen offset:{pp*256} sc1")
        A("s_mov_b64 exec, -1")
        A.label(lab)
    def cntwait(thr_s):
        l1 = A.newlabel("L_cw"); l2 = A.newlabel("L_cwok")
        A(f"v_mov_b32 v{vt1}, 0"); A(f"s_mov_b32 {sTO}, {TMO}")
        A.label(l1)
        A(f"ds_read_b32 v{vt0}, v{vt1} offset:{L_CNT}")
        A("s_waitcnt lgkmcnt(0)")
        A(f"v_readfirstlane_b32 {sT0}, v{vt0}")
        A("s_nop 3")
        A(f"s_cmp_ge_u32 {sT0}, {thr_s}"); A(f"s_cbranch_scc1 {l2}")
        A(f"s_sleep {bsl}")
        A(f"s_sub_u32 {sTO}, {sTO}, 1"); A(f"s_cmp_lg_u32 {sTO}, 0"); A(f"s_cbranch_scc1 {l1}")
        A.label(l2)
    sK1, sTT1 = "s80", "s81"
    A(f"s_mov_b32 {sHD}, {sH}")
    tail_prep()
    sSMP = "s79"
    A(f"s_mov_b32 {sSMP}, {sSTC}")
    if ilv:
        A(f"s_cmp_lt_u32 {sS}, 4"); A(f"s_cselect_b32 {sT0}, {KP}, 0"); A(f"s_cmp_ge_u32 {sS}, 6"); A(f"s_cselect_b32 {sT0}, {KB}, {sT0}"); A(f"s_sub_u32 {sSMP}, {sSTC}, {sT0}")
    A(f"s_sub_u32 {sT3}, {sSMP}, {K1}")
    cntwait(sT3)
    A("s_memrealtime s[90:91]"); A(f"s_mov_b32 {sK1}, {sT0}"); A("s_waitcnt lgkmcnt(0)"); A(f"s_mov_b32 {sTT1}, s90")
    A(f"s_sub_u32 {sT3}, {sSMP}, {K2}"); A(f"s_add_u32 {sT1}, {sK1}, 16"); A(f"s_max_u32 {sT3}, {sT3}, {sT1}"); A(f"s_min_u32 {sT3}, {sT3}, {sSTC}")
    cntwait(sT3)
    A("s_memrealtime s[90:91]"); A("s_waitcnt lgkmcnt(0)")
    A(f"s_sub_u32 {sT1}, {sT0}, {sK1}"); A(f"s_max_u32 {sT1}, {sT1}, 1")
    A(f"s_sub_u32 {sT2}, s90, {sTT1}")
    A(f"s_max_u32 {sT2}, {sT2}, 1")
    A(f"s_sub_u32 {sT3}, s90, {sE}")
    A(f"s_sub_i32 {sT0}, {sSTC}, {sT0}")
    A(f"v_cvt_f32_u32 v{vt0}, {sT1}"); A(f"v_cvt_f32_u32 v{vt1}, {sT2}"); A(f"v_cvt_f32_u32 v{vt2}, {sT3}"); A(f"v_cvt_f32_i32 v{vt3}, {sT0}")
    A(f"v_rcp_f32 v{vt4}, v{vt1}"); A(f"v_rcp_f32 v{vT}, v{vt0}"); A("s_nop 0")
    A(f"v_mul_f32 v{vB0}, v{vt0}, v{vt4}")
    A(f"v_mul_f32 v{vT}, v{vT}, v{vt1}")
    A(f"v_fma_f32 v{vB0+2}, v{vt3}, v{vT}, v{vt2}")
    A(f"v_mov_b32 v{vB0+1}, {sE}"); A(f"v_mov_b32 v{vB0+3}, {sE}")
    A(f"s_lshl_b32 {sT2}, {sH}, 7"); A(f"s_add_u32 {sT2}, {sT2}, {WS_BAL}"); A(f"s_lshl_b32 {sT1}, {sS}, 4"); A(f"s_add_u32 {sT1}, {sT1}, {sT2}")
    A(f"v_mov_b32 v{vt1}, 0")
    A("s_mov_b64 exec, 1")
    A(f"buffer_store_dwordx4 {vr(vB0,4)}, v{vt1}, {SWS}, {sT1} offen sc1")
    A("s_mov_b64 exec, -1")
    pb_publish("L_v_pbdone")
    lab = poll_begin()
    A(f"buffer_load_dwordx4 {vr(vML,4)}, v{vAML}, {SWS}, {sT2} offen sc1")
    poll_end(lab, [vML + 1, vML + 3], 4)
    def bsum8(v):
        A("s_nop 1"); A(f"v_add_f32_dpp v{v}, v{v}, v{v} quad_perm:[1,0,3,2] {DPP}")
        A("s_nop 1"); A(f"v_add_f32_dpp v{v}, v{v}, v{v} quad_perm:[2,3,0,1] {DPP}")
        A("s_nop 1"); A(f"v_add_f32_dpp v{v}, v{v}, v{v} row_half_mirror {DPP}")
    A(f"v_mov_b32 v{vt0}, v{vML}"); A(f"v_mul_f32 v{vt1}, v{vML}, v{vML+2}")
    bsum8(vt0); bsum8(vt1)
    A(f"v_add_f32 v{vt1}, {hex(f2u(float(RT)))}, v{vt1}")
    A(f"v_rcp_f32 v{vt0}, v{vt0}"); A("s_nop 0")
    A(f"v_mul_f32 v{vt1}, v{vt1}, v{vt0}")
    A(f"v_sub_f32 v{vt1}, v{vt1}, v{vML+2}"); A(f"v_mul_f32 v{vt1}, v{vt1}, v{vML}")
    A(f"v_max_f32 v{vt1}, 0, v{vt1}")
    A(f"v_min_f32 v{vt1}, {hex(f2u(4096.0))}, v{vt1}")
    A(f"v_add_f32 v{vt1}, {hex(f2u(1e-3))}, v{vt1}")
    for sh in (1, 2, 4):
        A("s_nop 1"); A(f"v_add_f32_dpp v{vt1}, v{vt1}, v{vt1} row_shr:{sh} row_mask:0xf bank_mask:0xf bound_ctrl:0")
    A("s_nop 1")
    A(f"v_readlane_b32 {sT0}, v{vt1}, 7"); A("s_nop 1")
    A(f"v_rcp_f32 v{vt0}, {sT0}"); A("s_nop 0")
    A(f"v_mul_f32 v{vt0}, {hex(f2u(float(RT)))}, v{vt0}")
    A(f"v_mul_f32 v{vt1}, v{vt1}, v{vt0}"); A(f"v_rndne_f32 v{vt1}, v{vt1}"); A(f"v_cvt_u32_f32 v{vt1}, v{vt1}")
    A(f"v_min_u32 v{vt1}, {RT}, v{vt1}")
    A(f"s_sub_u32 {sT1}, {sS}, 1"); A(f"s_and_b32 {sT1}, {sT1}, 7"); A("s_nop 1")
    A(f"v_readlane_b32 {sT2}, v{vt1}, {sS}"); A(f"v_readlane_b32 {sT3}, v{vt1}, {sT1}")
    A("s_nop 3")
    A(f"s_cmp_eq_u32 {sS}, 7"); A(f"s_cselect_b32 {sT2}, {RT}, {sT2}")
    A(f"s_cmp_eq_u32 {sS}, 0"); A(f"s_cselect_b32 {sT3}, 0, {sT3}")
    A(f"s_sub_u32 {sT2}, {sT2}, {sT3}")
    A(f"s_add_u32 {sT3}, {sT3}, {DYN0}")
    A(f"v_mov_b32 v{vt2}, {sT3}"); A(f"v_mov_b32 v{vt3}, {sT2}"); A(f"v_mov_b32 v{vt1}, 0")
    A(f"ds_write_b64 v{vt1}, {vr(vt2,2)} offset:{L_DYN}")
    if ts:
        A(f"s_lshl_b32 s92, s2, 6"); A(f"s_add_u32 s92, s92, {WS_TS + 0x200000}")
        A(f"buffer_store_dword v{vt3}, v{vt1}, {SWS}, s92 offen")
    stamp(9)
    A(f"s_add_u32 {sT3}, {sT2}, {sSTC}"); A(f"s_add_u32 {sT3}, {sT3}, {X2}")
    cntwait(sT3)
    wo_issue(40)
    A(f"v_mov_b32 v{vt2}, 0")
    A(f"s_lshl_b32 {sT0}, {sH}, 3"); A(f"s_add_u32 {sT0}, {sT0}, {sS}"); A(f"s_lshl_b32 {sT1}, {sT0}, 4"); A(f"s_lshl_b32 {sT0}, {sT0}, 10")
    A(f"s_add_u32 {sT0}, {sT0}, {WS_P}"); A(f"s_add_u32 {sT1}, {sT1}, {WS_ML}")
    A(f"v_mov_b32 v{vB0+1}, {sE}"); A(f"v_mov_b32 v{vB0+3}, {sE}"); A(f"v_mov_b32 v{vB1+1}, {sE}"); A(f"v_mov_b32 v{vB1+3}, {sE}")
    A("s_barrier")
    stamp(8)
    MLW = PO + 16
    for w in range(NSW):
        A(f"ds_read_b64 {vr(MLW+2*w,2)}, v{vt2} offset:{L_ML + w*8}")
    for w in range(NSW):
        A(f"ds_read_b64 {vr(PO+2*w,2)}, v{vA8} offset:{L_OPART + w*512}")
    A(f"s_waitcnt lgkmcnt({NSW})")
    A(f"v_max_f32 v{vB1}, v{MLW}, v{MLW+2}")
    A(f"v_max3_f32 v{vB1}, v{MLW+4}, v{MLW+6}, v{vB1}")
    for w in range(NSW): A(f"v_sub_f32 v{MLW+2*w}, v{MLW+2*w}, v{vB1}")
    for w in range(NSW): A(f"v_mul_f32 v{MLW+2*w}, {sC}, v{MLW+2*w}")
    for w in range(NSW): A(f"v_exp_f32 v{MLW+2*w}, v{MLW+2*w}")
    A("s_waitcnt lgkmcnt(0)")
    A(f"v_mul_f32 v{vB0}, v{PO}, v{MLW}"); A(f"v_mul_f32 v{vB0+2}, v{PO+1}, v{MLW}"); A(f"v_mul_f32 v{vB1+2}, v{MLW+1}, v{MLW}")
    for w in range(1, NSW):
        A(f"v_fma_f32 v{vB0}, v{PO+2*w}, v{MLW+2*w}, v{vB0}"); A(f"v_fma_f32 v{vB0+2}, v{PO+2*w+1}, v{MLW+2*w}, v{vB0+2}")
        A(f"v_fma_f32 v{vB1+2}, v{MLW+2*w+1}, v{MLW+2*w}, v{vB1+2}")
    A(f"buffer_store_dwordx4 {vr(vB0,4)}, v{vA16}, {SWS}, {sT0} offen sc1")
    A("s_mov_b64 exec, 1")
    A(f"buffer_store_dwordx4 {vr(vB1,4)}, v{vt2}, {SWS}, {sT1} offen sc1")
    A("s_mov_b64 exec, -1")
    A.label("L_tail")
    tail()
    A.label("L_end")
    A("s_endpgm")

    out = HEADER + f"; @launch grid=(256,1,1) block=({(NSW+1)*64},1,1) lds={LDS_SIZE}\n"
    out += '.amdgcn_target "amdgcn-amd-amdhsa--gfx950"\n.text\n' + f".globl {KNAME}\n.p2align 8\n.type {KNAME},@function\n{KNAME}:\n"
    out += "\n".join(A.L) + "\n"
    out += f""".section .rodata,"a"
.p2align 6
.amdhsa_kernel {KNAME}
  .amdhsa_next_free_vgpr 256
  .amdhsa_next_free_sgpr 102
  .amdhsa_accum_offset 256
  .amdhsa_group_segment_fixed_size 0
  .amdhsa_kernarg_size 104
  .amdhsa_user_sgpr_count 2
  .amdhsa_user_sgpr_kernarg_segment_ptr 1
  .amdhsa_system_sgpr_workgroup_id_x 1
.end_amdhsa_kernel
"""
    return out

if __name__ == "__main__":
    cfg = json.loads(sys.argv[2]) if len(sys.argv) > 2 else {}
    open(sys.argv[1], "w").write(gen(**cfg))
```

```python
import sys, json, math, struct
from gen import HEADER, KNAME, G, vr, f2u, CSCALE

WS_CNT  = 0x1000
WS_QF   = 0x10000
WS_BAL  = 0x18000
WS_ML   = 0x20000
WS_P    = 0x100000
WS_Y    = 0x200000
WS_TS   = 0x800000
WS_SIZE = 0x1000000

L_QPART = 0
L_QA    = 4096
L_QB    = 4352
L_OPART = 6144
L_OB    = 8192
L_ML    = 10240
L_CNT   = 10304
L_EP    = 10312
L_DYN   = 10320
LDS_SIZE = 12288

def gen(ts=False, kflags="nt", sleep=2, tsleep=1, hmap=1, ST=224, noB=False, D=4, pbthr=0, TMO=0x8000, NSW=4, brot=5, STR=None, xflag=True, early=False, X1=16, X2=0, bsl=4, latewo=3, K1=64, K2=24, XS=0, ilv=False, KB=32, KP=8, fixed=0):
    A = G()
    if STR is None: STR = [ST] * 3
    roles = True
    RT = 2048 - (4 * STR[0] + 2 * STR[1] + 2 * STR[2])
    DYN0 = 2048 - RT
    sreg = [54, 55]
    sWG, sWAVE = "s2", "s3"
    SK, SV, SW, SWS, SX, SDBG, SOUT = "s[4:7]", "s[8:11]", "s[12:15]", "s[16:19]", "s[20:23]", "s[24:27]", "s[28:31]"
    sC = "s58"; sHD = "s59"; sH, sS = "s60", "s61"; sKOFF = "s62"; sSTOP = "s63"; sCOFF = "s64"
    sT0, sT1, sT2, sT3 = "s65", "s66", "s67", "s68"
    sE = "s69"; sSELLO, sSELHI = "s70", "s71"; sHALF = "s[72:73]"; sTO = "s74"; sNREC = "s75"
    sVAL = 76
    sBASE, sSB, sBB, sBU, sBJ, sBN = "s95", "s96", "s97", "s98", "s99", "s100"
    sSTC = "s93"
    vLANE, vN, vG, vKO, vVO = 0, 1, 2, 3, 4
    vM = 5; vT = 9
    vQ = 12; vO = 28; vS = 32; vP = 36; vB0 = 40; vB1 = 44; vm = 48; vl = 49
    vt0, vt1, vt2, vt3, vt4, vt5 = 50, 51, 52, 53, 54, 55
    vX = 56; vML = 60
    RING = 64
    def kreg(slot, i): return RING + slot * 32 + i * 4
    def vreg(slot, i): return RING + slot * 32 + 16 + i * 4
    WQ = 192
    WO = 192; PO = RING + 64
    assert D <= 4
    DPP = "row_mask:0xf bank_mask:0xf"

    def srd(dst, ptr_lo, nbytes):
        b = int(dst[2:].split(":")[0])
        A(f"s_mov_b32 s{b}, s{ptr_lo}"); A(f"s_mov_b32 s{b+1}, s{ptr_lo+1}")
        A(f"s_mov_b32 s{b+2}, {hex(nbytes)}"); A(f"s_mov_b32 s{b+3}, 0x00020000")
    def stamp(idx):
        if not ts: return
        A("s_memrealtime s[90:91]")
        A("s_lshl_b32 s92, s2, 3"); A("s_add_u32 s92, s92, s3"); A("s_lshl_b32 s92, s92, 6")
        A(f"s_add_u32 s92, s92, {WS_TS + idx*4}")
        A("s_waitcnt lgkmcnt(0)")
        A(f"v_mov_b32 v{sreg[0]}, s90"); A(f"v_mov_b32 v{sreg[1]}, 0")
        A(f"buffer_store_dword v{sreg[0]}, v{sreg[1]}, {SWS}, s92 offen")
    def xgroup_reduce(op, v, tmp):
        A(f"v_mov_b32 v{tmp}, v{v}"); A("s_nop 1")
        A(f"v_permlane16_swap_b32 v{v}, v{tmp}")
        A(f"{op} v{v}, v{v}, v{tmp}")
        A(f"v_mov_b32 v{tmp}, v{v}"); A("s_nop 1")
        A(f"v_permlane32_swap_b32 v{v}, v{tmp}")
        A(f"{op} v{v}, v{v}, v{tmp}")
    def mfma(d, a, b, c):
        cs = "0" if c is None else vr(c, 4)
        A(f"v_mfma_f32_16x16x32_bf16 {vr(d,4)}, {vr(a,4)}, {vr(b,4)}, {cs}")
    def softmax_update(S, P, m, l, O, t0, t1, t2):
        A(f"v_max_f32 v{t0}, v{S}, v{S+1}")
        A(f"v_max3_f32 v{t0}, v{S+2}, v{S+3}, v{t0}")
        A(f"v_mov_b32 v{t1}, v{t0}"); A("s_nop 1")
        A(f"v_permlane16_swap_b32 v{t0}, v{t1}")
        A(f"v_max_f32 v{t0}, v{t0}, v{t1}")
        A(f"v_mov_b32 v{t1}, v{t0}"); A("s_nop 1")
        A(f"v_permlane32_swap_b32 v{t0}, v{t1}")
        A(f"v_max3_f32 v{t0}, v{t0}, v{t1}, v{m}")
        A(f"v_mul_f32 v{t1}, {sC}, v{t0}")
        A(f"v_fma_f32 v{t2}, v{m}, {sC}, -v{t1}")
        for r in range(4): A(f"v_fma_f32 v{P+r}, v{S+r}, {sC}, -v{t1}")
        A(f"v_exp_f32 v{t2}, v{t2}")
        for r in range(4): A(f"v_exp_f32 v{P+r}, v{P+r}")
        A(f"v_mov_b32 v{m}, v{t0}")
        A(f"v_fma_f32 v{l}, v{l}, v{t2}, v{P}")
        A(f"v_add_f32 v{t1}, v{P+1}, v{P+2}")
        for r in range(4): A(f"v_mul_f32 v{O+r}, v{O+r}, v{t2}")
        A(f"v_add_f32 v{l}, v{l}, v{P+3}")
        A(f"v_add_f32 v{l}, v{l}, v{t1}")
    def pv(O, P, vbase_fn):
        for t in range(4):
            B = vB0 if t % 2 == 0 else vB1
            A(f"v_cvt_pk_bf16_f32 v{vt0}, v{P+t}, v{P+t}")
            for r in range(4): A(f"v_and_b32 v{B+r}, v{vt0}, v{vM+r}")
            A("s_nop 1")
            mfma(O, vbase_fn(t), B, O)
    def issue_k(slot, soff):
        for i in range(4):
            A(f"buffer_load_dwordx4 {vr(kreg(slot,i),4)}, v{vKO}, {SK}, {soff} offen offset:{i*64} {kflags}")
    def issue_v(slot, soff):
        for i in range(4):
            A(f"buffer_load_dwordx4 {vr(vreg(slot,i),4)}, v{vVO}, {SV}, {soff} offen offset:{i*256} {kflags}")
    def poll_begin():
        lab = A.newlabel("L_poll")
        A(f"s_mov_b32 {sTO}, {TMO}")
        A.label(lab)
        return lab
    def poll_end(lab, tagregs, sl):
        done = A.newlabel("L_pdone")
        A("s_waitcnt vmcnt(0)")
        tr = list(tagregs)
        A(f"v_xor_b32 v{vt0}, {sE}, v{tr[0]}")
        k = 1
        while k < len(tr):
            if k + 1 < len(tr):
                A(f"v_xor_b32 v{vt1}, {sE}, v{tr[k]}"); A(f"v_xor_b32 v{vT}, {sE}, v{tr[k+1]}")
                A(f"v_or3_b32 v{vt0}, v{vt0}, v{vt1}, v{vT}"); k += 2
            else:
                A(f"v_xor_b32 v{vt1}, {sE}, v{tr[k]}"); A(f"v_or_b32 v{vt0}, v{vt0}, v{vt1}"); k += 1
        A(f"v_cmp_ne_u32 vcc, 0, v{vt0}")
        A("s_nop 4")
        A(f"s_cbranch_vccz {done}")
        while sl > 0:
            A(f"s_sleep {min(sl,127)}"); sl -= 127
        A(f"s_sub_u32 {sTO}, {sTO}, 1")
        A(f"s_cmp_lg_u32 {sTO}, 0")
        A(f"s_cbranch_scc1 {lab}")
        A.label(done)
    def wo_issue(ptr_lo):
        srd(SW, ptr_lo, 0x400000)
        A(f"v_lshlrev_b32 v{vt1}, 14, v{vG}")
        A(f"v_lshl_add_u32 v{vt1}, v{vN}, 4, v{vt1}")
        A(f"s_lshl_b32 {sT0}, {sH}, 17")
        A(f"s_lshr_b32 {sT1}, {sS}, 2"); A(f"s_lshl_b32 {sT1}, {sT1}, 16"); A(f"s_add_u32 {sT0}, {sT0}, {sT1}")
        A(f"s_and_b32 {sT1}, {sS}, 3"); A(f"s_lshl_b32 {sT1}, {sT1}, 8"); A(f"s_add_u32 {sT0}, {sT0}, {sT1}")
        for a in range(4):
            if a: A(f"s_add_u32 {sT0}, {sT0}, 4096")
            for b in range(4):
                t = a * 4 + b
                A(f"buffer_load_dwordx4 {vr(WO+4*t,4)}, v{vt1}, {SW}, {sT0} offen offset:{b*1024} {kflags}")
    sPA0, sPA1, sMLA, sYP, sYG, sOUTO, sRED = "s84", "s85", "s86", "s87", "s88", "s89", "s94"
    vAML, vA8, vAY, vA16, vAO = 12, 13, 14, 15, 16
    def tail_prep():
        srd(SOUT, 52, 2048)
        A(f"v_and_b32 v{vAML}, 7, v{vLANE}"); A(f"v_lshlrev_b32 v{vAML}, 4, v{vAML}")
        A(f"v_lshlrev_b32 v{vA8}, 3, v{vLANE}")
        A(f"v_lshlrev_b32 v{vAY}, 4, v{vN}"); A(f"v_lshl_add_u32 v{vAY}, v{vG}, 14, v{vAY}")
        A(f"v_lshlrev_b32 v{vA16}, 4, v{vLANE}")
        A(f"v_and_b32 v{vAO}, 7, v{vN}"); A(f"v_lshrrev_b32 v{vt2}, 3, v{vN}"); A(f"v_lshl_add_u32 v{vAO}, v{vt2}, 4, v{vAO}"); A(f"v_lshlrev_b32 v{vAO}, 1, v{vAO}")
        A(f"s_lshl_b32 {sMLA}, {sHD}, 7"); A(f"s_add_u32 {sMLA}, {sMLA}, {WS_ML}")
        A(f"s_lshl_b32 {sPA0}, {sHD}, 13"); A(f"s_lshr_b32 {sT1}, {sS}, 2"); A(f"s_lshl_b32 {sT1}, {sT1}, 9")
        A(f"s_add_u32 {sPA0}, {sPA0}, {sT1}"); A(f"s_add_u32 {sPA0}, {sPA0}, {WS_P}"); A(f"s_add_u32 {sPA1}, {sPA0}, 4096")
        A(f"s_lshr_b32 {sT2}, {sHD}, 5")
        A(f"s_lshl_b32 {sYP}, {sT2}, 18"); A(f"s_add_u32 {sYP}, {sYP}, {WS_Y}"); A(f"s_mov_b32 {sYG}, {sYP}")
        A(f"s_and_b32 {sT0}, {sS}, 3"); A(f"s_lshl_b32 {sT0}, {sT0}, 16"); A(f"s_add_u32 {sYP}, {sYP}, {sT0}")
        A(f"s_lshl_b32 {sT0}, {sH}, 1"); A(f"s_lshr_b32 {sT1}, {sS}, 2"); A(f"s_add_u32 {sT0}, {sT0}, {sT1}"); A(f"s_lshl_b32 {sT0}, {sT0}, 8"); A(f"s_add_u32 {sYP}, {sYP}, {sT0}")
        A(f"s_lshr_b32 {sT3}, {sWG}, 4"); A(f"s_lshl_b32 {sT0}, {sT3}, 14"); A(f"s_add_u32 {sYG}, {sYG}, {sT0}")
        A(f"s_lshl_b32 {sOUTO}, {sT3}, 6"); A(f"s_lshl_b32 {sT0}, {sT2}, 10"); A(f"s_add_u32 {sOUTO}, {sOUTO}, {sT0}")
        A(f"s_and_b32 {sT0}, {sT3}, 7"); A(f"s_lshl_b32 {sT1}, {sT2}, 3"); A(f"s_add_u32 {sT0}, {sT0}, {sT1}")
        A(f"s_and_b32 {sT1}, {sWG}, 15"); A(f"s_cmp_eq_u32 {sT0}, {sT1}"); A(f"s_cselect_b32 {sRED}, 1, 0")
    def tail():
        NP = 8
        lab = poll_begin()
        A(f"buffer_load_dwordx4 {vr(vML,4)}, v{vAML}, {SWS}, {sMLA} offen sc1")
        for p in range(NP):
            A(f"buffer_load_dwordx2 {vr(PO+2*p,2)}, v{vA8}, {SWS}, {sPA0 if p < 4 else sPA1} offen offset:{(p%4)*1024} sc1")
        poll_end(lab, [vML + 1, vML + 3] + [PO + 2 * p + 1 for p in range(NP)], tsleep)
        if not early: stamp(5)
        A(f"v_max_f32_dpp v{vt0}, v{vML}, v{vML} quad_perm:[1,0,3,2] {DPP}"); A("s_nop 1")
        A(f"v_max_f32_dpp v{vt0}, v{vt0}, v{vt0} quad_perm:[2,3,0,1] {DPP}"); A("s_nop 1")
        A(f"v_max_f32_dpp v{vt0}, v{vt0}, v{vt0} row_half_mirror {DPP}")
        A(f"v_sub_f32 v{vt1}, v{vML}, v{vt0}"); A(f"v_mul_f32 v{vt1}, {sC}, v{vt1}"); A(f"v_exp_f32 v{vt1}, v{vt1}")
        A("s_nop 0")
        A(f"v_mul_f32 v{vt2}, v{vt1}, v{vML+2}"); A("s_nop 0")
        A(f"v_mul_f32_dpp v{vt3}, v{vt1}, v{PO} row_newbcast:0 {DPP}")
        A(f"v_add_f32_dpp v{vt2}, v{vt2}, v{vt2} quad_perm:[1,0,3,2] {DPP}")
        A(f"v_fmac_f32_dpp v{vt3}, v{vt1}, v{PO+2} row_newbcast:1 {DPP}")
        A(f"v_fmac_f32_dpp v{vt3}, v{vt1}, v{PO+4} row_newbcast:2 {DPP}")
        A(f"v_add_f32_dpp v{vt2}, v{vt2}, v{vt2} quad_perm:[2,3,0,1] {DPP}")
        A(f"v_fmac_f32_dpp v{vt3}, v{vt1}, v{PO+6} row_newbcast:3 {DPP}")
        A(f"v_fmac_f32_dpp v{vt3}, v{vt1}, v{PO+8} row_newbcast:4 {DPP}")
        A(f"v_add_f32_dpp v{vt2}, v{vt2}, v{vt2} row_half_mirror {DPP}")
        A(f"v_fmac_f32_dpp v{vt3}, v{vt1}, v{PO+10} row_newbcast:5 {DPP}")
        A(f"v_rcp_f32 v{vt2}, v{vt2}")
        A(f"v_fmac_f32_dpp v{vt3}, v{vt1}, v{PO+12} row_newbcast:6 {DPP}")
        A(f"v_fmac_f32_dpp v{vt3}, v{vt1}, v{PO+14} row_newbcast:7 {DPP}")
        A(f"v_mul_f32 v{vt3}, v{vt3}, v{vt2}")
        A(f"v_cvt_pk_bf16_f32 v{vt3}, v{vt3}, v{vt3}")
        A("s_nop 1")
        BS = [PO + 16, PO + 20, PO + 24, PO + 28]
        def build(t):
            for r in range(4): A(f"v_and_b32_dpp v{BS[t%4]+r}, v{vt3}, v{vM+r} row_newbcast:{t} {DPP}")
        build(0); build(1)
        for t in range(16):
            acc = vS if t % 2 == 0 else vP
            mfma(acc, WO + 4 * t, BS[t % 4], None if t < 2 else acc)
            if t + 2 < 16: build(t + 2)
        A(f"v_mov_b32 v{vB0+1}, {sE}"); A(f"v_mov_b32 v{vB0+3}, {sE}")
        A("s_nop 6")
        for r in range(4): A(f"v_add_f32 v{vS+r}, v{vS+r}, v{vP+r}")
        A(f"v_cndmask_b32 v{vB0}, v{vS}, v{vS+2}, {sHALF}")
        A(f"v_cndmask_b32 v{vB0+2}, v{vS+1}, v{vS+3}, {sHALF}")
        A(f"buffer_store_dwordx4 {vr(vB0,4)}, v{vAY}, {SWS}, {sYP} offen sc1")
        if early:
            A(f"s_cmp_ge_u32 {sHD}, 32"); A("s_cbranch_scc1 L_afterB")
        stamp(6)
        A.label("L_tail2")
        A(f"s_cmp_eq_u32 {sRED}, 0"); A("s_cbranch_scc1 L_tail_end")
        A(f"s_add_u32 {sT0}, {sYG}, 4096"); A(f"s_add_u32 {sT1}, {sYG}, 8192"); A(f"s_add_u32 {sT2}, {sYG}, 12288")
        lab = poll_begin()
        for u in range(16):
            A(f"buffer_load_dwordx4 {vr(PO+4*u,4)}, v{vA16}, {SWS}, {[sYG,sT0,sT1,sT2][u//4]} offen offset:{(u%4)*1024} sc1")
        poll_end(lab, [PO + 4 * u + o for u in range(16) for o in (1, 3)], tsleep)
        for u in range(8):
            A(f"v_add_f32 v{PO+4*u}, v{PO+4*u}, v{PO+4*(u+8)}"); A(f"v_add_f32 v{PO+4*u+2}, v{PO+4*u+2}, v{PO+4*(u+8)+2}")
        for u in range(1, 8):
            A(f"v_add_f32 v{PO}, v{PO}, v{PO+4*u}"); A(f"v_add_f32 v{PO+2}, v{PO+2}, v{PO+4*u+2}")
        A(f"v_mov_b32 v{vt0}, v{PO}"); A(f"v_mov_b32 v{vt1}, v{PO+2}"); A("s_nop 0")
        A(f"v_permlane16_swap_b32 v{PO}, v{vt0}"); A(f"v_permlane16_swap_b32 v{PO+2}, v{vt1}")
        A(f"v_add_f32 v{PO}, v{PO}, v{vt0}"); A(f"v_add_f32 v{PO+2}, v{PO+2}, v{vt1}")
        A(f"v_mov_b32 v{vt0}, v{PO}"); A(f"v_mov_b32 v{vt1}, v{PO+2}"); A("s_nop 0")
        A(f"v_permlane32_swap_b32 v{PO}, v{vt0}"); A(f"v_permlane32_swap_b32 v{PO+2}, v{vt1}")
        A(f"v_add_f32 v{PO}, v{PO}, v{vt0}"); A(f"v_add_f32 v{PO+2}, v{PO+2}, v{vt1}")
        A(f"v_cvt_pk_bf16_f32 v{vt0}, v{PO}, v{PO+2}")
        if fixed:
            A.label("L_fix")
            A("s_memrealtime s[90:91]"); A("s_waitcnt lgkmcnt(0)")
            A(f"s_sub_u32 s90, s90, {sE}"); A(f"s_cmp_lt_u32 s90, {fixed}"); A("s_cbranch_scc1 L_fix")
        A("s_mov_b64 exec, 0xffff")
        A(f"buffer_store_short v{vt0}, v{vAO}, {SOUT}, {sOUTO} offen")
        A(f"buffer_store_short_d16_hi v{vt0}, v{vAO}, {SOUT}, {sOUTO} offen offset:16")
        A("s_mov_b64 exec, -1")
        A.label("L_tail_end")
        stamp(7)
        A("s_endpgm")

    NBLK = 8 // NSW
    def qprod_issue():
        A(f"s_cmp_lt_u32 {sS}, 2")
        A("s_cselect_b32 s12, s38, s48"); A("s_cselect_b32 s13, s39, s49"); A("s_mov_b32 s14, 0x400000"); A("s_mov_b32 s15, 0x00020000")
        A("s_cselect_b32 s20, s32, s42"); A("s_cselect_b32 s21, s33, s43"); A("s_mov_b32 s22, 1024"); A("s_mov_b32 s23, 0x00020000")
        A(f"v_lshrrev_b32 v{vT}, 3, v{vN}"); A(f"v_lshl_add_u32 v{vT}, v{vG}, 1, v{vT}")
        A(f"v_lshlrev_b32 v{vT+1}, 4, v{vT}")
        A(f"v_lshlrev_b32 v{vT}, 16, v{vT}")
        A(f"v_and_b32 v{vT+2}, 7, v{vN}"); A(f"v_lshl_add_u32 v{vT}, v{vT+2}, 4, v{vT}")
        A(f"s_mul_i32 {sT1}, {sWAVE}, {128*NBLK}")
        for bk in range(NBLK):
            A(f"buffer_load_dwordx4 {vr(vX+4*bk,4)}, v{vT+1}, {SX}, {sT1} offen offset:{128*bk}")
        A(f"s_mul_i32 {sT0}, {sWAVE}, {NBLK << 19}"); A(f"s_lshl_b32 {sT1}, {sH}, 8"); A(f"s_add_u32 {sT0}, {sT0}, {sT1}")
        A(f"s_and_b32 {sT1}, {sS}, 1"); A(f"s_lshl_b32 {sT1}, {sT1}, 7"); A(f"s_add_u32 {sT0}, {sT0}, {sT1}")
        for bk in range(NBLK):
            for t in range(8):
                A(f"buffer_load_dwordx4 {vr(WQ+32*bk+4*t,4)}, v{vT}, {SW}, {sT0} offen {kflags}")
                if t < 7: A(f"s_add_u32 {sT0}, {sT0}, 8192")
            if bk < NBLK - 1: A(f"s_add_u32 {sT0}, {sT0}, {(64-7)*8192}")
    def qprod_compute():
        for bk in range(NBLK):
            for t in range(8):
                B = vB0 if t % 2 == 0 else vB1
                sel = sSELLO if t % 2 == 0 else sSELHI
                A(f"v_perm_b32 v{vt0}, v{vX+4*bk+t//2}, v{vX+4*bk+t//2}, {sel}")
                for r in range(4): A(f"v_and_b32 v{B+r}, v{vt0}, v{vM+r}")
                A("s_nop 1")
                mfma(vS, WQ + 32 * bk + 4 * t, B, None if (t == 0 and bk == 0) else vS)
        A(f"v_and_b32 v{vt1}, 7, v{vN}"); A(f"v_lshl_add_u32 v{vt1}, v{vG}, 5, v{vt1}"); A(f"v_lshlrev_b32 v{vt1}, 2, v{vt1}")
        A(f"s_lshl_b32 {sT0}, {sWAVE}, 9"); A(f"v_add_u32 v{vt1}, {sT0}, v{vt1}")
        A("s_mov_b32 exec_lo, 0x00ff00ff"); A("s_mov_b32 exec_hi, 0xff00ff00")
        A("s_nop 3")
        for r in range(4): A(f"ds_write_b32 v{vt1}, v{vS+r} offset:{L_QPART + r*32}")
        A("s_mov_b64 exec, -1")
        A("s_waitcnt lgkmcnt(0)")
        A("s_barrier")
    def masks():
        A(f"v_and_b32 v{vt0}, 1, v{vN}")
        A(f"v_mov_b32 v{vt1}, 0xffff")
        A(f"v_lshlrev_b32 v{vt0}, 4, v{vt0}")
        A(f"v_lshlrev_b32 v{vt1}, v{vt0}, v{vt1}")
        A(f"v_bfe_u32 v{vt0}, v{vN}, 1, 2")
        for r in range(4):
            A(f"v_cmp_eq_u32 vcc, {r}, v{vt0}"); A("s_nop 1")
            A(f"v_cndmask_b32 v{vM+r}, 0, v{vt1}, vcc")
        A(f"v_cmp_lt_u32 {sHALF}, 7, v{vN}")
        A(f"s_mov_b32 {sC}, {hex(f2u(CSCALE))}")
        A(f"s_mov_b32 {sSELLO}, 0x01000100"); A(f"s_mov_b32 {sSELHI}, 0x03020302")

    if ts: A("s_memrealtime s[86:87]")
    A(f"s_cmp_ge_u32 {sWG}, 256"); A("s_cbranch_scc1 L_end")
    A("s_load_dwordx16 s[32:47], s[0:1], 0")
    A("s_load_dwordx8 s[48:55], s[0:1], 64")
    A("s_load_dwordx2 s[56:57], s[0:1], 96")
    A(f"v_lshrrev_b32 v1, 6, v0"); A("v_and_b32 v0, 63, v0"); A("s_nop 0")
    A(f"v_readfirstlane_b32 {sWAVE}, v1")
    A(f"v_and_b32 v{vN}, 15, v0"); A(f"v_lshrrev_b32 v{vG}, 4, v0")
    A(f"v_lshlrev_b32 v{vKO}, 8, v{vN}"); A(f"v_lshl_add_u32 v{vKO}, v{vG}, 4, v{vKO}")
    A(f"v_lshlrev_b32 v{vVO}, 10, v{vG}"); A(f"v_lshl_add_u32 v{vVO}, v{vN}, 4, v{vVO}")
    A(f"s_lshr_b32 {sH}, {sWG}, 3")
    if hmap == 1: A(f"s_and_b32 {sS}, {sWG}, 7")
    else: A(f"s_add_u32 {sS}, {sWG}, {sH}"); A(f"s_and_b32 {sS}, {sS}, 7")
    A(f"s_lshl_b32 {sBASE}, {sH}, 23")
    a_, b_, c_ = STR
    A(f"s_mul_i32 {sSB}, {sS}, {a_}"); A(f"s_mov_b32 {sSTC}, {a_}")
    A(f"s_mul_i32 {sT0}, {sS}, {b_}"); A(f"s_add_u32 {sT0}, {sT0}, {4*a_ - 4*b_ & 0xffffffff}")
    A(f"s_cmp_ge_u32 {sS}, 4"); A(f"s_cselect_b32 {sSB}, {sT0}, {sSB}"); A(f"s_cselect_b32 {sSTC}, {b_}, {sSTC}")
    A(f"s_mul_i32 {sT0}, {sS}, {c_}"); A(f"s_add_u32 {sT0}, {sT0}, {(4*a_ + 2*b_ - 6*c_) & 0xffffffff}")
    A(f"s_cmp_ge_u32 {sS}, 6"); A(f"s_cselect_b32 {sSB}, {sT0}, {sSB}"); A(f"s_cselect_b32 {sSTC}, {c_}, {sSTC}")
    if ilv: A(f"s_lshl_b32 {sSB}, {sS}, 2")
    A(f"s_add_u32 {sT0}, {sSB}, {sWAVE}"); A(f"s_lshl_b32 {sKOFF}, {sT0}, 12"); A(f"s_add_u32 {sKOFF}, {sKOFF}, {sBASE}")
    A("s_waitcnt lgkmcnt(0)")
    srd(SWS, 56, WS_SIZE)
    stamp(0)
    if ts:
        A(f"s_add_u32 s92, s92, {13*4}"); A(f"v_mov_b32 v{sreg[0]}, s86")
        A(f"buffer_store_dword v{sreg[0]}, v{sreg[1]}, {SWS}, s92 offen")
    A(f"s_cmp_eq_u32 {sWAVE}, {NSW}"); A("s_cbranch_scc1 L_service")

    srd(SK, 34, 0x10000000); srd(SV, 36, 0x10000000)
    vNEXT, vCA, vONE = vT + 2, vT + 1, vT
    vNX = [56 + k for k in range(D)]
    def issue_tile(s):
        issue_k(s, sKOFF); issue_v(s, sKOFF); A(f"s_add_u32 {sKOFF}, {sKOFF}, {NSW*4096*(8 if ilv else 1)}")
    A(f"s_cmp_lt_u32 {sS}, 4"); A("s_cbranch_scc1 L_s_prod")
    for s in range(D + XS):
        issue_tile(s)
        if s == 0: stamp(14)
    masks()
    A.label("L_s_join")
    A(f"v_mov_b32 v{vm}, 0xff800000"); A(f"v_mov_b32 v{vl}, 0")
    for r in range(4): A(f"v_mov_b32 v{vO+r}, 0")
    for s in range(D):
        A(f"s_mov_b32 s{sVAL+s}, 1")
    A(f"s_mov_b32 {sSTOP}, 0")
    sDB, sDN = "s82", "s83"
    A(f"s_mov_b32 {sDB}, -1"); A(f"s_mov_b32 {sDN}, 0")
    A(f"s_mov_b32 {sNREC}, 0x10000000")
    A(f"v_lshlrev_b32 v{vt3}, 4, v{vG}")
    A(f"v_mov_b32 v{vCA}, 0"); A(f"v_mov_b32 v{vONE}, 1")
    A("s_barrier")
    for i in range(4): A(f"ds_read_b128 {vr(vQ+4*i,4)}, v{vt3} offset:{L_QA + i*64}")
    def grab():
        A("s_mov_b64 exec, 1")
        A(f"ds_add_rtn_u32 v{vNEXT}, v{vCA}, v{vONE} offset:{L_CNT}")
        A("s_mov_b64 exec, -1")
    grab()
    sWOF = "s101"
    if latewo & 2:
        A(f"s_cmp_lg_u32 {sWAVE}, 0"); A(f"s_cselect_b32 {sWOF}, 0, 1")
    if not noB and not early and not (latewo & 2):
        A(f"s_cmp_lg_u32 {sWAVE}, 0"); A("s_cbranch_scc1 L_s_nowo")
        wo_issue(50)
        A.label("L_s_nowo")
    A("s_waitcnt lgkmcnt(0)")
    stamp(1)
    NW = 8 * D - 4
    def step(s, nwk, nwv, refill=True, check=True):
        if check: A(f"s_cmp_eq_u32 s{sVAL+s}, 0"); A("s_cbranch_scc1 L_sdone")
        A(f"s_waitcnt vmcnt({nwk})")
        for i in range(4): mfma(vS, kreg(s, i), vQ + 4 * i, None if i == 0 else vS)
        if not refill:
            A("s_nop 7")
            softmax_update(vS, vP, vm, vl, vO, vt0, vt1, vt2)
            A(f"s_waitcnt vmcnt({nwv})")
            pv(vO, vP, lambda t: vreg(s, t))
            return
        A("s_waitcnt lgkmcnt(0)")
        A(f"v_readfirstlane_b32 {sT1}, v{vNEXT}")
        grab()
        ldyn = A.newlabel("L_dyn"); ldec = A.newlabel("L_dec"); lhave = A.newlabel("L_have"); lsp = A.newlabel("L_sp")
        if ts:
            lab = A.newlabel("L_nots")
            A(f"s_and_b32 s92, {sT1}, 15"); A("s_cmp_lg_u32 s92, 0"); A(f"s_cbranch_scc1 {lab}")
            A("s_memrealtime s[90:91]")
            A(f"s_lshl_b32 s92, s2, 7"); A(f"s_lshr_b32 s94, {sT1}, 2"); A("s_add_u32 s92, s92, s94"); A(f"s_add_u32 s92, s92, {WS_TS + 0x100000}")
            A("s_waitcnt lgkmcnt(0)")
            A(f"v_mov_b32 v{vt3}, s90")
            A(f"buffer_store_dword v{vt3}, v{vCA}, {SWS}, s92 offen")
            A.label(lab)
        if ilv:
            A(f"s_lshr_b32 {sT2}, {sT1}, 2"); A(f"s_lshl_b32 {sT2}, {sT2}, 5"); A(f"s_and_b32 {sT3}, {sT1}, 3"); A(f"s_add_u32 {sT2}, {sT2}, {sT3}"); A(f"s_add_u32 {sT2}, {sT2}, {sSB}")
        else:
            A(f"s_add_u32 {sT2}, {sT1}, {sSB}")
        A(f"s_cmp_lt_u32 {sT1}, {sSTC}"); A(f"s_cbranch_scc1 {ldec}")
        A(f"s_cmp_lg_u32 {sDB}, -1"); A(f"s_cbranch_scc1 {lhave}")
        A(f"s_mov_b32 {sTO}, {TMO*16}")
        A.label(lsp)
        A(f"ds_read_b64 {vr(vt2,2)}, v{vCA} offset:{L_DYN}")
        A("s_waitcnt lgkmcnt(0)")
        A(f"v_readfirstlane_b32 {sDB}, v{vt2}"); A(f"v_readfirstlane_b32 {sDN}, v{vt3}")
        A("s_nop 3")
        A(f"s_cmp_lg_u32 {sDB}, -1"); A(f"s_cbranch_scc1 {lhave}")
        A("s_sleep 2")
        A(f"s_sub_u32 {sTO}, {sTO}, 1"); A(f"s_cmp_lg_u32 {sTO}, 0"); A(f"s_cbranch_scc1 {lsp}")
        A(f"s_mov_b32 {sDB}, 0"); A(f"s_mov_b32 {sDN}, 0")
        A.label(lhave)
        A(f"s_sub_u32 {sT0}, {sT1}, {sSTC}")
        A(f"s_add_u32 {sT2}, {sT0}, {sDB}"); A(f"s_and_b32 {sT2}, {sT2}, 2047")
        A(f"s_cmp_lt_u32 {sT0}, {sDN}")
        A(f"s_cselect_b32 {sSTOP}, {sSTOP}, 1")
        A.label(ldec)
        A(f"s_cselect_b32 s{sVAL+s}, 1, 0"); A(f"s_cselect_b32 s6, {sNREC}, 0"); A(f"s_cselect_b32 s10, {sNREC}, 0")
        A(f"s_lshl_b32 {sKOFF}, {sT2}, 12"); A(f"s_add_u32 {sKOFF}, {sKOFF}, {sBASE}")
        issue_k(s, sKOFF)
        softmax_update(vS, vP, vm, vl, vO, vt0, vt1, vt2)
        A(f"s_waitcnt vmcnt({nwv})")
        pv(vO, vP, lambda t: vreg(s, t))
        issue_v(s, sKOFF)
    if XS:
        NX = 8 * (D + XS) - 4
        for s in range(D): step(s, NX, NX, True, False)
        out = 8 * (D + XS)
        for s in range(D, D + XS):
            step(s, out - 4, out - 8, False, False); out -= 8
    A.label("L_loop")
    if latewo & 2:
        A(f"s_and_b32 {sT0}, {sWOF}, {sSTOP}"); A("s_cbranch_scc0 L_s_nowo2")
        wo_issue(50)
        A(f"s_mov_b32 {sWOF}, 0")
        A.label("L_s_nowo2")
    for s in range(D): step(s, NW, NW)
    A("s_branch L_loop")
    A.label("L_sdone")
    xgroup_reduce("v_add_f32", vl, vt0)
    A(f"v_and_b32 v{vt1}, 7, v{vN}"); A(f"v_lshl_add_u32 v{vt1}, v{vG}, 5, v{vt1}"); A(f"v_lshlrev_b32 v{vt1}, 2, v{vt1}")
    A(f"s_lshl_b32 {sT0}, {sWAVE}, 9"); A(f"v_add_u32 v{vt1}, {sT0}, v{vt1}")
    A(f"s_lshl_b32 {sT0}, {sWAVE}, 3"); A(f"v_mov_b32 v{vt2}, {sT0}")
    for r in range(4): A(f"ds_write_b32 v{vt1}, v{vO+r} offset:{L_OPART + r*32}")
    A(f"ds_write_b64 v{vt2}, {vr(vm,2)} offset:{L_ML}")
    A("s_waitcnt lgkmcnt(0)")
    stamp(2)
    A("s_barrier")
    if noB:
        A("s_endpgm")
    else:
        A(f"s_cmp_eq_u32 {sWAVE}, 0"); A("s_cbranch_scc1 L_btail")
        A("s_endpgm")
        A.label("L_btail")
        sreg[0], sreg[1] = 90, 91
        A("s_setprio 3")
        if latewo & 2:
            A(f"s_cmp_eq_u32 {sWOF}, 0"); A("s_cbranch_scc1 L_s_nowo3")
            wo_issue(50)
            A.label("L_s_nowo3")
        A(f"v_mov_b32 v{vt1}, 0")
        A(f"ds_read_b32 v{vt0}, v{vt1} offset:{L_EP}")
        A(f"s_add_u32 {sHD}, {sH}, 32")
        tail_prep()
        A("s_waitcnt lgkmcnt(0)")
        A(f"v_readfirstlane_b32 {sE}, v{vt0}")
        A("s_branch L_tail2" if early else "s_branch L_tail")
    sreg[0], sreg[1] = 54, 55
    A.label("L_s_prod")
    A("s_setprio 2")
    qprod_issue()
    masks()
    A("s_waitcnt vmcnt(0)")
    stamp(12)
    qprod_compute()
    A("s_setprio 0")
    for s in range(D + XS): issue_tile(s)
    A("s_branch L_s_join")

    A.label("L_service")
    sreg[0], sreg[1] = 254, 255
    A("s_setprio 3")
    srd(SDBG, 54, 256)
    A(f"v_mov_b32 v{vt1}, 0")
    A(f"s_cmp_lg_u32 {sWG}, 0"); A("s_cbranch_scc1 L_v_noep0")
    A("s_memrealtime s[90:91]")
    A("s_waitcnt lgkmcnt(0)")
    A(f"s_max_u32 {sE}, s90, 1")
    A(f"v_mov_b32 v{vt0}, {sE}")
    A("s_mov_b64 exec, 1")
    A(f"buffer_store_dword v{vt0}, v{vt1}, {SDBG}, 0 offen sc1")
    A("s_mov_b64 exec, -1")
    A.label("L_v_noep0")
    masks()
    A(f"v_mov_b32 v{vt0}, {(D+XS)*NSW}"); A(f"v_mov_b32 v{vt1}, 0"); A(f"v_mov_b32 v{vt2}, -1")
    A(f"ds_write_b32 v{vt1}, v{vt0} offset:{L_CNT}")
    A(f"ds_write_b32 v{vt1}, v{vt2} offset:{L_DYN}")
    A(f"s_mov_b32 {sTO}, {TMO}")
    A.label("L_ep_loop")
    A(f"buffer_load_dword v{vt0}, v{vt1}, {SDBG}, 0 offen sc1")
    A("s_waitcnt vmcnt(0)")
    A(f"v_readfirstlane_b32 {sE}, v{vt0}")
    A("s_nop 3")
    A(f"s_cmp_lg_u32 {sE}, 0"); A("s_cbranch_scc1 L_ep_done")
    A(f"s_sleep {sleep}")
    A(f"s_sub_u32 {sTO}, {sTO}, 1"); A(f"s_cmp_lg_u32 {sTO}, 0"); A("s_cbranch_scc1 L_ep_loop")
    A.label("L_ep_done")
    stamp(11)
    vLO8 = vt5
    A(f"v_lshlrev_b32 v{vLO8}, 3, v{vLANE}")
    A(f"s_cmp_ge_u32 {sS}, 4"); A("s_cbranch_scc1 L_v_noprod3")
    A(f"v_and_b32 v{vt1}, 31, v{vLANE}"); A(f"v_lshlrev_b32 v{vt1}, 3, v{vt1}")
    A(f"s_lshr_b32 {sT0}, {sS}, 1"); A(f"s_lshl_b32 {sT0}, {sT0}, 5"); A(f"s_add_u32 {sT0}, {sT0}, {sH}"); A(f"s_lshl_b32 {sT0}, {sT0}, 9")
    A(f"s_and_b32 {sT1}, {sS}, 1"); A(f"s_lshl_b32 {sT1}, {sT1}, 8"); A(f"s_add_u32 {sT0}, {sT0}, {sT1}"); A(f"s_add_u32 {sT0}, {sT0}, {WS_QF}")
    A("s_barrier")
    for k in range(2*NSW): A(f"ds_read_b64 {vr(WQ+2*k,2)}, v{vt1} offset:{L_QPART + k*256}")
    A("s_waitcnt lgkmcnt(0)")
    for k in range(1, 2*NSW):
        A(f"v_add_f32 v{WQ}, v{WQ}, v{WQ+2*k}"); A(f"v_add_f32 v{WQ+1}, v{WQ+1}, v{WQ+2*k+1}")
    A(f"v_cvt_pk_bf16_f32 v{vB0}, v{WQ}, v{WQ+1}"); A(f"v_mov_b32 v{vB0+1}, {sE}")
    A("s_mov_b32 exec_hi, 0")
    A(f"buffer_store_dwordx2 {vr(vB0,2)}, v{vt1}, {SWS}, {sT0} offen sc1")
    A("s_mov_b64 exec, -1")
    stamp(3)
    A.label("L_v_noprod3")
    A(f"s_lshl_b32 {sT0}, {sH}, 9"); A(f"s_add_u32 {sT0}, {sT0}, {WS_QF}")
    lab = poll_begin()
    A(f"buffer_load_dwordx2 {vr(vQ,2)}, v{vLO8}, {SWS}, {sT0} offen sc1")
    poll_end(lab, [vQ + 1], sleep)
    A(f"v_lshlrev_b32 v{vt2}, 2, v{vLANE}")
    A(f"ds_write_b32 v{vt2}, v{vQ} offset:{L_QA}")
    A(f"v_mov_b32 v{vt0}, {sE}"); A(f"v_mov_b32 v{vt1}, 0")
    A(f"ds_write_b32 v{vt1}, v{vt0} offset:{L_EP}")
    A("s_waitcnt lgkmcnt(0)")
    A("s_barrier")
    if noB:
        A("s_barrier"); A("s_endpgm")
    PBR = 64
    A(f"s_cmp_lt_u32 {sS}, 6"); A("s_cbranch_scc1 L_v_noB")
    srd(SK, 44, 0x4000000); srd(SV, 46, 0x4000000)
    A(f"s_lshl_b32 {sT0}, {sH}, 1"); A(f"s_add_u32 {sT0}, {sT0}, {sS}"); A(f"s_sub_u32 {sT0}, {sT0}, 6")
    A(f"s_lshr_b32 {sT1}, {sT0}, 3"); A(f"s_and_b32 {sBU}, {sT0}, 7")
    A(f"s_lshl_b32 {sBB}, {sT1}, 23"); A(f"s_add_u32 {sBB}, {sBB}, {28672*256}"); A(f"s_lshl_b32 {sT2}, {sBU}, 12"); A(f"s_add_u32 {sBB}, {sBB}, {sT2}")
    A(f"s_mul_i32 {sBJ}, {sT0}, {brot}")
    A(f"s_mov_b32 {sBN}, 28")
    A(f"s_mov_b32 {sNREC}, 0x4000000")
    def boff():
        A(f"s_and_b32 {sKOFF}, {sBJ}, 31"); A(f"s_lshl_b32 {sKOFF}, {sKOFF}, 15"); A(f"s_add_u32 {sKOFF}, {sKOFF}, {sBB}"); A(f"s_add_u32 {sBJ}, {sBJ}, 1")
    for s in range(4):
        boff(); issue_k(s, sKOFF); issue_v(s, sKOFF)
    A(f"s_lshl_b32 {sT0}, {sT1}, 11"); A(f"s_add_u32 {sT0}, {sT0}, {WS_QF + 32*512}")
    lab = poll_begin()
    for hh in range(4):
        A(f"buffer_load_dwordx2 {vr(vQ+2*hh,2)}, v{vLO8}, {SWS}, {sT0} offen offset:{hh*512} sc1")
    poll_end(lab, [vQ + 2 * hh + 1 for hh in range(4)], 16)
    for hh in range(4): A(f"ds_write_b32 v{vt2}, v{vQ+2*hh} offset:{L_QB + hh*256}")
    A("s_waitcnt lgkmcnt(0)")
    QBp = [vQ, WQ]
    stO = [vO, 232]; stS = [vS, 236]; stP = [vP, 240]; stm = [vm, 244]; stl = [vl, 245]
    A(f"v_lshrrev_b32 v{vt3}, 3, v{vN}"); A(f"v_lshlrev_b32 v{vt3}, 8, v{vt3}"); A(f"v_lshl_add_u32 v{vt3}, v{vG}, 4, v{vt3}")
    for pp in range(2):
        for i in range(4): A(f"ds_read_b128 {vr(QBp[pp]+4*i,4)}, v{vt3} offset:{L_QB + pp*512 + i*64}")
        A(f"v_mov_b32 v{stm[pp]}, 0xff800000"); A(f"v_mov_b32 v{stl[pp]}, 0")
        for r in range(4): A(f"v_mov_b32 v{stO[pp]+r}, 0")
    A("s_waitcnt lgkmcnt(0)")
    stamp(4)
    A.label("L_bloop")
    for s in range(4):
        A("s_waitcnt vmcnt(28)")
        for pp in range(2):
            for i in range(4): mfma(stS[pp], kreg(s, i), QBp[pp] + 4 * i, None if i == 0 else stS[pp])
        A(f"s_cmp_gt_i32 {sBN}, 0"); A(f"s_cselect_b32 s6, {sNREC}, 0"); A(f"s_cselect_b32 s10, {sNREC}, 0")
        boff(); issue_k(s, sKOFF)
        for pp in range(2): softmax_update(stS[pp], stP[pp], stm[pp], stl[pp], stO[pp], vt0, vt1, vt2)
        A("s_waitcnt vmcnt(28)")
        for pp in range(2): pv(stO[pp], stP[pp], lambda t: vreg(s, t))
        issue_v(s, sKOFF)
        A(f"s_sub_u32 {sBN}, {sBN}, 1")
    A(f"s_cmp_gt_i32 {sBN}, -4"); A("s_cbranch_scc1 L_bloop")
    stamp(10)
    A("s_waitcnt vmcnt(0)")
    A(f"v_and_b32 v{vt1}, 7, v{vN}"); A(f"v_lshl_add_u32 v{vt1}, v{vG}, 5, v{vt1}"); A(f"v_lshrrev_b32 v{vt2}, 3, v{vN}"); A(f"v_lshl_add_u32 v{vt1}, v{vt2}, 7, v{vt1}")
    A(f"v_lshlrev_b32 v{vt1}, 2, v{vt1}")
    A("s_nop 3")
    for pp in range(2):
        for r in range(4): A(f"ds_write_b32 v{vt1}, v{stO[pp]+r} offset:{L_OB + pp*1024 + r*32}")
        xgroup_reduce("v_add_f32", stl[pp], vt0)
        R = PBR + 16 + pp * 4
        A(f"v_mov_b32 v{R}, v{stm[pp]}"); A(f"v_mov_b32 v{R+1}, {sE}"); A(f"v_mov_b32 v{R+2}, v{stl[pp]}"); A(f"v_mov_b32 v{R+3}, {sE}")
    A("s_waitcnt lgkmcnt(0)")
    for hh in range(4): A(f"ds_read_b64 {vr(vQ+2*hh,2)}, v{vLO8} offset:{L_OB + hh*512}")
    A("s_waitcnt lgkmcnt(0)")
    for hh in range(4):
        R = PBR + hh * 4
        A(f"v_mov_b32 v{R}, v{vQ+2*hh}"); A(f"v_mov_b32 v{R+1}, {sE}"); A(f"v_mov_b32 v{R+2}, v{vQ+2*hh+1}"); A(f"v_mov_b32 v{R+3}, {sE}")
    sPB0, sPB1, sML0 = "s76", "s77", "s78"
    vBML = 88
    A(f"s_lshr_b32 {sT0}, {sH}, 2"); A(f"s_lshl_b32 {sT0}, {sT0}, 5"); A(f"s_add_u32 {sT0}, {sT0}, {sBU}"); A(f"s_add_u32 {sT0}, {sT0}, 256")
    A(f"s_lshl_b32 {sPB0}, {sT0}, 10"); A(f"s_add_u32 {sPB0}, {sPB0}, {WS_P}")
    A(f"s_lshl_b32 {sML0}, {sT0}, 4"); A(f"s_add_u32 {sML0}, {sML0}, {WS_ML}")
    A.label("L_v_noB")
    sreg[0], sreg[1] = 90, 91
    A(f"v_lshrrev_b32 v{vBML}, 3, v{vN}"); A(f"v_lshlrev_b32 v{vBML}, 7, v{vBML}")
    def pb_publish(lab):
        A(f"s_cmp_lt_u32 {sS}, 6"); A(f"s_cbranch_scc1 {lab}")
        for hh in range(4):
            A(f"buffer_store_dwordx4 {vr(PBR+hh*4,4)}, v{vA16}, {SWS}, {sPB0} offen sc1")
            if hh < 3: A(f"s_add_u32 {sPB0}, {sPB0}, 8192")
        A("s_mov_b64 exec, 0x101")
        for pp in range(2):
            A(f"buffer_store_dwordx4 {vr(PBR+16+pp*4,4)}, v{vBML}, {SWS}, {sML0} offen offset:{pp*256} sc1")
        A("s_mov_b64 exec, -1")
        A.label(lab)
    def cntwait(thr_s):
        l1 = A.newlabel("L_cw"); l2 = A.newlabel("L_cwok")
        A(f"v_mov_b32 v{vt1}, 0"); A(f"s_mov_b32 {sTO}, {TMO}")
        A.label(l1)
        A(f"ds_read_b32 v{vt0}, v{vt1} offset:{L_CNT}")
        A("s_waitcnt lgkmcnt(0)")
        A(f"v_readfirstlane_b32 {sT0}, v{vt0}")
        A("s_nop 3")
        A(f"s_cmp_ge_u32 {sT0}, {thr_s}"); A(f"s_cbranch_scc1 {l2}")
        A(f"s_sleep {bsl}")
        A(f"s_sub_u32 {sTO}, {sTO}, 1"); A(f"s_cmp_lg_u32 {sTO}, 0"); A(f"s_cbranch_scc1 {l1}")
        A.label(l2)
    sK1, sTT1 = "s80", "s81"
    A(f"s_mov_b32 {sHD}, {sH}")
    tail_prep()
    sSMP = "s79"
    A(f"s_mov_b32 {sSMP}, {sSTC}")
    if ilv:
        A(f"s_cmp_lt_u32 {sS}, 4"); A(f"s_cselect_b32 {sT0}, {KP}, 0"); A(f"s_cmp_ge_u32 {sS}, 6"); A(f"s_cselect_b32 {sT0}, {KB}, {sT0}"); A(f"s_sub_u32 {sSMP}, {sSTC}, {sT0}")
    A(f"s_sub_u32 {sT3}, {sSMP}, {K1}")
    cntwait(sT3)
    A("s_memrealtime s[90:91]"); A(f"s_mov_b32 {sK1}, {sT0}"); A("s_waitcnt lgkmcnt(0)"); A(f"s_mov_b32 {sTT1}, s90")
    A(f"s_sub_u32 {sT3}, {sSMP}, {K2}"); A(f"s_add_u32 {sT1}, {sK1}, 16"); A(f"s_max_u32 {sT3}, {sT3}, {sT1}"); A(f"s_min_u32 {sT3}, {sT3}, {sSTC}")
    cntwait(sT3)
    A("s_memrealtime s[90:91]"); A("s_waitcnt lgkmcnt(0)")
    A(f"s_sub_u32 {sT1}, {sT0}, {sK1}"); A(f"s_max_u32 {sT1}, {sT1}, 1")
    A(f"s_sub_u32 {sT2}, s90, {sTT1}")
    A(f"s_max_u32 {sT2}, {sT2}, 1")
    A(f"s_sub_u32 {sT3}, s90, {sE}")
    A(f"s_sub_i32 {sT0}, {sSTC}, {sT0}")
    A(f"v_cvt_f32_u32 v{vt0}, {sT1}"); A(f"v_cvt_f32_u32 v{vt1}, {sT2}"); A(f"v_cvt_f32_u32 v{vt2}, {sT3}"); A(f"v_cvt_f32_i32 v{vt3}, {sT0}")
    A(f"v_rcp_f32 v{vt4}, v{vt1}"); A(f"v_rcp_f32 v{vT}, v{vt0}"); A("s_nop 0")
    A(f"v_mul_f32 v{vB0}, v{vt0}, v{vt4}")
    A(f"v_mul_f32 v{vT}, v{vT}, v{vt1}")
    A(f"v_fma_f32 v{vB0+2}, v{vt3}, v{vT}, v{vt2}")
    A(f"v_mov_b32 v{vB0+1}, {sE}"); A(f"v_mov_b32 v{vB0+3}, {sE}")
    A(f"s_lshl_b32 {sT2}, {sH}, 7"); A(f"s_add_u32 {sT2}, {sT2}, {WS_BAL}"); A(f"s_lshl_b32 {sT1}, {sS}, 4"); A(f"s_add_u32 {sT1}, {sT1}, {sT2}")
    A(f"v_mov_b32 v{vt1}, 0")
    A("s_mov_b64 exec, 1")
    A(f"buffer_store_dwordx4 {vr(vB0,4)}, v{vt1}, {SWS}, {sT1} offen sc1")
    A("s_mov_b64 exec, -1")
    pb_publish("L_v_pbdone")
    lab = poll_begin()
    A(f"buffer_load_dwordx4 {vr(vML,4)}, v{vAML}, {SWS}, {sT2} offen sc1")
    poll_end(lab, [vML + 1, vML + 3], 4)
    def bsum8(v):
        A("s_nop 1"); A(f"v_add_f32_dpp v{v}, v{v}, v{v} quad_perm:[1,0,3,2] {DPP}")
        A("s_nop 1"); A(f"v_add_f32_dpp v{v}, v{v}, v{v} quad_perm:[2,3,0,1] {DPP}")
        A("s_nop 1"); A(f"v_add_f32_dpp v{v}, v{v}, v{v} row_half_mirror {DPP}")
    A(f"v_mov_b32 v{vt0}, v{vML}"); A(f"v_mul_f32 v{vt1}, v{vML}, v{vML+2}")
    bsum8(vt0); bsum8(vt1)
    A(f"v_add_f32 v{vt1}, {hex(f2u(float(RT)))}, v{vt1}")
    A(f"v_rcp_f32 v{vt0}, v{vt0}"); A("s_nop 0")
    A(f"v_mul_f32 v{vt1}, v{vt1}, v{vt0}")
    A(f"v_sub_f32 v{vt1}, v{vt1}, v{vML+2}"); A(f"v_mul_f32 v{vt1}, v{vt1}, v{vML}")
    A(f"v_max_f32 v{vt1}, 0, v{vt1}")
    A(f"v_min_f32 v{vt1}, {hex(f2u(4096.0))}, v{vt1}")
    A(f"v_add_f32 v{vt1}, {hex(f2u(1e-3))}, v{vt1}")
    for sh in (1, 2, 4):
        A("s_nop 1"); A(f"v_add_f32_dpp v{vt1}, v{vt1}, v{vt1} row_shr:{sh} row_mask:0xf bank_mask:0xf bound_ctrl:0")
    A("s_nop 1")
    A(f"v_readlane_b32 {sT0}, v{vt1}, 7"); A("s_nop 1")
    A(f"v_rcp_f32 v{vt0}, {sT0}"); A("s_nop 0")
    A(f"v_mul_f32 v{vt0}, {hex(f2u(float(RT)))}, v{vt0}")
    A(f"v_mul_f32 v{vt1}, v{vt1}, v{vt0}"); A(f"v_rndne_f32 v{vt1}, v{vt1}"); A(f"v_cvt_u32_f32 v{vt1}, v{vt1}")
    A(f"v_min_u32 v{vt1}, {RT}, v{vt1}")
    A(f"s_sub_u32 {sT1}, {sS}, 1"); A(f"s_and_b32 {sT1}, {sT1}, 7"); A("s_nop 1")
    A(f"v_readlane_b32 {sT2}, v{vt1}, {sS}"); A(f"v_readlane_b32 {sT3}, v{vt1}, {sT1}")
    A("s_nop 3")
    A(f"s_cmp_eq_u32 {sS}, 7"); A(f"s_cselect_b32 {sT2}, {RT}, {sT2}")
    A(f"s_cmp_eq_u32 {sS}, 0"); A(f"s_cselect_b32 {sT3}, 0, {sT3}")
    A(f"s_sub_u32 {sT2}, {sT2}, {sT3}")
    A(f"s_add_u32 {sT3}, {sT3}, {DYN0}")
    A(f"v_mov_b32 v{vt2}, {sT3}"); A(f"v_mov_b32 v{vt3}, {sT2}"); A(f"v_mov_b32 v{vt1}, 0")
    A(f"ds_write_b64 v{vt1}, {vr(vt2,2)} offset:{L_DYN}")
    if ts:
        A(f"s_lshl_b32 s92, s2, 6"); A(f"s_add_u32 s92, s92, {WS_TS + 0x200000}")
        A(f"buffer_store_dword v{vt3}, v{vt1}, {SWS}, s92 offen")
    stamp(9)
    A(f"s_add_u32 {sT3}, {sT2}, {sSTC}"); A(f"s_add_u32 {sT3}, {sT3}, {X2}")
    cntwait(sT3)
    wo_issue(40)
    A(f"v_mov_b32 v{vt2}, 0")
    A(f"s_lshl_b32 {sT0}, {sH}, 3"); A(f"s_add_u32 {sT0}, {sT0}, {sS}"); A(f"s_lshl_b32 {sT1}, {sT0}, 4"); A(f"s_lshl_b32 {sT0}, {sT0}, 10")
    A(f"s_add_u32 {sT0}, {sT0}, {WS_P}"); A(f"s_add_u32 {sT1}, {sT1}, {WS_ML}")
    A(f"v_mov_b32 v{vB0+1}, {sE}"); A(f"v_mov_b32 v{vB0+3}, {sE}"); A(f"v_mov_b32 v{vB1+1}, {sE}"); A(f"v_mov_b32 v{vB1+3}, {sE}")
    A("s_barrier")
    stamp(8)
    MLW = PO + 16
    for w in range(NSW):
        A(f"ds_read_b64 {vr(MLW+2*w,2)}, v{vt2} offset:{L_ML + w*8}")
    for w in range(NSW):
        A(f"ds_read_b64 {vr(PO+2*w,2)}, v{vA8} offset:{L_OPART + w*512}")
    A(f"s_waitcnt lgkmcnt({NSW})")
    A(f"v_max_f32 v{vB1}, v{MLW}, v{MLW+2}")
    A(f"v_max3_f32 v{vB1}, v{MLW+4}, v{MLW+6}, v{vB1}")
    for w in range(NSW): A(f"v_sub_f32 v{MLW+2*w}, v{MLW+2*w}, v{vB1}")
    for w in range(NSW): A(f"v_mul_f32 v{MLW+2*w}, {sC}, v{MLW+2*w}")
    for w in range(NSW): A(f"v_exp_f32 v{MLW+2*w}, v{MLW+2*w}")
    A("s_waitcnt lgkmcnt(0)")
    A(f"v_mul_f32 v{vB0}, v{PO}, v{MLW}"); A(f"v_mul_f32 v{vB0+2}, v{PO+1}, v{MLW}"); A(f"v_mul_f32 v{vB1+2}, v{MLW+1}, v{MLW}")
    for w in range(1, NSW):
        A(f"v_fma_f32 v{vB0}, v{PO+2*w}, v{MLW+2*w}, v{vB0}"); A(f"v_fma_f32 v{vB0+2}, v{PO+2*w+1}, v{MLW+2*w}, v{vB0+2}")
        A(f"v_fma_f32 v{vB1+2}, v{MLW+2*w+1}, v{MLW+2*w}, v{vB1+2}")
    A(f"buffer_store_dwordx4 {vr(vB0,4)}, v{vA16}, {SWS}, {sT0} offen sc1")
    A("s_mov_b64 exec, 1")
    A(f"buffer_store_dwordx4 {vr(vB1,4)}, v{vt2}, {SWS}, {sT1} offen sc1")
    A("s_mov_b64 exec, -1")
    A.label("L_tail")
    tail()
    A.label("L_end")
    A("s_endpgm")

    out = HEADER + f"; @launch grid=(256,1,1) block=({(NSW+1)*64},1,1) lds={LDS_SIZE}\n"
    out += '.amdgcn_target "amdgcn-amd-amdhsa--gfx950"\n.text\n' + f".globl {KNAME}\n.p2align 8\n.type {KNAME},@function\n{KNAME}:\n"
    out += "\n".join(A.L) + "\n"
    out += f""".section .rodata,"a"
.p2align 6
.amdhsa_kernel {KNAME}
  .amdhsa_next_free_vgpr 256
  .amdhsa_next_free_sgpr 102
  .amdhsa_accum_offset 256
  .amdhsa_group_segment_fixed_size 0
  .amdhsa_kernarg_size 104
  .amdhsa_user_sgpr_count 2
  .amdhsa_user_sgpr_kernarg_segment_ptr 1
  .amdhsa_system_sgpr_workgroup_id_x 1
.end_amdhsa_kernel
"""
    return out

if __name__ == "__main__":
    cfg = json.loads(sys.argv[2]) if len(sys.argv) > 2 else {}
    open(sys.argv[1], "w").write(gen(**cfg))
```

```python
import sys, json, math, struct
from gen import HEADER, KNAME, G, vr, f2u, CSCALE

WS_CNT  = 0x1000
WS_QF   = 0x10000
WS_BAL  = 0x18000
WS_ML   = 0x20000
WS_P    = 0x100000
WS_Y    = 0x200000
WS_TS   = 0x800000
WS_SIZE = 0x1000000

L_QPART = 0
L_QA    = 4096
L_QB    = 4352
L_OPART = 6144
L_OB    = 8192
L_ML    = 10240
L_CNT   = 10304
L_EP    = 10312
L_DYN   = 10320
LDS_SIZE = 12288

def gen(ts=False, kflags="nt", sleep=2, tsleep=1, hmap=1, ST=224, noB=False, D=4, pbthr=0, TMO=0x8000, NSW=4, brot=5, STR=None, xflag=True, early=False, X1=16, X2=0, bsl=4, latewo=3, K1=64, K2=24, XS=0, ilv=False, KB=32, KP=8, fixed=0, drain=True, WOK=0, pp2=False, stag=4, diag=0):
    A = G()
    if STR is None: STR = [ST] * 3
    roles = True
    RT = 2048 - (4 * STR[0] + 2 * STR[1] + 2 * STR[2])
    DYN0 = 2048 - RT
    sreg = [54, 55]
    sWG, sWAVE = "s2", "s3"
    SK, SV, SW, SWS, SX, SDBG, SOUT = "s[4:7]", "s[8:11]", "s[12:15]", "s[16:19]", "s[20:23]", "s[24:27]", "s[28:31]"
    sC = "s58"; sHD = "s59"; sH, sS = "s60", "s61"; sKOFF = "s62"; sSTOP = "s63"; sCOFF = "s64"
    sT0, sT1, sT2, sT3 = "s65", "s66", "s67", "s68"
    sE = "s69"; sSELLO, sSELHI = "s70", "s71"; sHALF = "s[72:73]"; sTO = "s74"; sNREC = "s75"
    sVAL = 76
    sBASE, sSB, sBB, sBU, sBJ, sBN = "s95", "s96", "s97", "s98", "s99", "s100"
    sSTC = "s93"
    vLANE, vN, vG, vKO, vVO = 0, 1, 2, 3, 4
    vM = 5; vT = 9
    vQ = 12; vO = 28; vS = 32; vP = 36; vB0 = 40; vB1 = 44; vm = 48; vl = 49
    vt0, vt1, vt2, vt3, vt4, vt5 = 50, 51, 52, 53, 54, 55
    vX = 56; vML = 60
    RING = 64
    def kreg(slot, i): return RING + slot * 32 + i * 4
    def vreg(slot, i): return RING + slot * 32 + 16 + i * 4
    WQ = 192
    WO = 192; PO = RING + 64
    assert D <= 4
    DPP = "row_mask:0xf bank_mask:0xf"

    def srd(dst, ptr_lo, nbytes):
        b = int(dst[2:].split(":")[0])
        A(f"s_mov_b32 s{b}, s{ptr_lo}"); A(f"s_mov_b32 s{b+1}, s{ptr_lo+1}")
        A(f"s_mov_b32 s{b+2}, {hex(nbytes)}"); A(f"s_mov_b32 s{b+3}, 0x00020000")
    def stamp(idx):
        if not ts: return
        A("s_memrealtime s[90:91]")
        A("s_lshl_b32 s92, s2, 3"); A("s_add_u32 s92, s92, s3"); A("s_lshl_b32 s92, s92, 6")
        A(f"s_add_u32 s92, s92, {WS_TS + idx*4}")
        A("s_waitcnt lgkmcnt(0)")
        A(f"v_mov_b32 v{sreg[0]}, s90"); A(f"v_mov_b32 v{sreg[1]}, 0")
        A(f"buffer_store_dword v{sreg[0]}, v{sreg[1]}, {SWS}, s92 offen")
    def xgroup_reduce(op, v, tmp):
        A(f"v_mov_b32 v{tmp}, v{v}"); A("s_nop 1")
        A(f"v_permlane16_swap_b32 v{v}, v{tmp}")
        A(f"{op} v{v}, v{v}, v{tmp}")
        A(f"v_mov_b32 v{tmp}, v{v}"); A("s_nop 1")
        A(f"v_permlane32_swap_b32 v{v}, v{tmp}")
        A(f"{op} v{v}, v{v}, v{tmp}")
    def mfma(d, a, b, c):
        cs = "0" if c is None else vr(c, 4)
        A(f"v_mfma_f32_16x16x32_bf16 {vr(d,4)}, {vr(a,4)}, {vr(b,4)}, {cs}")
    def softmax_update(S, P, m, l, O, t0, t1, t2):
        A(f"v_max_f32 v{t0}, v{S}, v{S+1}")
        A(f"v_max3_f32 v{t0}, v{S+2}, v{S+3}, v{t0}")
        A(f"v_mov_b32 v{t1}, v{t0}"); A("s_nop 1")
        A(f"v_permlane16_swap_b32 v{t0}, v{t1}")
        A(f"v_max_f32 v{t0}, v{t0}, v{t1}")
        A(f"v_mov_b32 v{t1}, v{t0}"); A("s_nop 1")
        A(f"v_permlane32_swap_b32 v{t0}, v{t1}")
        A(f"v_max3_f32 v{t0}, v{t0}, v{t1}, v{m}")
        A(f"v_mul_f32 v{t1}, {sC}, v{t0}")
        A(f"v_fma_f32 v{t2}, v{m}, {sC}, -v{t1}")
        for r in range(4): A(f"v_fma_f32 v{P+r}, v{S+r}, {sC}, -v{t1}")
        A(f"v_exp_f32 v{t2}, v{t2}")
        for r in range(4): A(f"v_exp_f32 v{P+r}, v{P+r}")
        A(f"v_mov_b32 v{m}, v{t0}")
        A(f"v_fma_f32 v{l}, v{l}, v{t2}, v{P}")
        A(f"v_add_f32 v{t1}, v{P+1}, v{P+2}")
        for r in range(4): A(f"v_mul_f32 v{O+r}, v{O+r}, v{t2}")
        A(f"v_add_f32 v{l}, v{l}, v{P+3}")
        A(f"v_add_f32 v{l}, v{l}, v{t1}")
    def pv(O, P, vbase_fn):
        for t in range(4):
            B = vB0 if t % 2 == 0 else vB1
            A(f"v_cvt_pk_bf16_f32 v{vt0}, v{P+t}, v{P+t}")
            for r in range(4): A(f"v_and_b32 v{B+r}, v{vt0}, v{vM+r}")
            A("s_nop 1")
            mfma(O, vbase_fn(t), B, O)
    def issue_k(slot, soff):
        for i in range(4):
            A(f"buffer_load_dwordx4 {vr(kreg(slot,i),4)}, v{vKO}, {SK}, {soff} offen offset:{i*64} {kflags}")
    def issue_v(slot, soff):
        for i in range(4):
            A(f"buffer_load_dwordx4 {vr(vreg(slot,i),4)}, v{vVO}, {SV}, {soff} offen offset:{i*256} {kflags}")
    def poll_begin():
        lab = A.newlabel("L_poll")
        A(f"s_mov_b32 {sTO}, {TMO}")
        A.label(lab)
        return lab
    def poll_end(lab, tagregs, sl):
        done = A.newlabel("L_pdone")
        A("s_waitcnt vmcnt(0)")
        tr = list(tagregs)
        A(f"v_xor_b32 v{vt0}, {sE}, v{tr[0]}")
        k = 1
        while k < len(tr):
            if k + 1 < len(tr):
                A(f"v_xor_b32 v{vt1}, {sE}, v{tr[k]}"); A(f"v_xor_b32 v{vT}, {sE}, v{tr[k+1]}")
                A(f"v_or3_b32 v{vt0}, v{vt0}, v{vt1}, v{vT}"); k += 2
            else:
                A(f"v_xor_b32 v{vt1}, {sE}, v{tr[k]}"); A(f"v_or_b32 v{vt0}, v{vt0}, v{vt1}"); k += 1
        A(f"v_cmp_ne_u32 vcc, 0, v{vt0}")
        A("s_nop 4")
        A(f"s_cbranch_vccz {done}")
        while sl > 0:
            A(f"s_sleep {min(sl,127)}"); sl -= 127
        A(f"s_sub_u32 {sTO}, {sTO}, 1")
        A(f"s_cmp_lg_u32 {sTO}, 0")
        A(f"s_cbranch_scc1 {lab}")
        A.label(done)
    def tagcheck(tagregs):
        tr = list(tagregs)
        A(f"v_xor_b32 v{vt0}, {sE}, v{tr[0]}")
        k = 1
        while k < len(tr):
            if k + 1 < len(tr):
                A(f"v_xor_b32 v{vt1}, {sE}, v{tr[k]}"); A(f"v_xor_b32 v{vT}, {sE}, v{tr[k+1]}")
                A(f"v_or3_b32 v{vt0}, v{vt0}, v{vt1}, v{vT}"); k += 2
            else:
                A(f"v_xor_b32 v{vt1}, {sE}, v{tr[k]}"); A(f"v_or_b32 v{vt0}, v{vt0}, v{vt1}"); k += 1
        A(f"v_cmp_ne_u32 vcc, 0, v{vt0}")
        A("s_nop 4")
    def poll2(issue, tags, n, finish):
        lab = A.newlabel("L_pp"); d0 = A.newlabel("L_pp0"); d1 = A.newlabel("L_pp1"); dn = A.newlabel("L_ppd")
        A(f"s_mov_b32 {sTO}, {TMO}")
        issue(0)
        A(f"s_sleep {stag}")
        A.label(lab)
        issue(1)
        A(f"s_waitcnt vmcnt({n})")
        tagcheck(tags(0)); A(f"s_cbranch_vccz {d0}")
        issue(0)
        A(f"s_waitcnt vmcnt({n})")
        tagcheck(tags(1)); A(f"s_cbranch_vccz {d1}")
        A(f"s_sub_u32 {sTO}, {sTO}, 1"); A(f"s_cmp_lg_u32 {sTO}, 0"); A(f"s_cbranch_scc1 {lab}")
        A.label(d1)
        finish(1)
        A(f"s_branch {dn}")
        A.label(d0)
        finish(0)
        A.label(dn)
    def wo_issue(ptr_lo):
        srd(SW, ptr_lo, 0x400000)
        A(f"v_lshlrev_b32 v{vt1}, 14, v{vG}")
        A(f"v_lshl_add_u32 v{vt1}, v{vN}, 4, v{vt1}")
        A(f"s_lshl_b32 {sT0}, {sH}, 17")
        A(f"s_lshr_b32 {sT1}, {sS}, 2"); A(f"s_lshl_b32 {sT1}, {sT1}, 16"); A(f"s_add_u32 {sT0}, {sT0}, {sT1}")
        A(f"s_and_b32 {sT1}, {sS}, 3"); A(f"s_lshl_b32 {sT1}, {sT1}, 8"); A(f"s_add_u32 {sT0}, {sT0}, {sT1}")
        for a in range(4):
            if a: A(f"s_add_u32 {sT0}, {sT0}, 4096")
            for b in range(4):
                t = a * 4 + b
                A(f"buffer_load_dwordx4 {vr(WO+4*t,4)}, v{vt1}, {SW}, {sT0} offen offset:{b*1024} {kflags}")
    sPA0, sPA1, sMLA, sYP, sYG, sOUTO, sRED = "s84", "s85", "s86", "s87", "s88", "s89", "s94"
    vAML, vA8, vAY, vA16, vAO = 12, 13, 14, 15, 16
    def tail_prep():
        srd(SOUT, 52, 2048)
        A(f"v_and_b32 v{vAML}, 7, v{vLANE}"); A(f"v_lshlrev_b32 v{vAML}, 4, v{vAML}")
        A(f"v_lshlrev_b32 v{vA8}, 3, v{vLANE}")
        A(f"v_lshlrev_b32 v{vAY}, 4, v{vN}"); A(f"v_lshl_add_u32 v{vAY}, v{vG}, 14, v{vAY}")
        A(f"v_lshlrev_b32 v{vA16}, 4, v{vLANE}")
        A(f"v_and_b32 v{vAO}, 7, v{vN}"); A(f"v_lshrrev_b32 v{vt2}, 3, v{vN}"); A(f"v_lshl_add_u32 v{vAO}, v{vt2}, 4, v{vAO}"); A(f"v_lshlrev_b32 v{vAO}, 1, v{vAO}")
        A(f"s_lshl_b32 {sMLA}, {sHD}, 7"); A(f"s_add_u32 {sMLA}, {sMLA}, {WS_ML}")
        A(f"s_lshl_b32 {sPA0}, {sHD}, 13"); A(f"s_lshr_b32 {sT1}, {sS}, 2"); A(f"s_lshl_b32 {sT1}, {sT1}, 9")
        A(f"s_add_u32 {sPA0}, {sPA0}, {sT1}"); A(f"s_add_u32 {sPA0}, {sPA0}, {WS_P}"); A(f"s_add_u32 {sPA1}, {sPA0}, 4096")
        A(f"s_lshr_b32 {sT2}, {sHD}, 5")
        A(f"s_lshl_b32 {sYP}, {sT2}, 18"); A(f"s_add_u32 {sYP}, {sYP}, {WS_Y}"); A(f"s_mov_b32 {sYG}, {sYP}")
        A(f"s_and_b32 {sT0}, {sS}, 3"); A(f"s_lshl_b32 {sT0}, {sT0}, 16"); A(f"s_add_u32 {sYP}, {sYP}, {sT0}")
        A(f"s_lshl_b32 {sT0}, {sH}, 1"); A(f"s_lshr_b32 {sT1}, {sS}, 2"); A(f"s_add_u32 {sT0}, {sT0}, {sT1}"); A(f"s_lshl_b32 {sT0}, {sT0}, 8"); A(f"s_add_u32 {sYP}, {sYP}, {sT0}")
        A(f"s_lshr_b32 {sT3}, {sWG}, 4"); A(f"s_lshl_b32 {sT0}, {sT3}, 14"); A(f"s_add_u32 {sYG}, {sYG}, {sT0}")
        A(f"s_lshl_b32 {sOUTO}, {sT3}, 6"); A(f"s_lshl_b32 {sT0}, {sT2}, 10"); A(f"s_add_u32 {sOUTO}, {sOUTO}, {sT0}")
        A(f"s_and_b32 {sT0}, {sT3}, 7"); A(f"s_lshl_b32 {sT1}, {sT2}, 3"); A(f"s_add_u32 {sT0}, {sT0}, {sT1}")
        A(f"s_and_b32 {sT1}, {sWG}, 15"); A(f"s_cmp_eq_u32 {sT0}, {sT1}"); A(f"s_cselect_b32 {sRED}, 1, 0")
    def tail():
        NP = 8
        if pp2:
            ML2 = [100, 160]; PO2 = [104, 164]
            def iss(k):
                A(f"buffer_load_dwordx4 {vr(ML2[k],4)}, v{vAML}, {SWS}, {sMLA} offen sc1")
                for p in range(NP):
                    A(f"buffer_load_dwordx2 {vr(PO2[k]+2*p,2)}, v{vA8}, {SWS}, {sPA0 if p < 4 else sPA1} offen offset:{(p%4)*1024} sc1")
            def fin(k):
                A(f"v_mov_b32 v{vML}, v{ML2[k]}"); A(f"v_mov_b32 v{vML+2}, v{ML2[k]+2}")
                for p in range(NP): A(f"v_mov_b32 v{PO+2*p}, v{PO2[k]+2*p}")
            poll2(iss, lambda k: [ML2[k] + 1, ML2[k] + 3] + [PO2[k] + 2 * p + 1 for p in range(NP)], 9, fin)
            A("s_nop 1")
        else:
            lab = poll_begin()
            A(f"buffer_load_dwordx4 {vr(vML,4)}, v{vAML}, {SWS}, {sMLA} offen sc1")
            for p in range(NP):
                A(f"buffer_load_dwordx2 {vr(PO+2*p,2)}, v{vA8}, {SWS}, {sPA0 if p < 4 else sPA1} offen offset:{(p%4)*1024} sc1")
            poll_end(lab, [vML + 1, vML + 3] + [PO + 2 * p + 1 for p in range(NP)], tsleep)
        if not early: stamp(5)
        A(f"v_max_f32_dpp v{vt0}, v{vML}, v{vML} quad_perm:[1,0,3,2] {DPP}"); A("s_nop 1")
        A(f"v_max_f32_dpp v{vt0}, v{vt0}, v{vt0} quad_perm:[2,3,0,1] {DPP}"); A("s_nop 1")
        A(f"v_max_f32_dpp v{vt0}, v{vt0}, v{vt0} row_half_mirror {DPP}")
        A(f"v_sub_f32 v{vt1}, v{vML}, v{vt0}"); A(f"v_mul_f32 v{vt1}, {sC}, v{vt1}"); A(f"v_exp_f32 v{vt1}, v{vt1}")
        A("s_nop 0")
        A(f"v_mul_f32 v{vt2}, v{vt1}, v{vML+2}"); A("s_nop 0")
        A(f"v_mul_f32_dpp v{vt3}, v{vt1}, v{PO} row_newbcast:0 {DPP}")
        A(f"v_add_f32_dpp v{vt2}, v{vt2}, v{vt2} quad_perm:[1,0,3,2] {DPP}")
        A(f"v_fmac_f32_dpp v{vt3}, v{vt1}, v{PO+2} row_newbcast:1 {DPP}")
        A(f"v_fmac_f32_dpp v{vt3}, v{vt1}, v{PO+4} row_newbcast:2 {DPP}")
        A(f"v_add_f32_dpp v{vt2}, v{vt2}, v{vt2} quad_perm:[2,3,0,1] {DPP}")
        A(f"v_fmac_f32_dpp v{vt3}, v{vt1}, v{PO+6} row_newbcast:3 {DPP}")
        A(f"v_fmac_f32_dpp v{vt3}, v{vt1}, v{PO+8} row_newbcast:4 {DPP}")
        A(f"v_add_f32_dpp v{vt2}, v{vt2}, v{vt2} row_half_mirror {DPP}")
        A(f"v_fmac_f32_dpp v{vt3}, v{vt1}, v{PO+10} row_newbcast:5 {DPP}")
        A(f"v_rcp_f32 v{vt2}, v{vt2}")
        A(f"v_fmac_f32_dpp v{vt3}, v{vt1}, v{PO+12} row_newbcast:6 {DPP}")
        A(f"v_fmac_f32_dpp v{vt3}, v{vt1}, v{PO+14} row_newbcast:7 {DPP}")
        A(f"v_mul_f32 v{vt3}, v{vt3}, v{vt2}")
        A(f"v_cvt_pk_bf16_f32 v{vt3}, v{vt3}, v{vt3}")
        A("s_nop 1")
        BS = [PO + 16, PO + 20, PO + 24, PO + 28]
        def build(t):
            for r in range(4): A(f"v_and_b32_dpp v{BS[t%4]+r}, v{vt3}, v{vM+r} row_newbcast:{t} {DPP}")
        build(0); build(1)
        for t in range(16):
            acc = vS if t % 2 == 0 else vP
            mfma(acc, WO + 4 * t, BS[t % 4], None if t < 2 else acc)
            if t + 2 < 16: build(t + 2)
        A(f"v_mov_b32 v{vB0+1}, {sE}"); A(f"v_mov_b32 v{vB0+3}, {sE}")
        A("s_nop 6")
        for r in range(4): A(f"v_add_f32 v{vS+r}, v{vS+r}, v{vP+r}")
        A(f"v_cndmask_b32 v{vB0}, v{vS}, v{vS+2}, {sHALF}")
        A(f"v_cndmask_b32 v{vB0+2}, v{vS+1}, v{vS+3}, {sHALF}")
        A(f"buffer_store_dwordx4 {vr(vB0,4)}, v{vAY}, {SWS}, {sYP} offen sc1")
        if early:
            A(f"s_cmp_ge_u32 {sHD}, 32"); A("s_cbranch_scc1 L_afterB")
        stamp(6)
        A.label("L_tail2")
        A(f"s_cmp_eq_u32 {sRED}, 0"); A("s_cbranch_scc1 L_tail_end")
        A(f"s_add_u32 {sT0}, {sYG}, 4096"); A(f"s_add_u32 {sT1}, {sYG}, 8192"); A(f"s_add_u32 {sT2}, {sYG}, 12288")
        if pp2:
            Y2 = [64, 192]
            A("s_waitcnt vmcnt(0)")
            def issy(k):
                for u in range(16):
                    A(f"buffer_load_dwordx4 {vr(Y2[k]+4*u,4)}, v{vA16}, {SWS}, {[sYG,sT0,sT1,sT2][u//4]} offen offset:{(u%4)*1024} sc1")
            def finy(k):
                for u in range(8):
                    A(f"v_add_f32 v{PO+4*u}, v{Y2[k]+4*u}, v{Y2[k]+4*(u+8)}"); A(f"v_add_f32 v{PO+4*u+2}, v{Y2[k]+4*u+2}, v{Y2[k]+4*(u+8)+2}")
            poll2(issy, lambda k: [Y2[k] + 4 * u + o for u in range(16) for o in (1, 3)], 16, finy)
        else:
            lab = poll_begin()
            for u in range(16):
                A(f"buffer_load_dwordx4 {vr(PO+4*u,4)}, v{vA16}, {SWS}, {[sYG,sT0,sT1,sT2][u//4]} offen offset:{(u%4)*1024} sc1")
            poll_end(lab, [PO + 4 * u + o for u in range(16) for o in (1, 3)], tsleep)
        for u in range(8):
            if not pp2: A(f"v_add_f32 v{PO+4*u}, v{PO+4*u}, v{PO+4*(u+8)}"); A(f"v_add_f32 v{PO+4*u+2}, v{PO+4*u+2}, v{PO+4*(u+8)+2}")
        for u in range(1, 8):
            A(f"v_add_f32 v{PO}, v{PO}, v{PO+4*u}"); A(f"v_add_f32 v{PO+2}, v{PO+2}, v{PO+4*u+2}")
        A(f"v_mov_b32 v{vt0}, v{PO}"); A(f"v_mov_b32 v{vt1}, v{PO+2}"); A("s_nop 0")
        A(f"v_permlane16_swap_b32 v{PO}, v{vt0}"); A(f"v_permlane16_swap_b32 v{PO+2}, v{vt1}")
        A(f"v_add_f32 v{PO}, v{PO}, v{vt0}"); A(f"v_add_f32 v{PO+2}, v{PO+2}, v{vt1}")
        A(f"v_mov_b32 v{vt0}, v{PO}"); A(f"v_mov_b32 v{vt1}, v{PO+2}"); A("s_nop 0")
        A(f"v_permlane32_swap_b32 v{PO}, v{vt0}"); A(f"v_permlane32_swap_b32 v{PO+2}, v{vt1}")
        A(f"v_add_f32 v{PO}, v{PO}, v{vt0}"); A(f"v_add_f32 v{PO+2}, v{PO+2}, v{vt1}")
        A(f"v_cvt_pk_bf16_f32 v{vt0}, v{PO}, v{PO+2}")
        if fixed:
            A.label("L_fix")
            A("s_memrealtime s[90:91]"); A("s_waitcnt lgkmcnt(0)")
            A(f"s_sub_u32 s90, s90, {sE}")
            if diag: A("s_sub_u32 s90, s90, s101")
            A(f"s_cmp_lt_i32 s90, {fixed}"); A("s_cbranch_scc1 L_fix")
        A("s_mov_b64 exec, 0xffff")
        A(f"buffer_store_short v{vt0}, v{vAO}, {SOUT}, {sOUTO} offen")
        A(f"buffer_store_short_d16_hi v{vt0}, v{vAO}, {SOUT}, {sOUTO} offen offset:16")
        A("s_mov_b64 exec, -1")
        A.label("L_tail_end")
        stamp(7)
        A("s_endpgm")

    NBLK = 8 // NSW
    def qprod_issue():
        A(f"s_cmp_lt_u32 {sS}, 2")
        A("s_cselect_b32 s12, s38, s48"); A("s_cselect_b32 s13, s39, s49"); A("s_mov_b32 s14, 0x400000"); A("s_mov_b32 s15, 0x00020000")
        A("s_cselect_b32 s20, s32, s42"); A("s_cselect_b32 s21, s33, s43"); A("s_mov_b32 s22, 1024"); A("s_mov_b32 s23, 0x00020000")
        A(f"v_lshrrev_b32 v{vT}, 3, v{vN}"); A(f"v_lshl_add_u32 v{vT}, v{vG}, 1, v{vT}")
        A(f"v_lshlrev_b32 v{vT+1}, 4, v{vT}")
        A(f"v_lshlrev_b32 v{vT}, 16, v{vT}")
        A(f"v_and_b32 v{vT+2}, 7, v{vN}"); A(f"v_lshl_add_u32 v{vT}, v{vT+2}, 4, v{vT}")
        A(f"s_mul_i32 {sT1}, {sWAVE}, {128*NBLK}")
        for bk in range(NBLK):
            A(f"buffer_load_dwordx4 {vr(vX+4*bk,4)}, v{vT+1}, {SX}, {sT1} offen offset:{128*bk}")
        A(f"s_mul_i32 {sT0}, {sWAVE}, {NBLK << 19}"); A(f"s_lshl_b32 {sT1}, {sH}, 8"); A(f"s_add_u32 {sT0}, {sT0}, {sT1}")
        A(f"s_and_b32 {sT1}, {sS}, 1"); A(f"s_lshl_b32 {sT1}, {sT1}, 7"); A(f"s_add_u32 {sT0}, {sT0}, {sT1}")
        for bk in range(NBLK):
            for t in range(8):
                A(f"buffer_load_dwordx4 {vr(WQ+32*bk+4*t,4)}, v{vT}, {SW}, {sT0} offen {kflags}")
                if t < 7: A(f"s_add_u32 {sT0}, {sT0}, 8192")
            if bk < NBLK - 1: A(f"s_add_u32 {sT0}, {sT0}, {(64-7)*8192}")
    def qprod_compute():
        for bk in range(NBLK):
            for t in range(8):
                B = vB0 if t % 2 == 0 else vB1
                sel = sSELLO if t % 2 == 0 else sSELHI
                A(f"v_perm_b32 v{vt0}, v{vX+4*bk+t//2}, v{vX+4*bk+t//2}, {sel}")
                for r in range(4): A(f"v_and_b32 v{B+r}, v{vt0}, v{vM+r}")
                A("s_nop 1")
                mfma(vS, WQ + 32 * bk + 4 * t, B, None if (t == 0 and bk == 0) else vS)
        A(f"v_and_b32 v{vt1}, 7, v{vN}"); A(f"v_lshl_add_u32 v{vt1}, v{vG}, 5, v{vt1}"); A(f"v_lshlrev_b32 v{vt1}, 2, v{vt1}")
        A(f"s_lshl_b32 {sT0}, {sWAVE}, 9"); A(f"v_add_u32 v{vt1}, {sT0}, v{vt1}")
        A("s_mov_b32 exec_lo, 0x00ff00ff"); A("s_mov_b32 exec_hi, 0xff00ff00")
        A("s_nop 3")
        for r in range(4): A(f"ds_write_b32 v{vt1}, v{vS+r} offset:{L_QPART + r*32}")
        A("s_mov_b64 exec, -1")
        A("s_waitcnt lgkmcnt(0)")
        A("s_barrier")
    def masks():
        A(f"v_and_b32 v{vt0}, 1, v{vN}")
        A(f"v_mov_b32 v{vt1}, 0xffff")
        A(f"v_lshlrev_b32 v{vt0}, 4, v{vt0}")
        A(f"v_lshlrev_b32 v{vt1}, v{vt0}, v{vt1}")
        A(f"v_bfe_u32 v{vt0}, v{vN}, 1, 2")
        for r in range(4):
            A(f"v_cmp_eq_u32 vcc, {r}, v{vt0}"); A("s_nop 1")
            A(f"v_cndmask_b32 v{vM+r}, 0, v{vt1}, vcc")
        A(f"v_cmp_lt_u32 {sHALF}, 7, v{vN}")
        A(f"s_mov_b32 {sC}, {hex(f2u(CSCALE))}")
        A(f"s_mov_b32 {sSELLO}, 0x01000100"); A(f"s_mov_b32 {sSELHI}, 0x03020302")

    if ts: A("s_memrealtime s[86:87]")
    A(f"s_cmp_ge_u32 {sWG}, 256"); A("s_cbranch_scc1 L_end")
    A("s_load_dwordx16 s[32:47], s[0:1], 0")
    A("s_load_dwordx8 s[48:55], s[0:1], 64")
    A("s_load_dwordx2 s[56:57], s[0:1], 96")
    A(f"v_lshrrev_b32 v1, 6, v0"); A("v_and_b32 v0, 63, v0"); A("s_nop 0")
    A(f"v_readfirstlane_b32 {sWAVE}, v1")
    A(f"v_and_b32 v{vN}, 15, v0"); A(f"v_lshrrev_b32 v{vG}, 4, v0")
    A(f"v_lshlrev_b32 v{vKO}, 8, v{vN}"); A(f"v_lshl_add_u32 v{vKO}, v{vG}, 4, v{vKO}")
    A(f"v_lshlrev_b32 v{vVO}, 10, v{vG}"); A(f"v_lshl_add_u32 v{vVO}, v{vN}, 4, v{vVO}")
    A(f"s_lshr_b32 {sH}, {sWG}, 3")
    if hmap == 1: A(f"s_and_b32 {sS}, {sWG}, 7")
    else: A(f"s_add_u32 {sS}, {sWG}, {sH}"); A(f"s_and_b32 {sS}, {sS}, 7")
    A(f"s_lshl_b32 {sBASE}, {sH}, 23")
    a_, b_, c_ = STR
    A(f"s_mul_i32 {sSB}, {sS}, {a_}"); A(f"s_mov_b32 {sSTC}, {a_}")
    A(f"s_mul_i32 {sT0}, {sS}, {b_}"); A(f"s_add_u32 {sT0}, {sT0}, {4*a_ - 4*b_ & 0xffffffff}")
    A(f"s_cmp_ge_u32 {sS}, 4"); A(f"s_cselect_b32 {sSB}, {sT0}, {sSB}"); A(f"s_cselect_b32 {sSTC}, {b_}, {sSTC}")
    A(f"s_mul_i32 {sT0}, {sS}, {c_}"); A(f"s_add_u32 {sT0}, {sT0}, {(4*a_ + 2*b_ - 6*c_) & 0xffffffff}")
    A(f"s_cmp_ge_u32 {sS}, 6"); A(f"s_cselect_b32 {sSB}, {sT0}, {sSB}"); A(f"s_cselect_b32 {sSTC}, {c_}, {sSTC}")
    if ilv: A(f"s_lshl_b32 {sSB}, {sS}, 2")
    A(f"s_add_u32 {sT0}, {sSB}, {sWAVE}"); A(f"s_lshl_b32 {sKOFF}, {sT0}, 12"); A(f"s_add_u32 {sKOFF}, {sKOFF}, {sBASE}")
    A("s_waitcnt lgkmcnt(0)")
    srd(SWS, 56, WS_SIZE)
    stamp(0)
    if ts:
        A(f"s_add_u32 s92, s92, {13*4}"); A(f"v_mov_b32 v{sreg[0]}, s86")
        A(f"buffer_store_dword v{sreg[0]}, v{sreg[1]}, {SWS}, s92 offen")
    A(f"s_cmp_eq_u32 {sWAVE}, {NSW}"); A("s_cbranch_scc1 L_service")

    srd(SK, 34, 0x10000000); srd(SV, 36, 0x10000000)
    vNEXT, vCA, vONE = vT + 2, vT + 1, vT
    vNX = [56 + k for k in range(D)]
    def issue_tile(s):
        issue_k(s, sKOFF); issue_v(s, sKOFF); A(f"s_add_u32 {sKOFF}, {sKOFF}, {NSW*4096*(8 if ilv else 1)}")
    A(f"s_cmp_lt_u32 {sS}, 4"); A("s_cbranch_scc1 L_s_prod")
    for s in range(D + XS):
        issue_tile(s)
        if s == 0: stamp(14)
    masks()
    A.label("L_s_join")
    A(f"v_mov_b32 v{vm}, 0xff800000"); A(f"v_mov_b32 v{vl}, 0")
    for r in range(4): A(f"v_mov_b32 v{vO+r}, 0")
    for s in range(D):
        A(f"s_mov_b32 s{sVAL+s}, 1")
    A(f"s_mov_b32 {sSTOP}, 0")
    sDB, sDN = "s82", "s83"
    A(f"s_mov_b32 {sDB}, -1"); A(f"s_mov_b32 {sDN}, 0")
    A(f"s_mov_b32 {sNREC}, 0x10000000")
    A(f"v_lshlrev_b32 v{vt3}, 4, v{vG}")
    A(f"v_mov_b32 v{vCA}, 0"); A(f"v_mov_b32 v{vONE}, 1")
    A("s_barrier")
    for i in range(4): A(f"ds_read_b128 {vr(vQ+4*i,4)}, v{vt3} offset:{L_QA + i*64}")
    def grab():
        A("s_mov_b64 exec, 1")
        A(f"ds_add_rtn_u32 v{vNEXT}, v{vCA}, v{vONE} offset:{L_CNT}")
        A("s_mov_b64 exec, -1")
    grab()
    sWOF = "s101"
    if latewo & 2:
        A(f"s_cmp_lg_u32 {sWAVE}, 0"); A(f"s_cselect_b32 {sWOF}, 0, 1")
    if not noB and not early and not (latewo & 2):
        A(f"s_cmp_lg_u32 {sWAVE}, 0"); A("s_cbranch_scc1 L_s_nowo")
        wo_issue(50)
        A.label("L_s_nowo")
    A("s_waitcnt lgkmcnt(0)")
    stamp(1)
    NW = 8 * D - 4
    def step(s, nwk, nwv, refill=True, check=True):
        if check and not drain: A(f"s_cmp_eq_u32 s{sVAL+s}, 0"); A("s_cbranch_scc1 L_sdone")
        A(f"s_waitcnt vmcnt({nwk})")
        for i in range(4): mfma(vS, kreg(s, i), vQ + 4 * i, None if i == 0 else vS)
        if not refill:
            A("s_nop 7")
            softmax_update(vS, vP, vm, vl, vO, vt0, vt1, vt2)
            A(f"s_waitcnt vmcnt({nwv})")
            pv(vO, vP, lambda t: vreg(s, t))
            return
        A("s_waitcnt lgkmcnt(0)")
        A(f"v_readfirstlane_b32 {sT1}, v{vNEXT}")
        grab()
        ldyn = A.newlabel("L_dyn"); ldec = A.newlabel("L_dec"); lhave = A.newlabel("L_have"); lsp = A.newlabel("L_sp")
        if ts:
            lab = A.newlabel("L_nots")
            A(f"s_and_b32 s92, {sT1}, 15"); A("s_cmp_lg_u32 s92, 0"); A(f"s_cbranch_scc1 {lab}")
            A("s_memrealtime s[90:91]")
            A(f"s_lshl_b32 s92, s2, 7"); A(f"s_lshr_b32 s94, {sT1}, 2"); A("s_add_u32 s92, s92, s94"); A(f"s_add_u32 s92, s92, {WS_TS + 0x100000}")
            A("s_waitcnt lgkmcnt(0)")
            A(f"v_mov_b32 v{vt3}, s90")
            A(f"buffer_store_dword v{vt3}, v{vCA}, {SWS}, s92 offen")
            A.label(lab)
        if ilv:
            A(f"s_lshr_b32 {sT2}, {sT1}, 2"); A(f"s_lshl_b32 {sT2}, {sT2}, 5"); A(f"s_and_b32 {sT3}, {sT1}, 3"); A(f"s_add_u32 {sT2}, {sT2}, {sT3}"); A(f"s_add_u32 {sT2}, {sT2}, {sSB}")
        else:
            A(f"s_add_u32 {sT2}, {sT1}, {sSB}")
        A(f"s_cmp_lt_u32 {sT1}, {sSTC}"); A(f"s_cbranch_scc1 {ldec}")
        A(f"s_cmp_lg_u32 {sDB}, -1"); A(f"s_cbranch_scc1 {lhave}")
        A(f"s_mov_b32 {sTO}, {TMO*16}")
        A.label(lsp)
        A(f"ds_read_b64 {vr(vt2,2)}, v{vCA} offset:{L_DYN}")
        A("s_waitcnt lgkmcnt(0)")
        A(f"v_readfirstlane_b32 {sDB}, v{vt2}"); A(f"v_readfirstlane_b32 {sDN}, v{vt3}")
        A("s_nop 3")
        A(f"s_cmp_lg_u32 {sDB}, -1"); A(f"s_cbranch_scc1 {lhave}")
        A("s_sleep 2")
        A(f"s_sub_u32 {sTO}, {sTO}, 1"); A(f"s_cmp_lg_u32 {sTO}, 0"); A(f"s_cbranch_scc1 {lsp}")
        A(f"s_mov_b32 {sDB}, 0"); A(f"s_mov_b32 {sDN}, 0")
        A.label(lhave)
        A(f"s_sub_u32 {sT0}, {sT1}, {sSTC}")
        A(f"s_add_u32 {sT2}, {sT0}, {sDB}"); A(f"s_and_b32 {sT2}, {sT2}, 2047")
        if drain:
            A(f"s_add_u32 {sT3}, {sT0}, {WOK}"); A(f"s_cmp_lt_u32 {sT3}, {sDN}"); A(f"s_cselect_b32 {sSTOP}, {sSTOP}, 1")
            A(f"s_cmp_lt_u32 {sT0}, {sDN}"); A(f"s_cbranch_scc0 L_drain{s}")
            A.label(ldec)
        else:
            A(f"s_cmp_lt_u32 {sT0}, {sDN}")
            A(f"s_cselect_b32 {sSTOP}, {sSTOP}, 1")
            A.label(ldec)
            A(f"s_cselect_b32 s{sVAL+s}, 1, 0"); A(f"s_cselect_b32 s6, {sNREC}, 0"); A(f"s_cselect_b32 s10, {sNREC}, 0")
        A(f"s_lshl_b32 {sKOFF}, {sT2}, 12"); A(f"s_add_u32 {sKOFF}, {sKOFF}, {sBASE}")
        issue_k(s, sKOFF)
        softmax_update(vS, vP, vm, vl, vO, vt0, vt1, vt2)
        A(f"s_waitcnt vmcnt({nwv})")
        pv(vO, vP, lambda t: vreg(s, t))
        issue_v(s, sKOFF)
    if XS:
        NX = 8 * (D + XS) - 4
        for s in range(D): step(s, NX, NX, True, False)
        out = 8 * (D + XS)
        for s in range(D, D + XS):
            step(s, out - 4, out - 8, False, False); out -= 8
    A.label("L_loop")
    if latewo & 2:
        A(f"s_and_b32 {sT0}, {sWOF}, {sSTOP}"); A("s_cbranch_scc0 L_s_nowo2")
        wo_issue(50)
        A(f"s_mov_b32 {sWOF}, 0")
        A.label("L_s_nowo2")
    for s in range(D): step(s, NW, NW)
    A("s_branch L_loop")
    if drain:
        assert XS == 0
        for s0 in range(D):
            A.label(f"L_drain{s0}")
            stamp(15)
            softmax_update(vS, vP, vm, vl, vO, vt0, vt1, vt2)
            A(f"s_waitcnt vmcnt({8*(D-1)})")
            pv(vO, vP, lambda t: vreg(s0, t))
            for j in range(1, D):
                step((s0 + j) % D, 8 * (D - j) - 4, 8 * (D - j - 1), False, False)
            if s0 < D - 1: A("s_branch L_sdone")
        A("s_nop 3")
    A.label("L_sdone")
    xgroup_reduce("v_add_f32", vl, vt0)
    A(f"v_and_b32 v{vt1}, 7, v{vN}"); A(f"v_lshl_add_u32 v{vt1}, v{vG}, 5, v{vt1}"); A(f"v_lshlrev_b32 v{vt1}, 2, v{vt1}")
    A(f"s_lshl_b32 {sT0}, {sWAVE}, 9"); A(f"v_add_u32 v{vt1}, {sT0}, v{vt1}")
    A(f"s_lshl_b32 {sT0}, {sWAVE}, 3"); A(f"v_mov_b32 v{vt2}, {sT0}")
    for r in range(4): A(f"ds_write_b32 v{vt1}, v{vO+r} offset:{L_OPART + r*32}")
    A(f"ds_write_b64 v{vt2}, {vr(vm,2)} offset:{L_ML}")
    A("s_waitcnt lgkmcnt(0)")
    stamp(2)
    A("s_barrier")
    if noB:
        A("s_endpgm")
    else:
        A(f"s_cmp_eq_u32 {sWAVE}, 0"); A("s_cbranch_scc1 L_btail")
        A("s_endpgm")
        A.label("L_btail")
        sreg[0], sreg[1] = 20, 21
        A("s_setprio 3")
        if latewo & 2:
            A(f"s_cmp_eq_u32 {sWOF}, 0"); A("s_cbranch_scc1 L_s_nowo3")
            wo_issue(50)
            A.label("L_s_nowo3")
        A(f"v_mov_b32 v{vt1}, 0")
        A(f"ds_read_b32 v{vt0}, v{vt1} offset:{L_EP}")
        A(f"s_add_u32 {sHD}, {sH}, 32")
        tail_prep()
        A("s_waitcnt lgkmcnt(0)")
        A(f"v_readfirstlane_b32 {sE}, v{vt0}")
        A("s_branch L_tail2" if early else "s_branch L_tail")
    sreg[0], sreg[1] = 54, 55
    A.label("L_s_prod")
    A("s_setprio 2")
    qprod_issue()
    masks()
    A("s_waitcnt vmcnt(0)")
    stamp(12)
    qprod_compute()
    A("s_setprio 0")
    for s in range(D + XS): issue_tile(s)
    A("s_branch L_s_join")

    A.label("L_service")
    sreg[0], sreg[1] = 254, 255
    A("s_setprio 3")
    srd(SDBG, 54, 256)
    A(f"v_mov_b32 v{vt1}, 0")
    A(f"s_cmp_lg_u32 {sWG}, 0"); A("s_cbranch_scc1 L_v_noep0")
    A("s_memrealtime s[90:91]")
    A("s_waitcnt lgkmcnt(0)")
    A(f"s_max_u32 {sE}, s90, 1")
    A(f"v_mov_b32 v{vt0}, {sE}")
    A("s_mov_b64 exec, 1")
    A(f"buffer_store_dword v{vt0}, v{vt1}, {SDBG}, 0 offen sc1")
    A("s_mov_b64 exec, -1")
    A.label("L_v_noep0")
    masks()
    A(f"v_mov_b32 v{vt0}, {(D+XS)*NSW}"); A(f"v_mov_b32 v{vt1}, 0"); A(f"v_mov_b32 v{vt2}, -1")
    A(f"ds_write_b32 v{vt1}, v{vt0} offset:{L_CNT}")
    A(f"ds_write_b32 v{vt1}, v{vt2} offset:{L_DYN}")
    A(f"s_mov_b32 {sTO}, {TMO}")
    A.label("L_ep_loop")
    A(f"buffer_load_dword v{vt0}, v{vt1}, {SDBG}, 0 offen sc1")
    A("s_waitcnt vmcnt(0)")
    A(f"v_readfirstlane_b32 {sE}, v{vt0}")
    A("s_nop 3")
    A(f"s_cmp_lg_u32 {sE}, 0"); A("s_cbranch_scc1 L_ep_done")
    A(f"s_sleep {sleep}")
    A(f"s_sub_u32 {sTO}, {sTO}, 1"); A(f"s_cmp_lg_u32 {sTO}, 0"); A("s_cbranch_scc1 L_ep_loop")
    A.label("L_ep_done")
    stamp(11)
    vLO8 = vt5
    A(f"v_lshlrev_b32 v{vLO8}, 3, v{vLANE}")
    A(f"s_cmp_ge_u32 {sS}, 4"); A("s_cbranch_scc1 L_v_noprod3")
    A(f"v_and_b32 v{vt1}, 31, v{vLANE}"); A(f"v_lshlrev_b32 v{vt1}, 3, v{vt1}")
    A(f"s_lshr_b32 {sT0}, {sS}, 1"); A(f"s_lshl_b32 {sT0}, {sT0}, 5"); A(f"s_add_u32 {sT0}, {sT0}, {sH}"); A(f"s_lshl_b32 {sT0}, {sT0}, 9")
    A(f"s_and_b32 {sT1}, {sS}, 1"); A(f"s_lshl_b32 {sT1}, {sT1}, 8"); A(f"s_add_u32 {sT0}, {sT0}, {sT1}"); A(f"s_add_u32 {sT0}, {sT0}, {WS_QF}")
    A("s_barrier")
    for k in range(2*NSW): A(f"ds_read_b64 {vr(WQ+2*k,2)}, v{vt1} offset:{L_QPART + k*256}")
    A("s_waitcnt lgkmcnt(0)")
    for k in range(1, 2*NSW):
        A(f"v_add_f32 v{WQ}, v{WQ}, v{WQ+2*k}"); A(f"v_add_f32 v{WQ+1}, v{WQ+1}, v{WQ+2*k+1}")
    A(f"v_cvt_pk_bf16_f32 v{vB0}, v{WQ}, v{WQ+1}"); A(f"v_mov_b32 v{vB0+1}, {sE}")
    A("s_mov_b32 exec_hi, 0")
    A(f"buffer_store_dwordx2 {vr(vB0,2)}, v{vt1}, {SWS}, {sT0} offen sc1")
    A("s_mov_b64 exec, -1")
    stamp(3)
    A.label("L_v_noprod3")
    A(f"s_lshl_b32 {sT0}, {sH}, 9"); A(f"s_add_u32 {sT0}, {sT0}, {WS_QF}")
    lab = poll_begin()
    A(f"buffer_load_dwordx2 {vr(vQ,2)}, v{vLO8}, {SWS}, {sT0} offen sc1")
    poll_end(lab, [vQ + 1], sleep)
    A(f"v_lshlrev_b32 v{vt2}, 2, v{vLANE}")
    A(f"ds_write_b32 v{vt2}, v{vQ} offset:{L_QA}")
    A(f"v_mov_b32 v{vt0}, {sE}"); A(f"v_mov_b32 v{vt1}, 0")
    A(f"ds_write_b32 v{vt1}, v{vt0} offset:{L_EP}")
    A("s_waitcnt lgkmcnt(0)")
    A("s_barrier")
    if noB:
        A("s_barrier"); A("s_endpgm")
    PBR = 64
    A(f"s_cmp_lt_u32 {sS}, 6"); A("s_cbranch_scc1 L_v_noB")
    srd(SK, 44, 0x4000000); srd(SV, 46, 0x4000000)
    A(f"s_lshl_b32 {sT0}, {sH}, 1"); A(f"s_add_u32 {sT0}, {sT0}, {sS}"); A(f"s_sub_u32 {sT0}, {sT0}, 6")
    A(f"s_lshr_b32 {sT1}, {sT0}, 3"); A(f"s_and_b32 {sBU}, {sT0}, 7")
    A(f"s_lshl_b32 {sBB}, {sT1}, 23"); A(f"s_add_u32 {sBB}, {sBB}, {28672*256}"); A(f"s_lshl_b32 {sT2}, {sBU}, 12"); A(f"s_add_u32 {sBB}, {sBB}, {sT2}")
    A(f"s_mul_i32 {sBJ}, {sT0}, {brot}")
    A(f"s_mov_b32 {sBN}, 28")
    A(f"s_mov_b32 {sNREC}, 0x4000000")
    def boff():
        A(f"s_and_b32 {sKOFF}, {sBJ}, 31"); A(f"s_lshl_b32 {sKOFF}, {sKOFF}, 15"); A(f"s_add_u32 {sKOFF}, {sKOFF}, {sBB}"); A(f"s_add_u32 {sBJ}, {sBJ}, 1")
    for s in range(4):
        boff(); issue_k(s, sKOFF); issue_v(s, sKOFF)
    A(f"s_lshl_b32 {sT0}, {sT1}, 11"); A(f"s_add_u32 {sT0}, {sT0}, {WS_QF + 32*512}")
    lab = poll_begin()
    for hh in range(4):
        A(f"buffer_load_dwordx2 {vr(vQ+2*hh,2)}, v{vLO8}, {SWS}, {sT0} offen offset:{hh*512} sc1")
    poll_end(lab, [vQ + 2 * hh + 1 for hh in range(4)], 16)
    for hh in range(4): A(f"ds_write_b32 v{vt2}, v{vQ+2*hh} offset:{L_QB + hh*256}")
    A("s_waitcnt lgkmcnt(0)")
    QBp = [vQ, WQ]
    stO = [vO, 232]; stS = [vS, 236]; stP = [vP, 240]; stm = [vm, 244]; stl = [vl, 245]
    A(f"v_lshrrev_b32 v{vt3}, 3, v{vN}"); A(f"v_lshlrev_b32 v{vt3}, 8, v{vt3}"); A(f"v_lshl_add_u32 v{vt3}, v{vG}, 4, v{vt3}")
    for pp in range(2):
        for i in range(4): A(f"ds_read_b128 {vr(QBp[pp]+4*i,4)}, v{vt3} offset:{L_QB + pp*512 + i*64}")
        A(f"v_mov_b32 v{stm[pp]}, 0xff800000"); A(f"v_mov_b32 v{stl[pp]}, 0")
        for r in range(4): A(f"v_mov_b32 v{stO[pp]+r}, 0")
    A("s_waitcnt lgkmcnt(0)")
    stamp(4)
    A.label("L_bloop")
    for s in range(4):
        A("s_waitcnt vmcnt(28)")
        for pp in range(2):
            for i in range(4): mfma(stS[pp], kreg(s, i), QBp[pp] + 4 * i, None if i == 0 else stS[pp])
        A(f"s_cmp_gt_i32 {sBN}, 0"); A(f"s_cselect_b32 s6, {sNREC}, 0"); A(f"s_cselect_b32 s10, {sNREC}, 0")
        boff(); issue_k(s, sKOFF)
        for pp in range(2): softmax_update(stS[pp], stP[pp], stm[pp], stl[pp], stO[pp], vt0, vt1, vt2)
        A("s_waitcnt vmcnt(28)")
        for pp in range(2): pv(stO[pp], stP[pp], lambda t: vreg(s, t))
        issue_v(s, sKOFF)
        A(f"s_sub_u32 {sBN}, {sBN}, 1")
    A(f"s_cmp_gt_i32 {sBN}, -4"); A("s_cbranch_scc1 L_bloop")
    stamp(10)
    A("s_waitcnt vmcnt(0)")
    A(f"v_and_b32 v{vt1}, 7, v{vN}"); A(f"v_lshl_add_u32 v{vt1}, v{vG}, 5, v{vt1}"); A(f"v_lshrrev_b32 v{vt2}, 3, v{vN}"); A(f"v_lshl_add_u32 v{vt1}, v{vt2}, 7, v{vt1}")
    A(f"v_lshlrev_b32 v{vt1}, 2, v{vt1}")
    A("s_nop 3")
    for pp in range(2):
        for r in range(4): A(f"ds_write_b32 v{vt1}, v{stO[pp]+r} offset:{L_OB + pp*1024 + r*32}")
        xgroup_reduce("v_add_f32", stl[pp], vt0)
        R = PBR + 16 + pp * 4
        A(f"v_mov_b32 v{R}, v{stm[pp]}"); A(f"v_mov_b32 v{R+1}, {sE}"); A(f"v_mov_b32 v{R+2}, v{stl[pp]}"); A(f"v_mov_b32 v{R+3}, {sE}")
    A("s_waitcnt lgkmcnt(0)")
    for hh in range(4): A(f"ds_read_b64 {vr(vQ+2*hh,2)}, v{vLO8} offset:{L_OB + hh*512}")
    A("s_waitcnt lgkmcnt(0)")
    for hh in range(4):
        R = PBR + hh * 4
        A(f"v_mov_b32 v{R}, v{vQ+2*hh}"); A(f"v_mov_b32 v{R+1}, {sE}"); A(f"v_mov_b32 v{R+2}, v{vQ+2*hh+1}"); A(f"v_mov_b32 v{R+3}, {sE}")
    sPB0, sPB1, sML0 = "s76", "s77", "s78"
    vBML = 88
    A(f"s_lshr_b32 {sT0}, {sH}, 2"); A(f"s_lshl_b32 {sT0}, {sT0}, 5"); A(f"s_add_u32 {sT0}, {sT0}, {sBU}"); A(f"s_add_u32 {sT0}, {sT0}, 256")
    A(f"s_lshl_b32 {sPB0}, {sT0}, 10"); A(f"s_add_u32 {sPB0}, {sPB0}, {WS_P}")
    A(f"s_lshl_b32 {sML0}, {sT0}, 4"); A(f"s_add_u32 {sML0}, {sML0}, {WS_ML}")
    A.label("L_v_noB")
    sreg[0], sreg[1] = 20, 21
    A(f"v_lshrrev_b32 v{vBML}, 3, v{vN}"); A(f"v_lshlrev_b32 v{vBML}, 7, v{vBML}")
    def pb_publish(lab):
        A(f"s_cmp_lt_u32 {sS}, 6"); A(f"s_cbranch_scc1 {lab}")
        for hh in range(4):
            A(f"buffer_store_dwordx4 {vr(PBR+hh*4,4)}, v{vA16}, {SWS}, {sPB0} offen sc1")
            if hh < 3: A(f"s_add_u32 {sPB0}, {sPB0}, 8192")
        A("s_mov_b64 exec, 0x101")
        for pp in range(2):
            A(f"buffer_store_dwordx4 {vr(PBR+16+pp*4,4)}, v{vBML}, {SWS}, {sML0} offen offset:{pp*256} sc1")
        A("s_mov_b64 exec, -1")
        A.label(lab)
    def cntwait(thr_s):
        l1 = A.newlabel("L_cw"); l2 = A.newlabel("L_cwok")
        A(f"v_mov_b32 v{vt1}, 0"); A(f"s_mov_b32 {sTO}, {TMO}")
        A.label(l1)
        A(f"ds_read_b32 v{vt0}, v{vt1} offset:{L_CNT}")
        A("s_waitcnt lgkmcnt(0)")
        A(f"v_readfirstlane_b32 {sT0}, v{vt0}")
        A("s_nop 3")
        A(f"s_cmp_ge_u32 {sT0}, {thr_s}"); A(f"s_cbranch_scc1 {l2}")
        A(f"s_sleep {bsl}")
        A(f"s_sub_u32 {sTO}, {sTO}, 1"); A(f"s_cmp_lg_u32 {sTO}, 0"); A(f"s_cbranch_scc1 {l1}")
        A.label(l2)
    sK1, sTT1 = "s80", "s81"
    A(f"s_mov_b32 {sHD}, {sH}")
    tail_prep()
    if diag:
        A("s_mov_b32 s101, 0")
        A(f"s_cmp_ge_u32 {sS}, 6"); A("s_cbranch_scc1 L_nodiag")
        cntwait(64)
        A("s_memrealtime s[90:91]"); A("s_waitcnt lgkmcnt(0)"); A(f"s_sub_u32 s101, s90, {sE}")
        if diag == 2:
            A("s_mov_b32 s100, s90")
            cntwait(176)
            A("s_memrealtime s[90:91]"); A("s_waitcnt lgkmcnt(0)"); A("s_sub_u32 s101, s90, s100")
        A.label("L_nodiag")
    sSMP = "s79"
    A(f"s_mov_b32 {sSMP}, {sSTC}")
    if ilv:
        A(f"s_cmp_lt_u32 {sS}, 4"); A(f"s_cselect_b32 {sT0}, {KP}, 0"); A(f"s_cmp_ge_u32 {sS}, 6"); A(f"s_cselect_b32 {sT0}, {KB}, {sT0}"); A(f"s_sub_u32 {sSMP}, {sSTC}, {sT0}")
    A(f"s_sub_u32 {sT3}, {sSMP}, {K1}")
    cntwait(sT3)
    A("s_memrealtime s[90:91]"); A(f"s_mov_b32 {sK1}, {sT0}"); A("s_waitcnt lgkmcnt(0)"); A(f"s_mov_b32 {sTT1}, s90")
    A(f"s_sub_u32 {sT3}, {sSMP}, {K2}"); A(f"s_add_u32 {sT1}, {sK1}, 16"); A(f"s_max_u32 {sT3}, {sT3}, {sT1}"); A(f"s_min_u32 {sT3}, {sT3}, {sSTC}")
    cntwait(sT3)
    A("s_memrealtime s[90:91]"); A("s_waitcnt lgkmcnt(0)")
    A(f"s_sub_u32 {sT1}, {sT0}, {sK1}"); A(f"s_max_u32 {sT1}, {sT1}, 1")
    A(f"s_sub_u32 {sT2}, s90, {sTT1}")
    A(f"s_max_u32 {sT2}, {sT2}, 1")
    A(f"s_sub_u32 {sT3}, s90, {sE}")
    A(f"s_sub_i32 {sT0}, {sSTC}, {sT0}")
    A(f"v_cvt_f32_u32 v{vt0}, {sT1}"); A(f"v_cvt_f32_u32 v{vt1}, {sT2}"); A(f"v_cvt_f32_u32 v{vt2}, {sT3}"); A(f"v_cvt_f32_i32 v{vt3}, {sT0}")
    A(f"v_rcp_f32 v{vt4}, v{vt1}"); A(f"v_rcp_f32 v{vT}, v{vt0}"); A("s_nop 0")
    A(f"v_mul_f32 v{vB0}, v{vt0}, v{vt4}")
    A(f"v_mul_f32 v{vT}, v{vT}, v{vt1}")
    A(f"v_fma_f32 v{vB0+2}, v{vt3}, v{vT}, v{vt2}")
    A(f"v_mov_b32 v{vB0+1}, {sE}"); A(f"v_mov_b32 v{vB0+3}, {sE}")
    A(f"s_lshl_b32 {sT2}, {sH}, 7"); A(f"s_add_u32 {sT2}, {sT2}, {WS_BAL}"); A(f"s_lshl_b32 {sT1}, {sS}, 4"); A(f"s_add_u32 {sT1}, {sT1}, {sT2}")
    A(f"v_mov_b32 v{vt1}, 0")
    A("s_mov_b64 exec, 1")
    A(f"buffer_store_dwordx4 {vr(vB0,4)}, v{vt1}, {SWS}, {sT1} offen sc1")
    A("s_mov_b64 exec, -1")
    pb_publish("L_v_pbdone")
    lab = poll_begin()
    A(f"buffer_load_dwordx4 {vr(vML,4)}, v{vAML}, {SWS}, {sT2} offen sc1")
    poll_end(lab, [vML + 1, vML + 3], 4)
    def bsum8(v):
        A("s_nop 1"); A(f"v_add_f32_dpp v{v}, v{v}, v{v} quad_perm:[1,0,3,2] {DPP}")
        A("s_nop 1"); A(f"v_add_f32_dpp v{v}, v{v}, v{v} quad_perm:[2,3,0,1] {DPP}")
        A("s_nop 1"); A(f"v_add_f32_dpp v{v}, v{v}, v{v} row_half_mirror {DPP}")
    A(f"v_mov_b32 v{vt0}, v{vML}"); A(f"v_mul_f32 v{vt1}, v{vML}, v{vML+2}")
    bsum8(vt0); bsum8(vt1)
    A(f"v_add_f32 v{vt1}, {hex(f2u(float(RT)))}, v{vt1}")
    A(f"v_rcp_f32 v{vt0}, v{vt0}"); A("s_nop 0")
    A(f"v_mul_f32 v{vt1}, v{vt1}, v{vt0}")
    A(f"v_sub_f32 v{vt1}, v{vt1}, v{vML+2}"); A(f"v_mul_f32 v{vt1}, v{vt1}, v{vML}")
    A(f"v_max_f32 v{vt1}, 0, v{vt1}")
    A(f"v_min_f32 v{vt1}, {hex(f2u(4096.0))}, v{vt1}")
    A(f"v_add_f32 v{vt1}, {hex(f2u(1e-3))}, v{vt1}")
    for sh in (1, 2, 4):
        A("s_nop 1"); A(f"v_add_f32_dpp v{vt1}, v{vt1}, v{vt1} row_shr:{sh} row_mask:0xf bank_mask:0xf bound_ctrl:0")
    A("s_nop 1")
    A(f"v_readlane_b32 {sT0}, v{vt1}, 7"); A("s_nop 1")
    A(f"v_rcp_f32 v{vt0}, {sT0}"); A("s_nop 0")
    A(f"v_mul_f32 v{vt0}, {hex(f2u(float(RT)))}, v{vt0}")
    A(f"v_mul_f32 v{vt1}, v{vt1}, v{vt0}"); A(f"v_rndne_f32 v{vt1}, v{vt1}"); A(f"v_cvt_u32_f32 v{vt1}, v{vt1}")
    A(f"v_min_u32 v{vt1}, {RT}, v{vt1}")
    A(f"s_sub_u32 {sT1}, {sS}, 1"); A(f"s_and_b32 {sT1}, {sT1}, 7"); A("s_nop 1")
    A(f"v_readlane_b32 {sT2}, v{vt1}, {sS}"); A(f"v_readlane_b32 {sT3}, v{vt1}, {sT1}")
    A("s_nop 3")
    A(f"s_cmp_eq_u32 {sS}, 7"); A(f"s_cselect_b32 {sT2}, {RT}, {sT2}")
    A(f"s_cmp_eq_u32 {sS}, 0"); A(f"s_cselect_b32 {sT3}, 0, {sT3}")
    A(f"s_sub_u32 {sT2}, {sT2}, {sT3}")
    A(f"s_add_u32 {sT3}, {sT3}, {DYN0}")
    A(f"v_mov_b32 v{vt2}, {sT3}"); A(f"v_mov_b32 v{vt3}, {sT2}"); A(f"v_mov_b32 v{vt1}, 0")
    A(f"ds_write_b64 v{vt1}, {vr(vt2,2)} offset:{L_DYN}")
    if ts:
        A(f"s_lshl_b32 s92, s2, 6"); A(f"s_add_u32 s92, s92, {WS_TS + 0x200000}")
        A(f"buffer_store_dword v{vt3}, v{vt1}, {SWS}, s92 offen")
    stamp(9)
    A(f"s_add_u32 {sT3}, {sT2}, {sSTC}"); A(f"s_add_u32 {sT3}, {sT3}, {X2}")
    cntwait(sT3)
    wo_issue(40)
    A(f"v_mov_b32 v{vt2}, 0")
    A(f"s_lshl_b32 {sT0}, {sH}, 3"); A(f"s_add_u32 {sT0}, {sT0}, {sS}"); A(f"s_lshl_b32 {sT1}, {sT0}, 4"); A(f"s_lshl_b32 {sT0}, {sT0}, 10")
    A(f"s_add_u32 {sT0}, {sT0}, {WS_P}"); A(f"s_add_u32 {sT1}, {sT1}, {WS_ML}")
    A(f"v_mov_b32 v{vB0+1}, {sE}"); A(f"v_mov_b32 v{vB0+3}, {sE}"); A(f"v_mov_b32 v{vB1+1}, {sE}"); A(f"v_mov_b32 v{vB1+3}, {sE}")
    A("s_barrier")
    stamp(8)
    MLW = PO + 16
    for w in range(NSW):
        A(f"ds_read_b64 {vr(MLW+2*w,2)}, v{vt2} offset:{L_ML + w*8}")
    for w in range(NSW):
        A(f"ds_read_b64 {vr(PO+2*w,2)}, v{vA8} offset:{L_OPART + w*512}")
    A(f"s_waitcnt lgkmcnt({NSW})")
    A(f"v_max_f32 v{vB1}, v{MLW}, v{MLW+2}")
    A(f"v_max3_f32 v{vB1}, v{MLW+4}, v{MLW+6}, v{vB1}")
    for w in range(NSW): A(f"v_sub_f32 v{MLW+2*w}, v{MLW+2*w}, v{vB1}")
    for w in range(NSW): A(f"v_mul_f32 v{MLW+2*w}, {sC}, v{MLW+2*w}")
    for w in range(NSW): A(f"v_exp_f32 v{MLW+2*w}, v{MLW+2*w}")
    A("s_waitcnt lgkmcnt(0)")
    A(f"v_mul_f32 v{vB0}, v{PO}, v{MLW}"); A(f"v_mul_f32 v{vB0+2}, v{PO+1}, v{MLW}"); A(f"v_mul_f32 v{vB1+2}, v{MLW+1}, v{MLW}")
    for w in range(1, NSW):
        A(f"v_fma_f32 v{vB0}, v{PO+2*w}, v{MLW+2*w}, v{vB0}"); A(f"v_fma_f32 v{vB0+2}, v{PO+2*w+1}, v{MLW+2*w}, v{vB0+2}")
        A(f"v_fma_f32 v{vB1+2}, v{MLW+2*w+1}, v{MLW+2*w}, v{vB1+2}")
    A(f"buffer_store_dwordx4 {vr(vB0,4)}, v{vA16}, {SWS}, {sT0} offen sc1")
    A("s_mov_b64 exec, 1")
    A(f"buffer_store_dwordx4 {vr(vB1,4)}, v{vt2}, {SWS}, {sT1} offen sc1")
    A("s_mov_b64 exec, -1")
    A.label("L_tail")
    tail()
    A.label("L_end")
    A("s_endpgm")

    out = HEADER + f"; @launch grid=(256,1,1) block=({(NSW+1)*64},1,1) lds={LDS_SIZE}\n"
    out += '.amdgcn_target "amdgcn-amd-amdhsa--gfx950"\n.text\n' + f".globl {KNAME}\n.p2align 8\n.type {KNAME},@function\n{KNAME}:\n"
    out += "\n".join(A.L) + "\n"
    out += f""".section .rodata,"a"
.p2align 6
.amdhsa_kernel {KNAME}
  .amdhsa_next_free_vgpr 256
  .amdhsa_next_free_sgpr 102
  .amdhsa_accum_offset 256
  .amdhsa_group_segment_fixed_size 0
  .amdhsa_kernarg_size 104
  .amdhsa_user_sgpr_count 2
  .amdhsa_user_sgpr_kernarg_segment_ptr 1
  .amdhsa_system_sgpr_workgroup_id_x 1
.end_amdhsa_kernel
"""
    return out

if __name__ == "__main__":
    cfg = json.loads(sys.argv[2]) if len(sys.argv) > 2 else {}
    open(sys.argv[1], "w").write(gen(**cfg))
```

```python
import sys, json, math, struct
from gen import HEADER, KNAME, G, vr, f2u, CSCALE

WS_CNT  = 0x1000
WS_QF   = 0x10000
WS_BAL  = 0x18000
WS_ML   = 0x20000
WS_P    = 0x100000
WS_Y    = 0x200000
WS_TS   = 0x800000
WS_SIZE = 0x1000000

L_QPART = 0
L_QA    = 4096
L_QB    = 4352
L_OPART = 6144
L_OB    = 8192
L_ML    = 10240
L_CNT   = 10304
L_EP    = 10312
L_DYN   = 10320
L_BD    = 10328
L_MLB   = 10496
L_OBW   = 12288
LDS_SIZE = 20480

def gen(ts=False, kflags="nt", sleep=2, tsleep=1, hmap=1, ST=224, noB=False, D=4, pbthr=0, TMO=0x8000, NSW=4, brot=5, STR=None, xflag=True, early=False, X1=16, X2=0, bsl=4, latewo=3, K1=64, K2=24, XS=0, ilv=False, KB=32, KP=8, fixed=0, drain=True, WOK=0, pp2=False, stag=4, diag=0, bflags=None, wflags=None, bstream=True):
    A = G()
    if STR is None: STR = [ST] * 3
    roles = True
    RT = 2048 - (4 * STR[0] + 2 * STR[1] + 2 * STR[2])
    DYN0 = 2048 - RT
    sreg = [54, 55]
    sWG, sWAVE = "s2", "s3"
    SK, SV, SW, SWS, SX, SDBG, SOUT = "s[4:7]", "s[8:11]", "s[12:15]", "s[16:19]", "s[20:23]", "s[24:27]", "s[28:31]"
    sC = "s58"; sHD = "s59"; sH, sS = "s60", "s61"; sKOFF = "s62"; sSTOP = "s63"; sCOFF = "s64"
    sT0, sT1, sT2, sT3 = "s65", "s66", "s67", "s68"
    sE = "s69"; sSELLO, sSELHI = "s70", "s71"; sHALF = "s[72:73]"; sTO = "s74"; sNREC = "s75"
    sVAL = 76
    sBASE, sSB, sBB, sBU, sBJ, sBN = "s95", "s96", "s97", "s98", "s99", "s100"
    sSTC = "s93"
    vLANE, vN, vG, vKO, vVO = 0, 1, 2, 3, 4
    vM = 5; vT = 9
    vQ = 12; vO = 28; vS = 32; vP = 36; vB0 = 40; vB1 = 44; vm = 48; vl = 49
    vt0, vt1, vt2, vt3, vt4, vt5 = 50, 51, 52, 53, 54, 55
    vX = 56; vML = 60
    RING = 64
    def kreg(slot, i): return RING + slot * 32 + i * 4
    def vreg(slot, i): return RING + slot * 32 + 16 + i * 4
    WQ = 192
    WO = 192; PO = RING + 64
    assert D <= 4
    DPP = "row_mask:0xf bank_mask:0xf"

    def srd(dst, ptr_lo, nbytes):
        b = int(dst[2:].split(":")[0])
        A(f"s_mov_b32 s{b}, s{ptr_lo}"); A(f"s_mov_b32 s{b+1}, s{ptr_lo+1}")
        A(f"s_mov_b32 s{b+2}, {hex(nbytes)}"); A(f"s_mov_b32 s{b+3}, 0x00020000")
    def stamp(idx):
        if not ts: return
        A("s_memrealtime s[90:91]")
        A("s_lshl_b32 s92, s2, 3"); A("s_add_u32 s92, s92, s3"); A("s_lshl_b32 s92, s92, 6")
        A(f"s_add_u32 s92, s92, {WS_TS + idx*4}")
        A("s_waitcnt lgkmcnt(0)")
        A(f"v_mov_b32 v{sreg[0]}, s90"); A(f"v_mov_b32 v{sreg[1]}, 0")
        A(f"buffer_store_dword v{sreg[0]}, v{sreg[1]}, {SWS}, s92 offen")
    def xgroup_reduce(op, v, tmp):
        A(f"v_mov_b32 v{tmp}, v{v}"); A("s_nop 1")
        A(f"v_permlane16_swap_b32 v{v}, v{tmp}")
        A(f"{op} v{v}, v{v}, v{tmp}")
        A(f"v_mov_b32 v{tmp}, v{v}"); A("s_nop 1")
        A(f"v_permlane32_swap_b32 v{v}, v{tmp}")
        A(f"{op} v{v}, v{v}, v{tmp}")
    def mfma(d, a, b, c):
        cs = "0" if c is None else vr(c, 4)
        A(f"v_mfma_f32_16x16x32_bf16 {vr(d,4)}, {vr(a,4)}, {vr(b,4)}, {cs}")
    def softmax_update(S, P, m, l, O, t0, t1, t2):
        A(f"v_max_f32 v{t0}, v{S}, v{S+1}")
        A(f"v_max3_f32 v{t0}, v{S+2}, v{S+3}, v{t0}")
        A(f"v_mov_b32 v{t1}, v{t0}"); A("s_nop 1")
        A(f"v_permlane16_swap_b32 v{t0}, v{t1}")
        A(f"v_max_f32 v{t0}, v{t0}, v{t1}")
        A(f"v_mov_b32 v{t1}, v{t0}"); A("s_nop 1")
        A(f"v_permlane32_swap_b32 v{t0}, v{t1}")
        A(f"v_max3_f32 v{t0}, v{t0}, v{t1}, v{m}")
        A(f"v_mul_f32 v{t1}, {sC}, v{t0}")
        A(f"v_fma_f32 v{t2}, v{m}, {sC}, -v{t1}")
        for r in range(4): A(f"v_fma_f32 v{P+r}, v{S+r}, {sC}, -v{t1}")
        A(f"v_exp_f32 v{t2}, v{t2}")
        for r in range(4): A(f"v_exp_f32 v{P+r}, v{P+r}")
        A(f"v_mov_b32 v{m}, v{t0}")
        A(f"v_fma_f32 v{l}, v{l}, v{t2}, v{P}")
        A(f"v_add_f32 v{t1}, v{P+1}, v{P+2}")
        for r in range(4): A(f"v_mul_f32 v{O+r}, v{O+r}, v{t2}")
        A(f"v_add_f32 v{l}, v{l}, v{P+3}")
        A(f"v_add_f32 v{l}, v{l}, v{t1}")
    def pv(O, P, vbase_fn):
        for t in range(4):
            B = vB0 if t % 2 == 0 else vB1
            A(f"v_cvt_pk_bf16_f32 v{vt0}, v{P+t}, v{P+t}")
            for r in range(4): A(f"v_and_b32 v{B+r}, v{vt0}, v{vM+r}")
            A("s_nop 1")
            mfma(O, vbase_fn(t), B, O)
    cur = [kflags]
    if wflags is None: wflags = kflags
    if bflags is None: bflags = kflags
    def issue_k(slot, soff):
        for i in range(4):
            A(f"buffer_load_dwordx4 {vr(kreg(slot,i),4)}, v{vKO}, {SK}, {soff} offen offset:{i*64} {cur[0]}")
    def issue_v(slot, soff):
        for i in range(4):
            A(f"buffer_load_dwordx4 {vr(vreg(slot,i),4)}, v{vVO}, {SV}, {soff} offen offset:{i*256} {cur[0]}")
    def poll_begin():
        lab = A.newlabel("L_poll")
        A(f"s_mov_b32 {sTO}, {TMO}")
        A.label(lab)
        return lab
    def poll_end(lab, tagregs, sl):
        done = A.newlabel("L_pdone")
        A("s_waitcnt vmcnt(0)")
        tr = list(tagregs)
        A(f"v_xor_b32 v{vt0}, {sE}, v{tr[0]}")
        k = 1
        while k < len(tr):
            if k + 1 < len(tr):
                A(f"v_xor_b32 v{vt1}, {sE}, v{tr[k]}"); A(f"v_xor_b32 v{vT}, {sE}, v{tr[k+1]}")
                A(f"v_or3_b32 v{vt0}, v{vt0}, v{vt1}, v{vT}"); k += 2
            else:
                A(f"v_xor_b32 v{vt1}, {sE}, v{tr[k]}"); A(f"v_or_b32 v{vt0}, v{vt0}, v{vt1}"); k += 1
        A(f"v_cmp_ne_u32 vcc, 0, v{vt0}")
        A("s_nop 4")
        A(f"s_cbranch_vccz {done}")
        while sl > 0:
            A(f"s_sleep {min(sl,127)}"); sl -= 127
        A(f"s_sub_u32 {sTO}, {sTO}, 1")
        A(f"s_cmp_lg_u32 {sTO}, 0")
        A(f"s_cbranch_scc1 {lab}")
        A.label(done)
    def tagcheck(tagregs):
        tr = list(tagregs)
        A(f"v_xor_b32 v{vt0}, {sE}, v{tr[0]}")
        k = 1
        while k < len(tr):
            if k + 1 < len(tr):
                A(f"v_xor_b32 v{vt1}, {sE}, v{tr[k]}"); A(f"v_xor_b32 v{vT}, {sE}, v{tr[k+1]}")
                A(f"v_or3_b32 v{vt0}, v{vt0}, v{vt1}, v{vT}"); k += 2
            else:
                A(f"v_xor_b32 v{vt1}, {sE}, v{tr[k]}"); A(f"v_or_b32 v{vt0}, v{vt0}, v{vt1}"); k += 1
        A(f"v_cmp_ne_u32 vcc, 0, v{vt0}")
        A("s_nop 4")
    def poll2(issue, tags, n, finish):
        lab = A.newlabel("L_pp"); d0 = A.newlabel("L_pp0"); d1 = A.newlabel("L_pp1"); dn = A.newlabel("L_ppd")
        A(f"s_mov_b32 {sTO}, {TMO}")
        issue(0)
        A(f"s_sleep {stag}")
        A.label(lab)
        issue(1)
        A(f"s_waitcnt vmcnt({n})")
        tagcheck(tags(0)); A(f"s_cbranch_vccz {d0}")
        issue(0)
        A(f"s_waitcnt vmcnt({n})")
        tagcheck(tags(1)); A(f"s_cbranch_vccz {d1}")
        A(f"s_sub_u32 {sTO}, {sTO}, 1"); A(f"s_cmp_lg_u32 {sTO}, 0"); A(f"s_cbranch_scc1 {lab}")
        A.label(d1)
        finish(1)
        A(f"s_branch {dn}")
        A.label(d0)
        finish(0)
        A.label(dn)
    def wo_issue(ptr_lo):
        srd(SW, ptr_lo, 0x400000)
        A(f"v_lshlrev_b32 v{vt1}, 14, v{vG}")
        A(f"v_lshl_add_u32 v{vt1}, v{vN}, 4, v{vt1}")
        A(f"s_lshl_b32 {sT0}, {sH}, 17")
        A(f"s_lshr_b32 {sT1}, {sS}, 2"); A(f"s_lshl_b32 {sT1}, {sT1}, 16"); A(f"s_add_u32 {sT0}, {sT0}, {sT1}")
        A(f"s_and_b32 {sT1}, {sS}, 3"); A(f"s_lshl_b32 {sT1}, {sT1}, 8"); A(f"s_add_u32 {sT0}, {sT0}, {sT1}")
        for a in range(4):
            if a: A(f"s_add_u32 {sT0}, {sT0}, 4096")
            for b in range(4):
                t = a * 4 + b
                A(f"buffer_load_dwordx4 {vr(WO+4*t,4)}, v{vt1}, {SW}, {sT0} offen offset:{b*1024} {wflags}")
    sPA0, sPA1, sMLA, sYP, sYG, sOUTO, sRED = "s84", "s85", "s86", "s87", "s88", "s89", "s94"
    vAML, vA8, vAY, vA16, vAO = 12, 13, 14, 15, 16
    def tail_prep():
        srd(SOUT, 52, 2048)
        A(f"v_and_b32 v{vAML}, 7, v{vLANE}"); A(f"v_lshlrev_b32 v{vAML}, 4, v{vAML}")
        A(f"v_lshlrev_b32 v{vA8}, 3, v{vLANE}")
        A(f"v_lshlrev_b32 v{vAY}, 4, v{vN}"); A(f"v_lshl_add_u32 v{vAY}, v{vG}, 14, v{vAY}")
        A(f"v_lshlrev_b32 v{vA16}, 4, v{vLANE}")
        A(f"v_and_b32 v{vAO}, 7, v{vN}"); A(f"v_lshrrev_b32 v{vt2}, 3, v{vN}"); A(f"v_lshl_add_u32 v{vAO}, v{vt2}, 4, v{vAO}"); A(f"v_lshlrev_b32 v{vAO}, 1, v{vAO}")
        A(f"s_lshl_b32 {sMLA}, {sHD}, 7"); A(f"s_add_u32 {sMLA}, {sMLA}, {WS_ML}")
        A(f"s_lshl_b32 {sPA0}, {sHD}, 13"); A(f"s_lshr_b32 {sT1}, {sS}, 2"); A(f"s_lshl_b32 {sT1}, {sT1}, 9")
        A(f"s_add_u32 {sPA0}, {sPA0}, {sT1}"); A(f"s_add_u32 {sPA0}, {sPA0}, {WS_P}"); A(f"s_add_u32 {sPA1}, {sPA0}, 4096")
        A(f"s_lshr_b32 {sT2}, {sHD}, 5")
        A(f"s_lshl_b32 {sYP}, {sT2}, 18"); A(f"s_add_u32 {sYP}, {sYP}, {WS_Y}"); A(f"s_mov_b32 {sYG}, {sYP}")
        A(f"s_and_b32 {sT0}, {sS}, 3"); A(f"s_lshl_b32 {sT0}, {sT0}, 16"); A(f"s_add_u32 {sYP}, {sYP}, {sT0}")
        A(f"s_lshl_b32 {sT0}, {sH}, 1"); A(f"s_lshr_b32 {sT1}, {sS}, 2"); A(f"s_add_u32 {sT0}, {sT0}, {sT1}"); A(f"s_lshl_b32 {sT0}, {sT0}, 8"); A(f"s_add_u32 {sYP}, {sYP}, {sT0}")
        A(f"s_lshr_b32 {sT3}, {sWG}, 4"); A(f"s_lshl_b32 {sT0}, {sT3}, 14"); A(f"s_add_u32 {sYG}, {sYG}, {sT0}")
        A(f"s_lshl_b32 {sOUTO}, {sT3}, 6"); A(f"s_lshl_b32 {sT0}, {sT2}, 10"); A(f"s_add_u32 {sOUTO}, {sOUTO}, {sT0}")
        A(f"s_and_b32 {sT0}, {sT3}, 7"); A(f"s_lshl_b32 {sT1}, {sT2}, 3"); A(f"s_add_u32 {sT0}, {sT0}, {sT1}")
        A(f"s_and_b32 {sT1}, {sWG}, 15"); A(f"s_cmp_eq_u32 {sT0}, {sT1}"); A(f"s_cselect_b32 {sRED}, 1, 0")
    def tail():
        NP = 8
        if pp2:
            ML2 = [100, 160]; PO2 = [104, 164]
            def iss(k):
                A(f"buffer_load_dwordx4 {vr(ML2[k],4)}, v{vAML}, {SWS}, {sMLA} offen sc1")
                for p in range(NP):
                    A(f"buffer_load_dwordx2 {vr(PO2[k]+2*p,2)}, v{vA8}, {SWS}, {sPA0 if p < 4 else sPA1} offen offset:{(p%4)*1024} sc1")
            def fin(k):
                A(f"v_mov_b32 v{vML}, v{ML2[k]}"); A(f"v_mov_b32 v{vML+2}, v{ML2[k]+2}")
                for p in range(NP): A(f"v_mov_b32 v{PO+2*p}, v{PO2[k]+2*p}")
            poll2(iss, lambda k: [ML2[k] + 1, ML2[k] + 3] + [PO2[k] + 2 * p + 1 for p in range(NP)], 9, fin)
            A("s_nop 1")
        else:
            lab = poll_begin()
            A(f"buffer_load_dwordx4 {vr(vML,4)}, v{vAML}, {SWS}, {sMLA} offen sc1")
            for p in range(NP):
                A(f"buffer_load_dwordx2 {vr(PO+2*p,2)}, v{vA8}, {SWS}, {sPA0 if p < 4 else sPA1} offen offset:{(p%4)*1024} sc1")
            poll_end(lab, [vML + 1, vML + 3] + [PO + 2 * p + 1 for p in range(NP)], tsleep)
        if not early: stamp(5)
        A(f"v_max_f32_dpp v{vt0}, v{vML}, v{vML} quad_perm:[1,0,3,2] {DPP}"); A("s_nop 1")
        A(f"v_max_f32_dpp v{vt0}, v{vt0}, v{vt0} quad_perm:[2,3,0,1] {DPP}"); A("s_nop 1")
        A(f"v_max_f32_dpp v{vt0}, v{vt0}, v{vt0} row_half_mirror {DPP}")
        A(f"v_sub_f32 v{vt1}, v{vML}, v{vt0}"); A(f"v_mul_f32 v{vt1}, {sC}, v{vt1}"); A(f"v_exp_f32 v{vt1}, v{vt1}")
        A("s_nop 0")
        A(f"v_mul_f32 v{vt2}, v{vt1}, v{vML+2}"); A("s_nop 0")
        A(f"v_mul_f32_dpp v{vt3}, v{vt1}, v{PO} row_newbcast:0 {DPP}")
        A(f"v_add_f32_dpp v{vt2}, v{vt2}, v{vt2} quad_perm:[1,0,3,2] {DPP}")
        A(f"v_fmac_f32_dpp v{vt3}, v{vt1}, v{PO+2} row_newbcast:1 {DPP}")
        A(f"v_fmac_f32_dpp v{vt3}, v{vt1}, v{PO+4} row_newbcast:2 {DPP}")
        A(f"v_add_f32_dpp v{vt2}, v{vt2}, v{vt2} quad_perm:[2,3,0,1] {DPP}")
        A(f"v_fmac_f32_dpp v{vt3}, v{vt1}, v{PO+6} row_newbcast:3 {DPP}")
        A(f"v_fmac_f32_dpp v{vt3}, v{vt1}, v{PO+8} row_newbcast:4 {DPP}")
        A(f"v_add_f32_dpp v{vt2}, v{vt2}, v{vt2} row_half_mirror {DPP}")
        A(f"v_fmac_f32_dpp v{vt3}, v{vt1}, v{PO+10} row_newbcast:5 {DPP}")
        A(f"v_rcp_f32 v{vt2}, v{vt2}")
        A(f"v_fmac_f32_dpp v{vt3}, v{vt1}, v{PO+12} row_newbcast:6 {DPP}")
        A(f"v_fmac_f32_dpp v{vt3}, v{vt1}, v{PO+14} row_newbcast:7 {DPP}")
        A(f"v_mul_f32 v{vt3}, v{vt3}, v{vt2}")
        A(f"v_cvt_pk_bf16_f32 v{vt3}, v{vt3}, v{vt3}")
        A("s_nop 1")
        BS = [PO + 16, PO + 20, PO + 24, PO + 28]
        def build(t):
            for r in range(4): A(f"v_and_b32_dpp v{BS[t%4]+r}, v{vt3}, v{vM+r} row_newbcast:{t} {DPP}")
        build(0); build(1)
        for t in range(16):
            acc = vS if t % 2 == 0 else vP
            mfma(acc, WO + 4 * t, BS[t % 4], None if t < 2 else acc)
            if t + 2 < 16: build(t + 2)
        A(f"v_mov_b32 v{vB0+1}, {sE}"); A(f"v_mov_b32 v{vB0+3}, {sE}")
        A("s_nop 6")
        for r in range(4): A(f"v_add_f32 v{vS+r}, v{vS+r}, v{vP+r}")
        A(f"v_cndmask_b32 v{vB0}, v{vS}, v{vS+2}, {sHALF}")
        A(f"v_cndmask_b32 v{vB0+2}, v{vS+1}, v{vS+3}, {sHALF}")
        A(f"buffer_store_dwordx4 {vr(vB0,4)}, v{vAY}, {SWS}, {sYP} offen sc1")
        if early:
            A(f"s_cmp_ge_u32 {sHD}, 32"); A("s_cbranch_scc1 L_afterB")
        stamp(6)
        A.label("L_tail2")
        A(f"s_cmp_eq_u32 {sRED}, 0"); A("s_cbranch_scc1 L_tail_end")
        A(f"s_add_u32 {sT0}, {sYG}, 4096"); A(f"s_add_u32 {sT1}, {sYG}, 8192"); A(f"s_add_u32 {sT2}, {sYG}, 12288")
        if pp2:
            Y2 = [64, 192]
            A("s_waitcnt vmcnt(0)")
            def issy(k):
                for u in range(16):
                    A(f"buffer_load_dwordx4 {vr(Y2[k]+4*u,4)}, v{vA16}, {SWS}, {[sYG,sT0,sT1,sT2][u//4]} offen offset:{(u%4)*1024} sc1")
            def finy(k):
                for u in range(8):
                    A(f"v_add_f32 v{PO+4*u}, v{Y2[k]+4*u}, v{Y2[k]+4*(u+8)}"); A(f"v_add_f32 v{PO+4*u+2}, v{Y2[k]+4*u+2}, v{Y2[k]+4*(u+8)+2}")
            poll2(issy, lambda k: [Y2[k] + 4 * u + o for u in range(16) for o in (1, 3)], 16, finy)
        else:
            lab = poll_begin()
            for u in range(16):
                A(f"buffer_load_dwordx4 {vr(PO+4*u,4)}, v{vA16}, {SWS}, {[sYG,sT0,sT1,sT2][u//4]} offen offset:{(u%4)*1024} sc1")
            poll_end(lab, [PO + 4 * u + o for u in range(16) for o in (1, 3)], tsleep)
        for u in range(8):
            if not pp2: A(f"v_add_f32 v{PO+4*u}, v{PO+4*u}, v{PO+4*(u+8)}"); A(f"v_add_f32 v{PO+4*u+2}, v{PO+4*u+2}, v{PO+4*(u+8)+2}")
        for u in range(1, 8):
            A(f"v_add_f32 v{PO}, v{PO}, v{PO+4*u}"); A(f"v_add_f32 v{PO+2}, v{PO+2}, v{PO+4*u+2}")
        A(f"v_mov_b32 v{vt0}, v{PO}"); A(f"v_mov_b32 v{vt1}, v{PO+2}"); A("s_nop 0")
        A(f"v_permlane16_swap_b32 v{PO}, v{vt0}"); A(f"v_permlane16_swap_b32 v{PO+2}, v{vt1}")
        A(f"v_add_f32 v{PO}, v{PO}, v{vt0}"); A(f"v_add_f32 v{PO+2}, v{PO+2}, v{vt1}")
        A(f"v_mov_b32 v{vt0}, v{PO}"); A(f"v_mov_b32 v{vt1}, v{PO+2}"); A("s_nop 0")
        A(f"v_permlane32_swap_b32 v{PO}, v{vt0}"); A(f"v_permlane32_swap_b32 v{PO+2}, v{vt1}")
        A(f"v_add_f32 v{PO}, v{PO}, v{vt0}"); A(f"v_add_f32 v{PO+2}, v{PO+2}, v{vt1}")
        A(f"v_cvt_pk_bf16_f32 v{vt0}, v{PO}, v{PO+2}")
        if fixed:
            A.label("L_fix")
            A("s_memrealtime s[90:91]"); A("s_waitcnt lgkmcnt(0)")
            A(f"s_sub_u32 s90, s90, {sE}")
            if diag: A("s_sub_u32 s90, s90, s101")
            A(f"s_cmp_lt_i32 s90, {fixed}"); A("s_cbranch_scc1 L_fix")
        A("s_mov_b64 exec, 0xffff")
        A(f"buffer_store_short v{vt0}, v{vAO}, {SOUT}, {sOUTO} offen")
        A(f"buffer_store_short_d16_hi v{vt0}, v{vAO}, {SOUT}, {sOUTO} offen offset:16")
        A("s_mov_b64 exec, -1")
        A.label("L_tail_end")
        stamp(7)
        A("s_endpgm")

    NBLK = 8 // NSW
    def qprod_issue():
        A(f"s_cmp_lt_u32 {sS}, 2")
        A("s_cselect_b32 s12, s38, s48"); A("s_cselect_b32 s13, s39, s49"); A("s_mov_b32 s14, 0x400000"); A("s_mov_b32 s15, 0x00020000")
        A("s_cselect_b32 s20, s32, s42"); A("s_cselect_b32 s21, s33, s43"); A("s_mov_b32 s22, 1024"); A("s_mov_b32 s23, 0x00020000")
        A(f"v_lshrrev_b32 v{vT}, 3, v{vN}"); A(f"v_lshl_add_u32 v{vT}, v{vG}, 1, v{vT}")
        A(f"v_lshlrev_b32 v{vT+1}, 4, v{vT}")
        A(f"v_lshlrev_b32 v{vT}, 16, v{vT}")
        A(f"v_and_b32 v{vT+2}, 7, v{vN}"); A(f"v_lshl_add_u32 v{vT}, v{vT+2}, 4, v{vT}")
        A(f"s_mul_i32 {sT1}, {sWAVE}, {128*NBLK}")
        for bk in range(NBLK):
            A(f"buffer_load_dwordx4 {vr(vX+4*bk,4)}, v{vT+1}, {SX}, {sT1} offen offset:{128*bk}")
        A(f"s_mul_i32 {sT0}, {sWAVE}, {NBLK << 19}"); A(f"s_lshl_b32 {sT1}, {sH}, 8"); A(f"s_add_u32 {sT0}, {sT0}, {sT1}")
        A(f"s_and_b32 {sT1}, {sS}, 1"); A(f"s_lshl_b32 {sT1}, {sT1}, 7"); A(f"s_add_u32 {sT0}, {sT0}, {sT1}")
        for bk in range(NBLK):
            for t in range(8):
                A(f"buffer_load_dwordx4 {vr(WQ+32*bk+4*t,4)}, v{vT}, {SW}, {sT0} offen {wflags}")
                if t < 7: A(f"s_add_u32 {sT0}, {sT0}, 8192")
            if bk < NBLK - 1: A(f"s_add_u32 {sT0}, {sT0}, {(64-7)*8192}")
    def qprod_compute():
        for bk in range(NBLK):
            for t in range(8):
                B = vB0 if t % 2 == 0 else vB1
                sel = sSELLO if t % 2 == 0 else sSELHI
                A(f"v_perm_b32 v{vt0}, v{vX+4*bk+t//2}, v{vX+4*bk+t//2}, {sel}")
                for r in range(4): A(f"v_and_b32 v{B+r}, v{vt0}, v{vM+r}")
                A("s_nop 1")
                mfma(vS, WQ + 32 * bk + 4 * t, B, None if (t == 0 and bk == 0) else vS)
        A(f"v_and_b32 v{vt1}, 7, v{vN}"); A(f"v_lshl_add_u32 v{vt1}, v{vG}, 5, v{vt1}"); A(f"v_lshlrev_b32 v{vt1}, 2, v{vt1}")
        A(f"s_lshl_b32 {sT0}, {sWAVE}, 9"); A(f"v_add_u32 v{vt1}, {sT0}, v{vt1}")
        A("s_mov_b32 exec_lo, 0x00ff00ff"); A("s_mov_b32 exec_hi, 0xff00ff00")
        A("s_nop 3")
        for r in range(4): A(f"ds_write_b32 v{vt1}, v{vS+r} offset:{L_QPART + r*32}")
        A("s_mov_b64 exec, -1")
        A("s_waitcnt lgkmcnt(0)")
        A("s_barrier")
    def masks():
        A(f"v_and_b32 v{vt0}, 1, v{vN}")
        A(f"v_mov_b32 v{vt1}, 0xffff")
        A(f"v_lshlrev_b32 v{vt0}, 4, v{vt0}")
        A(f"v_lshlrev_b32 v{vt1}, v{vt0}, v{vt1}")
        A(f"v_bfe_u32 v{vt0}, v{vN}, 1, 2")
        for r in range(4):
            A(f"v_cmp_eq_u32 vcc, {r}, v{vt0}"); A("s_nop 1")
            A(f"v_cndmask_b32 v{vM+r}, 0, v{vt1}, vcc")
        A(f"v_cmp_lt_u32 {sHALF}, 7, v{vN}")
        A(f"s_mov_b32 {sC}, {hex(f2u(CSCALE))}")
        A(f"s_mov_b32 {sSELLO}, 0x01000100"); A(f"s_mov_b32 {sSELHI}, 0x03020302")

    if ts: A("s_memrealtime s[86:87]")
    A(f"s_cmp_ge_u32 {sWG}, 256"); A("s_cbranch_scc1 L_end")
    A("s_load_dwordx16 s[32:47], s[0:1], 0")
    A("s_load_dwordx8 s[48:55], s[0:1], 64")
    A("s_load_dwordx2 s[56:57], s[0:1], 96")
    A(f"v_lshrrev_b32 v1, 6, v0"); A("v_and_b32 v0, 63, v0"); A("s_nop 0")
    A(f"v_readfirstlane_b32 {sWAVE}, v1")
    A(f"v_and_b32 v{vN}, 15, v0"); A(f"v_lshrrev_b32 v{vG}, 4, v0")
    A(f"v_lshlrev_b32 v{vKO}, 8, v{vN}"); A(f"v_lshl_add_u32 v{vKO}, v{vG}, 4, v{vKO}")
    A(f"v_lshlrev_b32 v{vVO}, 10, v{vG}"); A(f"v_lshl_add_u32 v{vVO}, v{vN}, 4, v{vVO}")
    A(f"s_lshr_b32 {sH}, {sWG}, 3")
    if hmap == 1: A(f"s_and_b32 {sS}, {sWG}, 7")
    else: A(f"s_add_u32 {sS}, {sWG}, {sH}"); A(f"s_and_b32 {sS}, {sS}, 7")
    A(f"s_lshl_b32 {sBASE}, {sH}, 23")
    a_, b_, c_ = STR
    A(f"s_mul_i32 {sSB}, {sS}, {a_}"); A(f"s_mov_b32 {sSTC}, {a_}")
    A(f"s_mul_i32 {sT0}, {sS}, {b_}"); A(f"s_add_u32 {sT0}, {sT0}, {4*a_ - 4*b_ & 0xffffffff}")
    A(f"s_cmp_ge_u32 {sS}, 4"); A(f"s_cselect_b32 {sSB}, {sT0}, {sSB}"); A(f"s_cselect_b32 {sSTC}, {b_}, {sSTC}")
    A(f"s_mul_i32 {sT0}, {sS}, {c_}"); A(f"s_add_u32 {sT0}, {sT0}, {(4*a_ + 2*b_ - 6*c_) & 0xffffffff}")
    A(f"s_cmp_ge_u32 {sS}, 6"); A(f"s_cselect_b32 {sSB}, {sT0}, {sSB}"); A(f"s_cselect_b32 {sSTC}, {c_}, {sSTC}")
    if ilv: A(f"s_lshl_b32 {sSB}, {sS}, 2")
    A(f"s_add_u32 {sT0}, {sSB}, {sWAVE}"); A(f"s_lshl_b32 {sKOFF}, {sT0}, 12"); A(f"s_add_u32 {sKOFF}, {sKOFF}, {sBASE}")
    A("s_waitcnt lgkmcnt(0)")
    srd(SWS, 56, WS_SIZE)
    stamp(0)
    if ts:
        A(f"s_add_u32 s92, s92, {13*4}"); A(f"v_mov_b32 v{sreg[0]}, s86")
        A(f"buffer_store_dword v{sreg[0]}, v{sreg[1]}, {SWS}, s92 offen")
    A(f"s_cmp_eq_u32 {sWAVE}, {NSW}"); A("s_cbranch_scc1 L_service")

    srd(SK, 34, 0x10000000); srd(SV, 36, 0x10000000)
    vNEXT, vCA, vONE = vT + 2, vT + 1, vT
    vNX = [56 + k for k in range(D)]
    def issue_tile(s):
        issue_k(s, sKOFF); issue_v(s, sKOFF); A(f"s_add_u32 {sKOFF}, {sKOFF}, {NSW*4096*(8 if ilv else 1)}")
    A(f"s_cmp_lt_u32 {sS}, 4"); A("s_cbranch_scc1 L_s_prod")
    if bstream and not noB:
        A(f"s_cmp_ge_u32 {sS}, 6"); A("s_cbranch_scc1 L_s_bwg")
    for s in range(D + XS):
        issue_tile(s)
        if s == 0: stamp(14)
    masks()
    A.label("L_s_join")
    A(f"v_mov_b32 v{vm}, 0xff800000"); A(f"v_mov_b32 v{vl}, 0")
    for r in range(4): A(f"v_mov_b32 v{vO+r}, 0")
    for s in range(D):
        A(f"s_mov_b32 s{sVAL+s}, 1")
    A(f"s_mov_b32 {sSTOP}, 0")
    sDB, sDN = "s82", "s83"
    A(f"s_mov_b32 {sDB}, -1"); A(f"s_mov_b32 {sDN}, 0")
    A(f"s_mov_b32 {sNREC}, 0x10000000")
    A(f"v_lshlrev_b32 v{vt3}, 4, v{vG}")
    A(f"v_mov_b32 v{vCA}, 0"); A(f"v_mov_b32 v{vONE}, 1")
    A("s_barrier")
    A.label("L_s_join2")
    for i in range(4): A(f"ds_read_b128 {vr(vQ+4*i,4)}, v{vt3} offset:{L_QA + i*64}")
    def grab():
        A("s_mov_b64 exec, 1")
        A(f"ds_add_rtn_u32 v{vNEXT}, v{vCA}, v{vONE} offset:{L_CNT}")
        A("s_mov_b64 exec, -1")
    grab()
    sWOF = "s101"
    if latewo & 2:
        A(f"s_cmp_lg_u32 {sWAVE}, 0"); A(f"s_cselect_b32 {sWOF}, 0, 1")
    if not noB and not early and not (latewo & 2):
        A(f"s_cmp_lg_u32 {sWAVE}, 0"); A("s_cbranch_scc1 L_s_nowo")
        wo_issue(50)
        A.label("L_s_nowo")
    A("s_waitcnt lgkmcnt(0)")
    stamp(1)
    NW = 8 * D - 4
    def step(s, nwk, nwv, refill=True, check=True):
        if check and not drain: A(f"s_cmp_eq_u32 s{sVAL+s}, 0"); A("s_cbranch_scc1 L_sdone")
        A(f"s_waitcnt vmcnt({nwk})")
        for i in range(4): mfma(vS, kreg(s, i), vQ + 4 * i, None if i == 0 else vS)
        if not refill:
            A("s_nop 7")
            softmax_update(vS, vP, vm, vl, vO, vt0, vt1, vt2)
            A(f"s_waitcnt vmcnt({nwv})")
            pv(vO, vP, lambda t: vreg(s, t))
            return
        A("s_waitcnt lgkmcnt(0)")
        A(f"v_readfirstlane_b32 {sT1}, v{vNEXT}")
        grab()
        ldyn = A.newlabel("L_dyn"); ldec = A.newlabel("L_dec"); lhave = A.newlabel("L_have"); lsp = A.newlabel("L_sp")
        if ts:
            lab = A.newlabel("L_nots")
            A(f"s_and_b32 s92, {sT1}, 15"); A("s_cmp_lg_u32 s92, 0"); A(f"s_cbranch_scc1 {lab}")
            A("s_memrealtime s[90:91]")
            A(f"s_lshl_b32 s92, s2, 7"); A(f"s_lshr_b32 s94, {sT1}, 2"); A("s_add_u32 s92, s92, s94"); A(f"s_add_u32 s92, s92, {WS_TS + 0x100000}")
            A("s_waitcnt lgkmcnt(0)")
            A(f"v_mov_b32 v{vt3}, s90")
            A(f"buffer_store_dword v{vt3}, v{vCA}, {SWS}, s92 offen")
            A.label(lab)
        if ilv:
            A(f"s_lshr_b32 {sT2}, {sT1}, 2"); A(f"s_lshl_b32 {sT2}, {sT2}, 5"); A(f"s_and_b32 {sT3}, {sT1}, 3"); A(f"s_add_u32 {sT2}, {sT2}, {sT3}"); A(f"s_add_u32 {sT2}, {sT2}, {sSB}")
        else:
            A(f"s_add_u32 {sT2}, {sT1}, {sSB}")
        A(f"s_cmp_lt_u32 {sT1}, {sSTC}"); A(f"s_cbranch_scc1 {ldec}")
        A(f"s_cmp_lg_u32 {sDB}, -1"); A(f"s_cbranch_scc1 {lhave}")
        A(f"s_mov_b32 {sTO}, {TMO*16}")
        A.label(lsp)
        A(f"ds_read_b64 {vr(vt2,2)}, v{vCA} offset:{L_DYN}")
        A("s_waitcnt lgkmcnt(0)")
        A(f"v_readfirstlane_b32 {sDB}, v{vt2}"); A(f"v_readfirstlane_b32 {sDN}, v{vt3}")
        A("s_nop 3")
        A(f"s_cmp_lg_u32 {sDB}, -1"); A(f"s_cbranch_scc1 {lhave}")
        A("s_sleep 2")
        A(f"s_sub_u32 {sTO}, {sTO}, 1"); A(f"s_cmp_lg_u32 {sTO}, 0"); A(f"s_cbranch_scc1 {lsp}")
        A(f"s_mov_b32 {sDB}, 0"); A(f"s_mov_b32 {sDN}, 0")
        A.label(lhave)
        A(f"s_sub_u32 {sT0}, {sT1}, {sSTC}")
        A(f"s_add_u32 {sT2}, {sT0}, {sDB}"); A(f"s_and_b32 {sT2}, {sT2}, 2047")
        if drain:
            A(f"s_add_u32 {sT3}, {sT0}, {WOK}"); A(f"s_cmp_lt_u32 {sT3}, {sDN}"); A(f"s_cselect_b32 {sSTOP}, {sSTOP}, 1")
            A(f"s_cmp_lt_u32 {sT0}, {sDN}"); A(f"s_cbranch_scc0 L_drain{s}")
            A.label(ldec)
        else:
            A(f"s_cmp_lt_u32 {sT0}, {sDN}")
            A(f"s_cselect_b32 {sSTOP}, {sSTOP}, 1")
            A.label(ldec)
            A(f"s_cselect_b32 s{sVAL+s}, 1, 0"); A(f"s_cselect_b32 s6, {sNREC}, 0"); A(f"s_cselect_b32 s10, {sNREC}, 0")
        A(f"s_lshl_b32 {sKOFF}, {sT2}, 12"); A(f"s_add_u32 {sKOFF}, {sKOFF}, {sBASE}")
        issue_k(s, sKOFF)
        softmax_update(vS, vP, vm, vl, vO, vt0, vt1, vt2)
        A(f"s_waitcnt vmcnt({nwv})")
        pv(vO, vP, lambda t: vreg(s, t))
        issue_v(s, sKOFF)
    if XS:
        NX = 8 * (D + XS) - 4
        for s in range(D): step(s, NX, NX, True, False)
        out = 8 * (D + XS)
        for s in range(D, D + XS):
            step(s, out - 4, out - 8, False, False); out -= 8
    A.label("L_loop")
    if latewo & 2:
        A(f"s_and_b32 {sT0}, {sWOF}, {sSTOP}"); A("s_cbranch_scc0 L_s_nowo2")
        wo_issue(50)
        A(f"s_mov_b32 {sWOF}, 0")
        A.label("L_s_nowo2")
    for s in range(D): step(s, NW, NW)
    A("s_branch L_loop")
    if drain:
        assert XS == 0
        for s0 in range(D):
            A.label(f"L_drain{s0}")
            stamp(15)
            softmax_update(vS, vP, vm, vl, vO, vt0, vt1, vt2)
            A(f"s_waitcnt vmcnt({8*(D-1)})")
            pv(vO, vP, lambda t: vreg(s0, t))
            for j in range(1, D):
                step((s0 + j) % D, 8 * (D - j) - 4, 8 * (D - j - 1), False, False)
            if s0 < D - 1: A("s_branch L_sdone")
        A("s_nop 3")
    A.label("L_sdone")
    xgroup_reduce("v_add_f32", vl, vt0)
    A(f"v_and_b32 v{vt1}, 7, v{vN}"); A(f"v_lshl_add_u32 v{vt1}, v{vG}, 5, v{vt1}"); A(f"v_lshlrev_b32 v{vt1}, 2, v{vt1}")
    A(f"s_lshl_b32 {sT0}, {sWAVE}, 9"); A(f"v_add_u32 v{vt1}, {sT0}, v{vt1}")
    A(f"s_lshl_b32 {sT0}, {sWAVE}, 3"); A(f"v_mov_b32 v{vt2}, {sT0}")
    for r in range(4): A(f"ds_write_b32 v{vt1}, v{vO+r} offset:{L_OPART + r*32}")
    A(f"ds_write_b64 v{vt2}, {vr(vm,2)} offset:{L_ML}")
    A("s_waitcnt lgkmcnt(0)")
    stamp(2)
    A("s_barrier")
    if noB:
        A("s_endpgm")
    else:
        A(f"s_cmp_eq_u32 {sWAVE}, 0"); A("s_cbranch_scc1 L_btail")
        A("s_endpgm")
        A.label("L_btail")
        sreg[0], sreg[1] = 20, 21
        A("s_setprio 3")
        if latewo & 2:
            A(f"s_cmp_eq_u32 {sWOF}, 0"); A("s_cbranch_scc1 L_s_nowo3")
            wo_issue(50)
            A.label("L_s_nowo3")
        A(f"v_mov_b32 v{vt1}, 0")
        A(f"ds_read_b32 v{vt0}, v{vt1} offset:{L_EP}")
        A(f"s_add_u32 {sHD}, {sH}, 32")
        tail_prep()
        A("s_waitcnt lgkmcnt(0)")
        A(f"v_readfirstlane_b32 {sE}, v{vt0}")
        A("s_branch L_tail2" if early else "s_branch L_tail")
    sreg[0], sreg[1] = 54, 55
    A.label("L_s_prod")
    A("s_setprio 2")
    qprod_issue()
    masks()
    A("s_waitcnt vmcnt(0)")
    stamp(12)
    qprod_compute()
    A("s_setprio 0")
    for s in range(D + XS): issue_tile(s)
    A("s_branch L_s_join")

    if bstream and not noB:
        assert D == 4 and XS == 0
        A.label("L_s_bwg")
        sAK = "s84"
        A(f"s_mov_b32 {sAK}, {sKOFF}")
        srd(SK, 44, 0x4000000); srd(SV, 46, 0x4000000)
        A(f"s_lshl_b32 {sT0}, {sH}, 1"); A(f"s_add_u32 {sT0}, {sT0}, {sS}"); A(f"s_sub_u32 {sT0}, {sT0}, 6")
        A(f"s_lshr_b32 {sT1}, {sT0}, 3"); A(f"s_and_b32 {sBU}, {sT0}, 7")
        A(f"s_lshl_b32 {sBB}, {sT1}, 23"); A(f"s_add_u32 {sBB}, {sBB}, {28672*256}"); A(f"s_lshl_b32 {sT2}, {sBU}, 12"); A(f"s_add_u32 {sBB}, {sBB}, {sT2}")
        A(f"s_mul_i32 {sBJ}, {sT0}, {brot}"); A(f"s_add_u32 {sBJ}, {sBJ}, {sWAVE}")
        def boff4():
            A(f"s_and_b32 {sKOFF}, {sBJ}, 31"); A(f"s_lshl_b32 {sKOFF}, {sKOFF}, 15"); A(f"s_add_u32 {sKOFF}, {sKOFF}, {sBB}"); A(f"s_add_u32 {sBJ}, {sBJ}, 4")
        for sl in range(4):
            boff4(); issue_k(sl, sKOFF); issue_v(sl, sKOFF)
        masks()
        QBp = [vQ, 192]
        stO = [vO, 208]; stS = [vS, 212]; stP = [vP, 216]; stm = [vm, 220]; stl = [vl, 221]
        for pp in range(2):
            A(f"v_mov_b32 v{stm[pp]}, 0xff800000"); A(f"v_mov_b32 v{stl[pp]}, 0")
            for r in range(4): A(f"v_mov_b32 v{stO[pp]+r}, 0")
        A(f"v_lshrrev_b32 v{vt3}, 3, v{vN}"); A(f"v_lshlrev_b32 v{vt3}, 8, v{vt3}"); A(f"v_lshl_add_u32 v{vt3}, v{vG}, 4, v{vt3}")
        A("s_barrier")
        for pp in range(2):
            for i in range(4): A(f"ds_read_b128 {vr(QBp[pp]+4*i,4)}, v{vt3} offset:{L_QB + pp*512 + i*64}")
        A("s_waitcnt lgkmcnt(0)")
        for i in range(8):
            sl = i % 4
            A("s_waitcnt vmcnt(28)")
            for pp in range(2):
                for q in range(4): mfma(stS[pp], kreg(sl, q), QBp[pp] + 4 * q, None if q == 0 else stS[pp])
            if i < 4: boff4()
            elif i == 4:
                srd(SK, 34, 0x10000000); srd(SV, 36, 0x10000000); A(f"s_mov_b32 {sKOFF}, {sAK}")
            else: A(f"s_add_u32 {sKOFF}, {sKOFF}, {NSW*4096}")
            issue_k(sl, sKOFF)
            for pp in range(2): softmax_update(stS[pp], stP[pp], stm[pp], stl[pp], stO[pp], vt0, vt1, vt2)
            A("s_waitcnt vmcnt(28)")
            for pp in range(2): pv(stO[pp], stP[pp], lambda t: vreg(sl, t))
            issue_v(sl, sKOFF)
        A(f"v_and_b32 v{vt1}, 7, v{vN}"); A(f"v_lshl_add_u32 v{vt1}, v{vG}, 5, v{vt1}"); A(f"v_lshrrev_b32 v{vt2}, 3, v{vN}"); A(f"v_lshl_add_u32 v{vt1}, v{vt2}, 7, v{vt1}")
        A(f"v_lshlrev_b32 v{vt1}, 2, v{vt1}"); A(f"s_lshl_b32 {sT0}, {sWAVE}, 11"); A(f"v_add_u32 v{vt1}, {sT0}, v{vt1}")
        A(f"v_lshlrev_b32 v{vt2}, 3, v{vt2}"); A(f"s_lshl_b32 {sT0}, {sWAVE}, 5"); A(f"v_add_u32 v{vt2}, {sT0}, v{vt2}")
        for pp in range(2):
            xgroup_reduce("v_add_f32", stl[pp], vt0)
            for r in range(4): A(f"ds_write_b32 v{vt1}, v{stO[pp]+r} offset:{L_OBW + pp*1024 + r*32}")
            A(f"ds_write_b64 v{vt2}, {vr(stm[pp],2)} offset:{L_MLB + pp*16}")
        A(f"v_mov_b32 v{vCA}, 0"); A(f"v_mov_b32 v{vONE}, 1")
        A("s_waitcnt lgkmcnt(0)")
        A("s_mov_b64 exec, 1")
        A(f"ds_add_u32 v{vCA}, v{vONE} offset:{L_BD}")
        A("s_mov_b64 exec, -1")
        A(f"v_mov_b32 v{vm}, 0xff800000"); A(f"v_mov_b32 v{vl}, 0")
        for r in range(4): A(f"v_mov_b32 v{vO+r}, 0")
        A(f"s_mov_b32 {sSTOP}, 0"); A(f"s_mov_b32 {sDB}, -1"); A(f"s_mov_b32 {sDN}, 0")
        A(f"v_lshlrev_b32 v{vt3}, 4, v{vG}")
        A("s_branch L_s_join2")

    A.label("L_service")
    cur[0] = bflags
    sreg[0], sreg[1] = 254, 255
    A("s_setprio 3")
    srd(SDBG, 54, 256)
    A(f"v_mov_b32 v{vt1}, 0")
    A(f"s_cmp_lg_u32 {sWG}, 0"); A("s_cbranch_scc1 L_v_noep0")
    A("s_memrealtime s[90:91]")
    A("s_waitcnt lgkmcnt(0)")
    A(f"s_max_u32 {sE}, s90, 1")
    A(f"v_mov_b32 v{vt0}, {sE}")
    A("s_mov_b64 exec, 1")
    A(f"buffer_store_dword v{vt0}, v{vt1}, {SDBG}, 0 offen sc1")
    A("s_mov_b64 exec, -1")
    A.label("L_v_noep0")
    masks()
    A(f"v_mov_b32 v{vt0}, {(D+XS)*NSW}"); A(f"v_mov_b32 v{vt1}, 0"); A(f"v_mov_b32 v{vt2}, -1")
    A(f"ds_write_b32 v{vt1}, v{vt0} offset:{L_CNT}")
    A(f"ds_write_b32 v{vt1}, v{vt2} offset:{L_DYN}")
    A(f"ds_write_b32 v{vt1}, v{vt1} offset:{L_BD}")
    A(f"s_mov_b32 {sTO}, {TMO}")
    A.label("L_ep_loop")
    A(f"buffer_load_dword v{vt0}, v{vt1}, {SDBG}, 0 offen sc1")
    A("s_waitcnt vmcnt(0)")
    A(f"v_readfirstlane_b32 {sE}, v{vt0}")
    A("s_nop 3")
    A(f"s_cmp_lg_u32 {sE}, 0"); A("s_cbranch_scc1 L_ep_done")
    A(f"s_sleep {sleep}")
    A(f"s_sub_u32 {sTO}, {sTO}, 1"); A(f"s_cmp_lg_u32 {sTO}, 0"); A("s_cbranch_scc1 L_ep_loop")
    A.label("L_ep_done")
    stamp(11)
    vLO8 = vt5
    A(f"v_lshlrev_b32 v{vLO8}, 3, v{vLANE}")
    A(f"s_cmp_ge_u32 {sS}, 4"); A("s_cbranch_scc1 L_v_noprod3")
    A(f"v_and_b32 v{vt1}, 31, v{vLANE}"); A(f"v_lshlrev_b32 v{vt1}, 3, v{vt1}")
    A(f"s_lshr_b32 {sT0}, {sS}, 1"); A(f"s_lshl_b32 {sT0}, {sT0}, 5"); A(f"s_add_u32 {sT0}, {sT0}, {sH}"); A(f"s_lshl_b32 {sT0}, {sT0}, 9")
    A(f"s_and_b32 {sT1}, {sS}, 1"); A(f"s_lshl_b32 {sT1}, {sT1}, 8"); A(f"s_add_u32 {sT0}, {sT0}, {sT1}"); A(f"s_add_u32 {sT0}, {sT0}, {WS_QF}")
    A("s_barrier")
    for k in range(2*NSW): A(f"ds_read_b64 {vr(WQ+2*k,2)}, v{vt1} offset:{L_QPART + k*256}")
    A("s_waitcnt lgkmcnt(0)")
    for k in range(1, 2*NSW):
        A(f"v_add_f32 v{WQ}, v{WQ}, v{WQ+2*k}"); A(f"v_add_f32 v{WQ+1}, v{WQ+1}, v{WQ+2*k+1}")
    A(f"v_cvt_pk_bf16_f32 v{vB0}, v{WQ}, v{WQ+1}"); A(f"v_mov_b32 v{vB0+1}, {sE}")
    A("s_mov_b32 exec_hi, 0")
    A(f"buffer_store_dwordx2 {vr(vB0,2)}, v{vt1}, {SWS}, {sT0} offen sc1")
    A("s_mov_b64 exec, -1")
    stamp(3)
    A.label("L_v_noprod3")
    A(f"s_lshl_b32 {sT0}, {sH}, 9"); A(f"s_add_u32 {sT0}, {sT0}, {WS_QF}")
    lab = poll_begin()
    A(f"buffer_load_dwordx2 {vr(vQ,2)}, v{vLO8}, {SWS}, {sT0} offen sc1")
    poll_end(lab, [vQ + 1], sleep)
    A(f"v_lshlrev_b32 v{vt2}, 2, v{vLANE}")
    A(f"ds_write_b32 v{vt2}, v{vQ} offset:{L_QA}")
    A(f"v_mov_b32 v{vt0}, {sE}"); A(f"v_mov_b32 v{vt1}, 0")
    A(f"ds_write_b32 v{vt1}, v{vt0} offset:{L_EP}")
    if bstream and not noB:
        A(f"s_cmp_lt_u32 {sS}, 6"); A("s_cbranch_scc1 L_v_noqb")
        A(f"s_lshr_b32 {sT0}, {sH}, 2"); A(f"s_lshl_b32 {sT0}, {sT0}, 11"); A(f"s_add_u32 {sT0}, {sT0}, {WS_QF + 32*512}")
        lab = poll_begin()
        for hh in range(4):
            A(f"buffer_load_dwordx2 {vr(vQ+2*hh,2)}, v{vLO8}, {SWS}, {sT0} offen offset:{hh*512} sc1")
        poll_end(lab, [vQ + 2 * hh + 1 for hh in range(4)], sleep)
        for hh in range(4): A(f"ds_write_b32 v{vt2}, v{vQ+2*hh} offset:{L_QB + hh*256}")
        A.label("L_v_noqb")
    A("s_waitcnt lgkmcnt(0)")
    A("s_barrier")
    if noB:
        A("s_barrier"); A("s_endpgm")
    PBR = 64
    A(f"s_cmp_lt_u32 {sS}, 6"); A("s_cbranch_scc1 L_v_noB")
    if bstream:
        A(f"s_lshl_b32 {sT0}, {sH}, 1"); A(f"s_add_u32 {sT0}, {sT0}, {sS}"); A(f"s_sub_u32 {sT0}, {sT0}, 6"); A(f"s_and_b32 {sBU}, {sT0}, 7")
        A(f"v_mov_b32 v{vt1}, 0"); A(f"s_mov_b32 {sTO}, {TMO}")
        A.label("L_v_bd")
        A(f"ds_read_b32 v{vt0}, v{vt1} offset:{L_BD}")
        A("s_waitcnt lgkmcnt(0)")
        A(f"v_readfirstlane_b32 {sT0}, v{vt0}")
        A("s_nop 3")
        A(f"s_cmp_ge_u32 {sT0}, {NSW}"); A("s_cbranch_scc1 L_v_bdok")
        A("s_sleep 16")
        A(f"s_sub_u32 {sTO}, {sTO}, 1"); A(f"s_cmp_lg_u32 {sTO}, 0"); A("s_cbranch_scc1 L_v_bd")
        A.label("L_v_bdok")
        stamp(10)
        for hh in range(4):
            MW = 128; OW = 144
            for w in range(4):
                A(f"ds_read_b64 {vr(MW+2*w,2)}, v{vt1} offset:{L_MLB + w*32 + hh*8}")
                A(f"ds_read_b64 {vr(OW+2*w,2)}, v{vLO8} offset:{L_OBW + w*2048 + hh*512}")
            A("s_waitcnt lgkmcnt(0)")
            A(f"v_max_f32 v{vt0}, v{MW}, v{MW+2}"); A(f"v_max3_f32 v{vt0}, v{MW+4}, v{MW+6}, v{vt0}")
            for w in range(4): A(f"v_sub_f32 v{MW+2*w}, v{MW+2*w}, v{vt0}")
            for w in range(4): A(f"v_mul_f32 v{MW+2*w}, {sC}, v{MW+2*w}")
            for w in range(4): A(f"v_exp_f32 v{MW+2*w}, v{MW+2*w}")
            A("s_nop 0")
            R = PBR + hh * 4
            A(f"v_mul_f32 v{R}, v{OW}, v{MW}"); A(f"v_mul_f32 v{R+2}, v{OW+1}, v{MW}"); A(f"v_mul_f32 v{vt2}, v{MW+1}, v{MW}")
            for w in range(1, 4):
                A(f"v_fma_f32 v{R}, v{OW+2*w}, v{MW+2*w}, v{R}"); A(f"v_fma_f32 v{R+2}, v{OW+2*w+1}, v{MW+2*w}, v{R+2}"); A(f"v_fma_f32 v{vt2}, v{MW+2*w+1}, v{MW+2*w}, v{vt2}")
            A(f"v_mov_b32 v{R+1}, {sE}"); A(f"v_mov_b32 v{R+3}, {sE}")
            RM = PBR + 16 + (hh // 2) * 4
            if hh % 2 == 0:
                A(f"v_mov_b32 v{RM}, v{vt0}"); A(f"v_mov_b32 v{RM+2}, v{vt2}"); A(f"v_mov_b32 v{RM+1}, {sE}"); A(f"v_mov_b32 v{RM+3}, {sE}")
            else:
                A(f"v_cndmask_b32 v{RM}, v{RM}, v{vt0}, {sHALF}"); A(f"v_cndmask_b32 v{RM+2}, v{RM+2}, v{vt2}, {sHALF}")
    else:
        srd(SK, 44, 0x4000000); srd(SV, 46, 0x4000000)
        A(f"s_lshl_b32 {sT0}, {sH}, 1"); A(f"s_add_u32 {sT0}, {sT0}, {sS}"); A(f"s_sub_u32 {sT0}, {sT0}, 6")
        A(f"s_lshr_b32 {sT1}, {sT0}, 3"); A(f"s_and_b32 {sBU}, {sT0}, 7")
        A(f"s_lshl_b32 {sBB}, {sT1}, 23"); A(f"s_add_u32 {sBB}, {sBB}, {28672*256}"); A(f"s_lshl_b32 {sT2}, {sBU}, 12"); A(f"s_add_u32 {sBB}, {sBB}, {sT2}")
        A(f"s_mul_i32 {sBJ}, {sT0}, {brot}")
        A(f"s_mov_b32 {sBN}, 28")
        A(f"s_mov_b32 {sNREC}, 0x4000000")
        def boff():
            A(f"s_and_b32 {sKOFF}, {sBJ}, 31"); A(f"s_lshl_b32 {sKOFF}, {sKOFF}, 15"); A(f"s_add_u32 {sKOFF}, {sKOFF}, {sBB}"); A(f"s_add_u32 {sBJ}, {sBJ}, 1")
        for s in range(4):
            boff(); issue_k(s, sKOFF); issue_v(s, sKOFF)
        A(f"s_lshl_b32 {sT0}, {sT1}, 11"); A(f"s_add_u32 {sT0}, {sT0}, {WS_QF + 32*512}")
        lab = poll_begin()
        for hh in range(4):
            A(f"buffer_load_dwordx2 {vr(vQ+2*hh,2)}, v{vLO8}, {SWS}, {sT0} offen offset:{hh*512} sc1")
        poll_end(lab, [vQ + 2 * hh + 1 for hh in range(4)], 16)
        for hh in range(4): A(f"ds_write_b32 v{vt2}, v{vQ+2*hh} offset:{L_QB + hh*256}")
        A("s_waitcnt lgkmcnt(0)")
        QBp = [vQ, WQ]
        stO = [vO, 232]; stS = [vS, 236]; stP = [vP, 240]; stm = [vm, 244]; stl = [vl, 245]
        A(f"v_lshrrev_b32 v{vt3}, 3, v{vN}"); A(f"v_lshlrev_b32 v{vt3}, 8, v{vt3}"); A(f"v_lshl_add_u32 v{vt3}, v{vG}, 4, v{vt3}")
        for pp in range(2):
            for i in range(4): A(f"ds_read_b128 {vr(QBp[pp]+4*i,4)}, v{vt3} offset:{L_QB + pp*512 + i*64}")
            A(f"v_mov_b32 v{stm[pp]}, 0xff800000"); A(f"v_mov_b32 v{stl[pp]}, 0")
            for r in range(4): A(f"v_mov_b32 v{stO[pp]+r}, 0")
        A("s_waitcnt lgkmcnt(0)")
        stamp(4)
        A.label("L_bloop")
        for s in range(4):
            A("s_waitcnt vmcnt(28)")
            for pp in range(2):
                for i in range(4): mfma(stS[pp], kreg(s, i), QBp[pp] + 4 * i, None if i == 0 else stS[pp])
            A(f"s_cmp_gt_i32 {sBN}, 0"); A(f"s_cselect_b32 s6, {sNREC}, 0"); A(f"s_cselect_b32 s10, {sNREC}, 0")
            boff(); issue_k(s, sKOFF)
            for pp in range(2): softmax_update(stS[pp], stP[pp], stm[pp], stl[pp], stO[pp], vt0, vt1, vt2)
            A("s_waitcnt vmcnt(28)")
            for pp in range(2): pv(stO[pp], stP[pp], lambda t: vreg(s, t))
            issue_v(s, sKOFF)
            A(f"s_sub_u32 {sBN}, {sBN}, 1")
        A(f"s_cmp_gt_i32 {sBN}, -4"); A("s_cbranch_scc1 L_bloop")
        stamp(10)
        A("s_waitcnt vmcnt(0)")
        A(f"v_and_b32 v{vt1}, 7, v{vN}"); A(f"v_lshl_add_u32 v{vt1}, v{vG}, 5, v{vt1}"); A(f"v_lshrrev_b32 v{vt2}, 3, v{vN}"); A(f"v_lshl_add_u32 v{vt1}, v{vt2}, 7, v{vt1}")
        A(f"v_lshlrev_b32 v{vt1}, 2, v{vt1}")
        A("s_nop 3")
        for pp in range(2):
            for r in range(4): A(f"ds_write_b32 v{vt1}, v{stO[pp]+r} offset:{L_OB + pp*1024 + r*32}")
            xgroup_reduce("v_add_f32", stl[pp], vt0)
            R = PBR + 16 + pp * 4
            A(f"v_mov_b32 v{R}, v{stm[pp]}"); A(f"v_mov_b32 v{R+1}, {sE}"); A(f"v_mov_b32 v{R+2}, v{stl[pp]}"); A(f"v_mov_b32 v{R+3}, {sE}")
        A("s_waitcnt lgkmcnt(0)")
        for hh in range(4): A(f"ds_read_b64 {vr(vQ+2*hh,2)}, v{vLO8} offset:{L_OB + hh*512}")
        A("s_waitcnt lgkmcnt(0)")
        for hh in range(4):
            R = PBR + hh * 4
            A(f"v_mov_b32 v{R}, v{vQ+2*hh}"); A(f"v_mov_b32 v{R+1}, {sE}"); A(f"v_mov_b32 v{R+2}, v{vQ+2*hh+1}"); A(f"v_mov_b32 v{R+3}, {sE}")
    sPB0, sPB1, sML0 = "s76", "s77", "s78"
    vBML = 88
    A(f"s_lshr_b32 {sT0}, {sH}, 2"); A(f"s_lshl_b32 {sT0}, {sT0}, 5"); A(f"s_add_u32 {sT0}, {sT0}, {sBU}"); A(f"s_add_u32 {sT0}, {sT0}, 256")
    A(f"s_lshl_b32 {sPB0}, {sT0}, 10"); A(f"s_add_u32 {sPB0}, {sPB0}, {WS_P}")
    A(f"s_lshl_b32 {sML0}, {sT0}, 4"); A(f"s_add_u32 {sML0}, {sML0}, {WS_ML}")
    A.label("L_v_noB")
    sreg[0], sreg[1] = 20, 21
    A(f"v_lshrrev_b32 v{vBML}, 3, v{vN}"); A(f"v_lshlrev_b32 v{vBML}, 7, v{vBML}")
    def pb_publish(lab):
        A(f"s_cmp_lt_u32 {sS}, 6"); A(f"s_cbranch_scc1 {lab}")
        for hh in range(4):
            A(f"buffer_store_dwordx4 {vr(PBR+hh*4,4)}, v{vA16}, {SWS}, {sPB0} offen sc1")
            if hh < 3: A(f"s_add_u32 {sPB0}, {sPB0}, 8192")
        A("s_mov_b64 exec, 0x101")
        for pp in range(2):
            A(f"buffer_store_dwordx4 {vr(PBR+16+pp*4,4)}, v{vBML}, {SWS}, {sML0} offen offset:{pp*256} sc1")
        A("s_mov_b64 exec, -1")
        A.label(lab)
    def cntwait(thr_s):
        l1 = A.newlabel("L_cw"); l2 = A.newlabel("L_cwok")
        A(f"v_mov_b32 v{vt1}, 0"); A(f"s_mov_b32 {sTO}, {TMO}")
        A.label(l1)
        A(f"ds_read_b32 v{vt0}, v{vt1} offset:{L_CNT}")
        A("s_waitcnt lgkmcnt(0)")
        A(f"v_readfirstlane_b32 {sT0}, v{vt0}")
        A("s_nop 3")
        A(f"s_cmp_ge_u32 {sT0}, {thr_s}"); A(f"s_cbranch_scc1 {l2}")
        A(f"s_sleep {bsl}")
        A(f"s_sub_u32 {sTO}, {sTO}, 1"); A(f"s_cmp_lg_u32 {sTO}, 0"); A(f"s_cbranch_scc1 {l1}")
        A.label(l2)
    sK1, sTT1 = "s80", "s81"
    A(f"s_mov_b32 {sHD}, {sH}")
    tail_prep()
    if diag:
        A("s_mov_b32 s101, 0")
        A(f"s_cmp_ge_u32 {sS}, 6"); A("s_cbranch_scc1 L_nodiag")
        cntwait(64)
        A("s_memrealtime s[90:91]"); A("s_waitcnt lgkmcnt(0)"); A(f"s_sub_u32 s101, s90, {sE}")
        if diag == 2:
            A("s_mov_b32 s100, s90")
            cntwait(176)
            A("s_memrealtime s[90:91]"); A("s_waitcnt lgkmcnt(0)"); A("s_sub_u32 s101, s90, s100")
        A.label("L_nodiag")
    sSMP = "s79"
    A(f"s_mov_b32 {sSMP}, {sSTC}")
    if ilv:
        A(f"s_cmp_lt_u32 {sS}, 4"); A(f"s_cselect_b32 {sT0}, {KP}, 0"); A(f"s_cmp_ge_u32 {sS}, 6"); A(f"s_cselect_b32 {sT0}, {KB}, {sT0}"); A(f"s_sub_u32 {sSMP}, {sSTC}, {sT0}")
    A(f"s_sub_u32 {sT3}, {sSMP}, {K1}")
    cntwait(sT3)
    A("s_memrealtime s[90:91]"); A(f"s_mov_b32 {sK1}, {sT0}"); A("s_waitcnt lgkmcnt(0)"); A(f"s_mov_b32 {sTT1}, s90")
    A(f"s_sub_u32 {sT3}, {sSMP}, {K2}"); A(f"s_add_u32 {sT1}, {sK1}, 16"); A(f"s_max_u32 {sT3}, {sT3}, {sT1}"); A(f"s_min_u32 {sT3}, {sT3}, {sSTC}")
    cntwait(sT3)
    A("s_memrealtime s[90:91]"); A("s_waitcnt lgkmcnt(0)")
    A(f"s_sub_u32 {sT1}, {sT0}, {sK1}"); A(f"s_max_u32 {sT1}, {sT1}, 1")
    A(f"s_sub_u32 {sT2}, s90, {sTT1}")
    A(f"s_max_u32 {sT2}, {sT2}, 1")
    A(f"s_sub_u32 {sT3}, s90, {sE}")
    A(f"s_sub_i32 {sT0}, {sSTC}, {sT0}")
    A(f"v_cvt_f32_u32 v{vt0}, {sT1}"); A(f"v_cvt_f32_u32 v{vt1}, {sT2}"); A(f"v_cvt_f32_u32 v{vt2}, {sT3}"); A(f"v_cvt_f32_i32 v{vt3}, {sT0}")
    A(f"v_rcp_f32 v{vt4}, v{vt1}"); A(f"v_rcp_f32 v{vT}, v{vt0}"); A("s_nop 0")
    A(f"v_mul_f32 v{vB0}, v{vt0}, v{vt4}")
    A(f"v_mul_f32 v{vT}, v{vT}, v{vt1}")
    A(f"v_fma_f32 v{vB0+2}, v{vt3}, v{vT}, v{vt2}")
    A(f"v_mov_b32 v{vB0+1}, {sE}"); A(f"v_mov_b32 v{vB0+3}, {sE}")
    A(f"s_lshl_b32 {sT2}, {sH}, 7"); A(f"s_add_u32 {sT2}, {sT2}, {WS_BAL}"); A(f"s_lshl_b32 {sT1}, {sS}, 4"); A(f"s_add_u32 {sT1}, {sT1}, {sT2}")
    A(f"v_mov_b32 v{vt1}, 0")
    A("s_mov_b64 exec, 1")
    A(f"buffer_store_dwordx4 {vr(vB0,4)}, v{vt1}, {SWS}, {sT1} offen sc1")
    A("s_mov_b64 exec, -1")
    pb_publish("L_v_pbdone")
    lab = poll_begin()
    A(f"buffer_load_dwordx4 {vr(vML,4)}, v{vAML}, {SWS}, {sT2} offen sc1")
    poll_end(lab, [vML + 1, vML + 3], 4)
    def bsum8(v):
        A("s_nop 1"); A(f"v_add_f32_dpp v{v}, v{v}, v{v} quad_perm:[1,0,3,2] {DPP}")
        A("s_nop 1"); A(f"v_add_f32_dpp v{v}, v{v}, v{v} quad_perm:[2,3,0,1] {DPP}")
        A("s_nop 1"); A(f"v_add_f32_dpp v{v}, v{v}, v{v} row_half_mirror {DPP}")
    A(f"v_mov_b32 v{vt0}, v{vML}"); A(f"v_mul_f32 v{vt1}, v{vML}, v{vML+2}")
    bsum8(vt0); bsum8(vt1)
    A(f"v_add_f32 v{vt1}, {hex(f2u(float(RT)))}, v{vt1}")
    A(f"v_rcp_f32 v{vt0}, v{vt0}"); A("s_nop 0")
    A(f"v_mul_f32 v{vt1}, v{vt1}, v{vt0}")
    A(f"v_sub_f32 v{vt1}, v{vt1}, v{vML+2}"); A(f"v_mul_f32 v{vt1}, v{vt1}, v{vML}")
    A(f"v_max_f32 v{vt1}, 0, v{vt1}")
    A(f"v_min_f32 v{vt1}, {hex(f2u(4096.0))}, v{vt1}")
    A(f"v_add_f32 v{vt1}, {hex(f2u(1e-3))}, v{vt1}")
    for sh in (1, 2, 4):
        A("s_nop 1"); A(f"v_add_f32_dpp v{vt1}, v{vt1}, v{vt1} row_shr:{sh} row_mask:0xf bank_mask:0xf bound_ctrl:0")
    A("s_nop 1")
    A(f"v_readlane_b32 {sT0}, v{vt1}, 7"); A("s_nop 1")
    A(f"v_rcp_f32 v{vt0}, {sT0}"); A("s_nop 0")
    A(f"v_mul_f32 v{vt0}, {hex(f2u(float(RT)))}, v{vt0}")
    A(f"v_mul_f32 v{vt1}, v{vt1}, v{vt0}"); A(f"v_rndne_f32 v{vt1}, v{vt1}"); A(f"v_cvt_u32_f32 v{vt1}, v{vt1}")
    A(f"v_min_u32 v{vt1}, {RT}, v{vt1}")
    A(f"s_sub_u32 {sT1}, {sS}, 1"); A(f"s_and_b32 {sT1}, {sT1}, 7"); A("s_nop 1")
    A(f"v_readlane_b32 {sT2}, v{vt1}, {sS}"); A(f"v_readlane_b32 {sT3}, v{vt1}, {sT1}")
    A("s_nop 3")
    A(f"s_cmp_eq_u32 {sS}, 7"); A(f"s_cselect_b32 {sT2}, {RT}, {sT2}")
    A(f"s_cmp_eq_u32 {sS}, 0"); A(f"s_cselect_b32 {sT3}, 0, {sT3}")
    A(f"s_sub_u32 {sT2}, {sT2}, {sT3}")
    A(f"s_add_u32 {sT3}, {sT3}, {DYN0}")
    A(f"v_mov_b32 v{vt2}, {sT3}"); A(f"v_mov_b32 v{vt3}, {sT2}"); A(f"v_mov_b32 v{vt1}, 0")
    A(f"ds_write_b64 v{vt1}, {vr(vt2,2)} offset:{L_DYN}")
    if ts:
        A(f"s_lshl_b32 s92, s2, 6"); A(f"s_add_u32 s92, s92, {WS_TS + 0x200000}")
        A(f"buffer_store_dword v{vt3}, v{vt1}, {SWS}, s92 offen")
    stamp(9)
    A(f"s_add_u32 {sT3}, {sT2}, {sSTC}"); A(f"s_add_u32 {sT3}, {sT3}, {X2}")
    cntwait(sT3)
    wo_issue(40)
    A(f"v_mov_b32 v{vt2}, 0")
    A(f"s_lshl_b32 {sT0}, {sH}, 3"); A(f"s_add_u32 {sT0}, {sT0}, {sS}"); A(f"s_lshl_b32 {sT1}, {sT0}, 4"); A(f"s_lshl_b32 {sT0}, {sT0}, 10")
    A(f"s_add_u32 {sT0}, {sT0}, {WS_P}"); A(f"s_add_u32 {sT1}, {sT1}, {WS_ML}")
    A(f"v_mov_b32 v{vB0+1}, {sE}"); A(f"v_mov_b32 v{vB0+3}, {sE}"); A(f"v_mov_b32 v{vB1+1}, {sE}"); A(f"v_mov_b32 v{vB1+3}, {sE}")
    A("s_barrier")
    stamp(8)
    MLW = PO + 16
    for w in range(NSW):
        A(f"ds_read_b64 {vr(MLW+2*w,2)}, v{vt2} offset:{L_ML + w*8}")
    for w in range(NSW):
        A(f"ds_read_b64 {vr(PO+2*w,2)}, v{vA8} offset:{L_OPART + w*512}")
    A(f"s_waitcnt lgkmcnt({NSW})")
    A(f"v_max_f32 v{vB1}, v{MLW}, v{MLW+2}")
    A(f"v_max3_f32 v{vB1}, v{MLW+4}, v{MLW+6}, v{vB1}")
    for w in range(NSW): A(f"v_sub_f32 v{MLW+2*w}, v{MLW+2*w}, v{vB1}")
    for w in range(NSW): A(f"v_mul_f32 v{MLW+2*w}, {sC}, v{MLW+2*w}")
    for w in range(NSW): A(f"v_exp_f32 v{MLW+2*w}, v{MLW+2*w}")
    A("s_waitcnt lgkmcnt(0)")
    A(f"v_mul_f32 v{vB0}, v{PO}, v{MLW}"); A(f"v_mul_f32 v{vB0+2}, v{PO+1}, v{MLW}"); A(f"v_mul_f32 v{vB1+2}, v{MLW+1}, v{MLW}")
    for w in range(1, NSW):
        A(f"v_fma_f32 v{vB0}, v{PO+2*w}, v{MLW+2*w}, v{vB0}"); A(f"v_fma_f32 v{vB0+2}, v{PO+2*w+1}, v{MLW+2*w}, v{vB0+2}")
        A(f"v_fma_f32 v{vB1+2}, v{MLW+2*w+1}, v{MLW+2*w}, v{vB1+2}")
    A(f"buffer_store_dwordx4 {vr(vB0,4)}, v{vA16}, {SWS}, {sT0} offen sc1")
    A("s_mov_b64 exec, 1")
    A(f"buffer_store_dwordx4 {vr(vB1,4)}, v{vt2}, {SWS}, {sT1} offen sc1")
    A("s_mov_b64 exec, -1")
    A.label("L_tail")
    tail()
    A.label("L_end")
    A("s_endpgm")

    out = HEADER + f"; @launch grid=(256,1,1) block=({(NSW+1)*64},1,1) lds={LDS_SIZE}\n"
    out += '.amdgcn_target "amdgcn-amd-amdhsa--gfx950"\n.text\n' + f".globl {KNAME}\n.p2align 8\n.type {KNAME},@function\n{KNAME}:\n"
    out += "\n".join(A.L) + "\n"
    out += f""".section .rodata,"a"
.p2align 6
.amdhsa_kernel {KNAME}
  .amdhsa_next_free_vgpr 256
  .amdhsa_next_free_sgpr 102
  .amdhsa_accum_offset 256
  .amdhsa_group_segment_fixed_size 0
  .amdhsa_kernarg_size 104
  .amdhsa_user_sgpr_count 2
  .amdhsa_user_sgpr_kernarg_segment_ptr 1
  .amdhsa_system_sgpr_workgroup_id_x 1
.end_amdhsa_kernel
"""
    return out

if __name__ == "__main__":
    cfg = json.loads(sys.argv[2]) if len(sys.argv) > 2 else {}
    open(sys.argv[1], "w").write(gen(**cfg))
```

```python
import sys, json, math, struct
from gen import HEADER, KNAME, G, vr, f2u, CSCALE

WS_CNT  = 0x1000
WS_QF   = 0x10000
WS_BAL  = 0x18000
WS_ML   = 0x20000
WS_P    = 0x100000
WS_Y    = 0x200000
WS_TS   = 0x800000
WS_SIZE = 0x1000000

L_QPART = 0
L_QA    = 4096
L_QB    = 4352
L_OPART = 6144
L_OB    = 8192
L_ML    = 10240
L_CNT   = 10304
L_EP    = 10312
L_DYN   = 10320
L_BD    = 10328
L_MLB   = 10496
L_OBW   = 12288
LDS_SIZE = 20480

def gen(ts=False, kflags="nt", sleep=2, tsleep=1, hmap=1, ST=224, noB=False, D=4, pbthr=0, TMO=0x8000, NSW=4, brot=5, STR=None, xflag=True, early=False, X1=16, X2=0, bsl=4, latewo=3, K1=64, K2=24, XS=0, ilv=False, KB=32, KP=8, fixed=0, drain=True, WOK=0, pp2=False, stag=4, diag=0, bflags=None, wflags=None, bstream=True):
    A = G()
    if STR is None: STR = [ST] * 3
    roles = True
    RT = 2048 - (4 * STR[0] + 2 * STR[1] + 2 * STR[2])
    DYN0 = 2048 - RT
    sreg = [54, 55]
    sWG, sWAVE = "s2", "s3"
    SK, SV, SW, SWS, SX, SDBG, SOUT = "s[4:7]", "s[8:11]", "s[12:15]", "s[16:19]", "s[20:23]", "s[24:27]", "s[28:31]"
    sC = "s58"; sHD = "s59"; sH, sS = "s60", "s61"; sKOFF = "s62"; sSTOP = "s63"; sCOFF = "s64"
    sT0, sT1, sT2, sT3 = "s65", "s66", "s67", "s68"
    sE = "s69"; sSELLO, sSELHI = "s70", "s71"; sHALF = "s[72:73]"; sTO = "s74"; sNREC = "s75"
    sVAL = 76
    sBASE, sSB, sBB, sBU, sBJ, sBN = "s95", "s96", "s97", "s98", "s99", "s100"
    sSTC = "s93"
    vLANE, vN, vG, vKO, vVO = 0, 1, 2, 3, 4
    vM = 5; vT = 9
    vQ = 12; vO = 28; vS = 32; vP = 36; vB0 = 40; vB1 = 44; vm = 48; vl = 49
    vt0, vt1, vt2, vt3, vt4, vt5 = 50, 51, 52, 53, 54, 55
    vX = 56; vML = 60
    RING = 64
    def kreg(slot, i): return RING + slot * 32 + i * 4
    def vreg(slot, i): return RING + slot * 32 + 16 + i * 4
    WQ = 192
    WO = 192; PO = RING + 64
    assert D <= 4
    DPP = "row_mask:0xf bank_mask:0xf"

    def srd(dst, ptr_lo, nbytes):
        b = int(dst[2:].split(":")[0])
        A(f"s_mov_b32 s{b}, s{ptr_lo}"); A(f"s_mov_b32 s{b+1}, s{ptr_lo+1}")
        A(f"s_mov_b32 s{b+2}, {hex(nbytes)}"); A(f"s_mov_b32 s{b+3}, 0x00020000")
    def stamp(idx):
        if not ts: return
        A("s_memrealtime s[90:91]")
        A("s_lshl_b32 s92, s2, 3"); A("s_add_u32 s92, s92, s3"); A("s_lshl_b32 s92, s92, 6")
        A(f"s_add_u32 s92, s92, {WS_TS + idx*4}")
        A("s_waitcnt lgkmcnt(0)")
        A(f"v_mov_b32 v{sreg[0]}, s90"); A(f"v_mov_b32 v{sreg[1]}, 0")
        A(f"buffer_store_dword v{sreg[0]}, v{sreg[1]}, {SWS}, s92 offen")
    def xgroup_reduce(op, v, tmp):
        A(f"v_mov_b32 v{tmp}, v{v}"); A("s_nop 1")
        A(f"v_permlane16_swap_b32 v{v}, v{tmp}")
        A(f"{op} v{v}, v{v}, v{tmp}")
        A(f"v_mov_b32 v{tmp}, v{v}"); A("s_nop 1")
        A(f"v_permlane32_swap_b32 v{v}, v{tmp}")
        A(f"{op} v{v}, v{v}, v{tmp}")
    def mfma(d, a, b, c):
        cs = "0" if c is None else vr(c, 4)
        A(f"v_mfma_f32_16x16x32_bf16 {vr(d,4)}, {vr(a,4)}, {vr(b,4)}, {cs}")
    def softmax_update(S, P, m, l, O, t0, t1, t2):
        A(f"v_max_f32 v{t0}, v{S}, v{S+1}")
        A(f"v_max3_f32 v{t0}, v{S+2}, v{S+3}, v{t0}")
        A(f"v_mov_b32 v{t1}, v{t0}"); A("s_nop 1")
        A(f"v_permlane16_swap_b32 v{t0}, v{t1}")
        A(f"v_max_f32 v{t0}, v{t0}, v{t1}")
        A(f"v_mov_b32 v{t1}, v{t0}"); A("s_nop 1")
        A(f"v_permlane32_swap_b32 v{t0}, v{t1}")
        A(f"v_max3_f32 v{t0}, v{t0}, v{t1}, v{m}")
        A(f"v_mul_f32 v{t1}, {sC}, v{t0}")
        A(f"v_fma_f32 v{t2}, v{m}, {sC}, -v{t1}")
        for r in range(4): A(f"v_fma_f32 v{P+r}, v{S+r}, {sC}, -v{t1}")
        A(f"v_exp_f32 v{t2}, v{t2}")
        for r in range(4): A(f"v_exp_f32 v{P+r}, v{P+r}")
        A(f"v_mov_b32 v{m}, v{t0}")
        A(f"v_fma_f32 v{l}, v{l}, v{t2}, v{P}")
        A(f"v_add_f32 v{t1}, v{P+1}, v{P+2}")
        for r in range(4): A(f"v_mul_f32 v{O+r}, v{O+r}, v{t2}")
        A(f"v_add_f32 v{l}, v{l}, v{P+3}")
        A(f"v_add_f32 v{l}, v{l}, v{t1}")
    def pv(O, P, vbase_fn):
        for t in range(4):
            B = vB0 if t % 2 == 0 else vB1
            A(f"v_cvt_pk_bf16_f32 v{vt0}, v{P+t}, v{P+t}")
            for r in range(4): A(f"v_and_b32 v{B+r}, v{vt0}, v{vM+r}")
            A("s_nop 1")
            mfma(O, vbase_fn(t), B, O)
    cur = [kflags]
    if wflags is None: wflags = kflags
    if bflags is None: bflags = kflags
    def issue_k(slot, soff):
        for i in range(4):
            A(f"buffer_load_dwordx4 {vr(kreg(slot,i),4)}, v{vKO}, {SK}, {soff} offen offset:{i*64} {cur[0]}")
    def issue_v(slot, soff):
        for i in range(4):
            A(f"buffer_load_dwordx4 {vr(vreg(slot,i),4)}, v{vVO}, {SV}, {soff} offen offset:{i*256} {cur[0]}")
    def poll_begin():
        lab = A.newlabel("L_poll")
        A(f"s_mov_b32 {sTO}, {TMO}")
        A.label(lab)
        return lab
    def poll_end(lab, tagregs, sl):
        done = A.newlabel("L_pdone")
        A("s_waitcnt vmcnt(0)")
        tr = list(tagregs)
        A(f"v_xor_b32 v{vt0}, {sE}, v{tr[0]}")
        k = 1
        while k < len(tr):
            if k + 1 < len(tr):
                A(f"v_xor_b32 v{vt1}, {sE}, v{tr[k]}"); A(f"v_xor_b32 v{vT}, {sE}, v{tr[k+1]}")
                A(f"v_or3_b32 v{vt0}, v{vt0}, v{vt1}, v{vT}"); k += 2
            else:
                A(f"v_xor_b32 v{vt1}, {sE}, v{tr[k]}"); A(f"v_or_b32 v{vt0}, v{vt0}, v{vt1}"); k += 1
        A(f"v_cmp_ne_u32 vcc, 0, v{vt0}")
        A("s_nop 4")
        A(f"s_cbranch_vccz {done}")
        while sl > 0:
            A(f"s_sleep {min(sl,127)}"); sl -= 127
        A(f"s_sub_u32 {sTO}, {sTO}, 1")
        A(f"s_cmp_lg_u32 {sTO}, 0")
        A(f"s_cbranch_scc1 {lab}")
        A.label(done)
    def tagcheck(tagregs):
        tr = list(tagregs)
        A(f"v_xor_b32 v{vt0}, {sE}, v{tr[0]}")
        k = 1
        while k < len(tr):
            if k + 1 < len(tr):
                A(f"v_xor_b32 v{vt1}, {sE}, v{tr[k]}"); A(f"v_xor_b32 v{vT}, {sE}, v{tr[k+1]}")
                A(f"v_or3_b32 v{vt0}, v{vt0}, v{vt1}, v{vT}"); k += 2
            else:
                A(f"v_xor_b32 v{vt1}, {sE}, v{tr[k]}"); A(f"v_or_b32 v{vt0}, v{vt0}, v{vt1}"); k += 1
        A(f"v_cmp_ne_u32 vcc, 0, v{vt0}")
        A("s_nop 4")
    def poll2(issue, tags, n, finish):
        lab = A.newlabel("L_pp"); d0 = A.newlabel("L_pp0"); d1 = A.newlabel("L_pp1"); dn = A.newlabel("L_ppd")
        A(f"s_mov_b32 {sTO}, {TMO}")
        issue(0)
        A(f"s_sleep {stag}")
        A.label(lab)
        issue(1)
        A(f"s_waitcnt vmcnt({n})")
        tagcheck(tags(0)); A(f"s_cbranch_vccz {d0}")
        issue(0)
        A(f"s_waitcnt vmcnt({n})")
        tagcheck(tags(1)); A(f"s_cbranch_vccz {d1}")
        A(f"s_sub_u32 {sTO}, {sTO}, 1"); A(f"s_cmp_lg_u32 {sTO}, 0"); A(f"s_cbranch_scc1 {lab}")
        A.label(d1)
        finish(1)
        A(f"s_branch {dn}")
        A.label(d0)
        finish(0)
        A.label(dn)
    def wo_issue(ptr_lo):
        srd(SW, ptr_lo, 0x400000)
        A(f"v_lshlrev_b32 v{vt1}, 14, v{vG}")
        A(f"v_lshl_add_u32 v{vt1}, v{vN}, 4, v{vt1}")
        A(f"s_lshl_b32 {sT0}, {sH}, 17")
        A(f"s_lshr_b32 {sT1}, {sS}, 2"); A(f"s_lshl_b32 {sT1}, {sT1}, 16"); A(f"s_add_u32 {sT0}, {sT0}, {sT1}")
        A(f"s_and_b32 {sT1}, {sS}, 3"); A(f"s_lshl_b32 {sT1}, {sT1}, 8"); A(f"s_add_u32 {sT0}, {sT0}, {sT1}")
        for a in range(4):
            if a: A(f"s_add_u32 {sT0}, {sT0}, 4096")
            for b in range(4):
                t = a * 4 + b
                A(f"buffer_load_dwordx4 {vr(WO+4*t,4)}, v{vt1}, {SW}, {sT0} offen offset:{b*1024} {wflags}")
    sPA0, sPA1, sMLA, sYP, sYG, sOUTO, sRED = "s84", "s85", "s86", "s87", "s88", "s89", "s94"
    vAML, vA8, vAY, vA16, vAO = 12, 13, 14, 15, 16
    def tail_prep():
        srd(SOUT, 52, 2048)
        A(f"v_and_b32 v{vAML}, 7, v{vLANE}"); A(f"v_lshlrev_b32 v{vAML}, 4, v{vAML}")
        A(f"v_lshlrev_b32 v{vA8}, 3, v{vLANE}")
        A(f"v_lshlrev_b32 v{vAY}, 4, v{vN}"); A(f"v_lshl_add_u32 v{vAY}, v{vG}, 14, v{vAY}")
        A(f"v_lshlrev_b32 v{vA16}, 4, v{vLANE}")
        A(f"v_and_b32 v{vAO}, 7, v{vN}"); A(f"v_lshrrev_b32 v{vt2}, 3, v{vN}"); A(f"v_lshl_add_u32 v{vAO}, v{vt2}, 4, v{vAO}"); A(f"v_lshlrev_b32 v{vAO}, 1, v{vAO}")
        A(f"s_lshl_b32 {sMLA}, {sHD}, 7"); A(f"s_add_u32 {sMLA}, {sMLA}, {WS_ML}")
        A(f"s_lshl_b32 {sPA0}, {sHD}, 13"); A(f"s_lshr_b32 {sT1}, {sS}, 2"); A(f"s_lshl_b32 {sT1}, {sT1}, 9")
        A(f"s_add_u32 {sPA0}, {sPA0}, {sT1}"); A(f"s_add_u32 {sPA0}, {sPA0}, {WS_P}"); A(f"s_add_u32 {sPA1}, {sPA0}, 4096")
        A(f"s_lshr_b32 {sT2}, {sHD}, 5")
        A(f"s_lshl_b32 {sYP}, {sT2}, 18"); A(f"s_add_u32 {sYP}, {sYP}, {WS_Y}"); A(f"s_mov_b32 {sYG}, {sYP}")
        A(f"s_and_b32 {sT0}, {sS}, 3"); A(f"s_lshl_b32 {sT0}, {sT0}, 16"); A(f"s_add_u32 {sYP}, {sYP}, {sT0}")
        A(f"s_lshl_b32 {sT0}, {sH}, 1"); A(f"s_lshr_b32 {sT1}, {sS}, 2"); A(f"s_add_u32 {sT0}, {sT0}, {sT1}"); A(f"s_lshl_b32 {sT0}, {sT0}, 8"); A(f"s_add_u32 {sYP}, {sYP}, {sT0}")
        A(f"s_lshr_b32 {sT3}, {sWG}, 4"); A(f"s_lshl_b32 {sT0}, {sT3}, 14"); A(f"s_add_u32 {sYG}, {sYG}, {sT0}")
        A(f"s_lshl_b32 {sOUTO}, {sT3}, 6"); A(f"s_lshl_b32 {sT0}, {sT2}, 10"); A(f"s_add_u32 {sOUTO}, {sOUTO}, {sT0}")
        A(f"s_and_b32 {sT0}, {sT3}, 7"); A(f"s_lshl_b32 {sT1}, {sT2}, 3"); A(f"s_add_u32 {sT0}, {sT0}, {sT1}")
        A(f"s_and_b32 {sT1}, {sWG}, 15"); A(f"s_cmp_eq_u32 {sT0}, {sT1}"); A(f"s_cselect_b32 {sRED}, 1, 0")
    def tail():
        NP = 8
        if pp2:
            ML2 = [100, 160]; PO2 = [104, 164]
            def iss(k):
                A(f"buffer_load_dwordx4 {vr(ML2[k],4)}, v{vAML}, {SWS}, {sMLA} offen sc1")
                for p in range(NP):
                    A(f"buffer_load_dwordx2 {vr(PO2[k]+2*p,2)}, v{vA8}, {SWS}, {sPA0 if p < 4 else sPA1} offen offset:{(p%4)*1024} sc1")
            def fin(k):
                A(f"v_mov_b32 v{vML}, v{ML2[k]}"); A(f"v_mov_b32 v{vML+2}, v{ML2[k]+2}")
                for p in range(NP): A(f"v_mov_b32 v{PO+2*p}, v{PO2[k]+2*p}")
            poll2(iss, lambda k: [ML2[k] + 1, ML2[k] + 3] + [PO2[k] + 2 * p + 1 for p in range(NP)], 9, fin)
            A("s_nop 1")
        else:
            lab = poll_begin()
            A(f"buffer_load_dwordx4 {vr(vML,4)}, v{vAML}, {SWS}, {sMLA} offen sc1")
            for p in range(NP):
                A(f"buffer_load_dwordx2 {vr(PO+2*p,2)}, v{vA8}, {SWS}, {sPA0 if p < 4 else sPA1} offen offset:{(p%4)*1024} sc1")
            poll_end(lab, [vML + 1, vML + 3] + [PO + 2 * p + 1 for p in range(NP)], tsleep)
        if not early: stamp(5)
        A(f"v_max_f32_dpp v{vt0}, v{vML}, v{vML} quad_perm:[1,0,3,2] {DPP}"); A("s_nop 1")
        A(f"v_max_f32_dpp v{vt0}, v{vt0}, v{vt0} quad_perm:[2,3,0,1] {DPP}"); A("s_nop 1")
        A(f"v_max_f32_dpp v{vt0}, v{vt0}, v{vt0} row_half_mirror {DPP}")
        A(f"v_sub_f32 v{vt1}, v{vML}, v{vt0}"); A(f"v_mul_f32 v{vt1}, {sC}, v{vt1}"); A(f"v_exp_f32 v{vt1}, v{vt1}")
        A("s_nop 0")
        A(f"v_mul_f32 v{vt2}, v{vt1}, v{vML+2}"); A("s_nop 0")
        A(f"v_mul_f32_dpp v{vt3}, v{vt1}, v{PO} row_newbcast:0 {DPP}")
        A(f"v_add_f32_dpp v{vt2}, v{vt2}, v{vt2} quad_perm:[1,0,3,2] {DPP}")
        A(f"v_fmac_f32_dpp v{vt3}, v{vt1}, v{PO+2} row_newbcast:1 {DPP}")
        A(f"v_fmac_f32_dpp v{vt3}, v{vt1}, v{PO+4} row_newbcast:2 {DPP}")
        A(f"v_add_f32_dpp v{vt2}, v{vt2}, v{vt2} quad_perm:[2,3,0,1] {DPP}")
        A(f"v_fmac_f32_dpp v{vt3}, v{vt1}, v{PO+6} row_newbcast:3 {DPP}")
        A(f"v_fmac_f32_dpp v{vt3}, v{vt1}, v{PO+8} row_newbcast:4 {DPP}")
        A(f"v_add_f32_dpp v{vt2}, v{vt2}, v{vt2} row_half_mirror {DPP}")
        A(f"v_fmac_f32_dpp v{vt3}, v{vt1}, v{PO+10} row_newbcast:5 {DPP}")
        A(f"v_rcp_f32 v{vt2}, v{vt2}")
        A(f"v_fmac_f32_dpp v{vt3}, v{vt1}, v{PO+12} row_newbcast:6 {DPP}")
        A(f"v_fmac_f32_dpp v{vt3}, v{vt1}, v{PO+14} row_newbcast:7 {DPP}")
        A(f"v_mul_f32 v{vt3}, v{vt3}, v{vt2}")
        A(f"v_cvt_pk_bf16_f32 v{vt3}, v{vt3}, v{vt3}")
        A("s_nop 1")
        BS = [PO + 16, PO + 20, PO + 24, PO + 28]
        def build(t):
            for r in range(4): A(f"v_and_b32_dpp v{BS[t%4]+r}, v{vt3}, v{vM+r} row_newbcast:{t} {DPP}")
        build(0); build(1)
        for t in range(16):
            acc = vS if t % 2 == 0 else vP
            mfma(acc, WO + 4 * t, BS[t % 4], None if t < 2 else acc)
            if t + 2 < 16: build(t + 2)
        A(f"v_mov_b32 v{vB0+1}, {sE}"); A(f"v_mov_b32 v{vB0+3}, {sE}")
        A("s_nop 6")
        for r in range(4): A(f"v_add_f32 v{vS+r}, v{vS+r}, v{vP+r}")
        A(f"v_cndmask_b32 v{vB0}, v{vS}, v{vS+2}, {sHALF}")
        A(f"v_cndmask_b32 v{vB0+2}, v{vS+1}, v{vS+3}, {sHALF}")
        A(f"buffer_store_dwordx4 {vr(vB0,4)}, v{vAY}, {SWS}, {sYP} offen sc1")
        if early:
            A(f"s_cmp_ge_u32 {sHD}, 32"); A("s_cbranch_scc1 L_afterB")
        stamp(6)
        A.label("L_tail2")
        A(f"s_cmp_eq_u32 {sRED}, 0"); A("s_cbranch_scc1 L_tail_end")
        A(f"s_add_u32 {sT0}, {sYG}, 4096"); A(f"s_add_u32 {sT1}, {sYG}, 8192"); A(f"s_add_u32 {sT2}, {sYG}, 12288")
        if pp2:
            Y2 = [64, 192]
            A("s_waitcnt vmcnt(0)")
            def issy(k):
                for u in range(16):
                    A(f"buffer_load_dwordx4 {vr(Y2[k]+4*u,4)}, v{vA16}, {SWS}, {[sYG,sT0,sT1,sT2][u//4]} offen offset:{(u%4)*1024} sc1")
            def finy(k):
                for u in range(8):
                    A(f"v_add_f32 v{PO+4*u}, v{Y2[k]+4*u}, v{Y2[k]+4*(u+8)}"); A(f"v_add_f32 v{PO+4*u+2}, v{Y2[k]+4*u+2}, v{Y2[k]+4*(u+8)+2}")
            poll2(issy, lambda k: [Y2[k] + 4 * u + o for u in range(16) for o in (1, 3)], 16, finy)
        else:
            lab = poll_begin()
            for u in range(16):
                A(f"buffer_load_dwordx4 {vr(PO+4*u,4)}, v{vA16}, {SWS}, {[sYG,sT0,sT1,sT2][u//4]} offen offset:{(u%4)*1024} sc1")
            poll_end(lab, [PO + 4 * u + o for u in range(16) for o in (1, 3)], tsleep)
        for u in range(8):
            if not pp2: A(f"v_add_f32 v{PO+4*u}, v{PO+4*u}, v{PO+4*(u+8)}"); A(f"v_add_f32 v{PO+4*u+2}, v{PO+4*u+2}, v{PO+4*(u+8)+2}")
        for u in range(1, 8):
            A(f"v_add_f32 v{PO}, v{PO}, v{PO+4*u}"); A(f"v_add_f32 v{PO+2}, v{PO+2}, v{PO+4*u+2}")
        A(f"v_mov_b32 v{vt0}, v{PO}"); A(f"v_mov_b32 v{vt1}, v{PO+2}"); A("s_nop 0")
        A(f"v_permlane16_swap_b32 v{PO}, v{vt0}"); A(f"v_permlane16_swap_b32 v{PO+2}, v{vt1}")
        A(f"v_add_f32 v{PO}, v{PO}, v{vt0}"); A(f"v_add_f32 v{PO+2}, v{PO+2}, v{vt1}")
        A(f"v_mov_b32 v{vt0}, v{PO}"); A(f"v_mov_b32 v{vt1}, v{PO+2}"); A("s_nop 0")
        A(f"v_permlane32_swap_b32 v{PO}, v{vt0}"); A(f"v_permlane32_swap_b32 v{PO+2}, v{vt1}")
        A(f"v_add_f32 v{PO}, v{PO}, v{vt0}"); A(f"v_add_f32 v{PO+2}, v{PO+2}, v{vt1}")
        A(f"v_cvt_pk_bf16_f32 v{vt0}, v{PO}, v{PO+2}")
        if fixed:
            A.label("L_fix")
            A("s_memrealtime s[90:91]"); A("s_waitcnt lgkmcnt(0)")
            A(f"s_sub_u32 s90, s90, {sE}")
            if diag: A("s_sub_u32 s90, s90, s101")
            A(f"s_cmp_lt_i32 s90, {fixed}"); A("s_cbranch_scc1 L_fix")
        A("s_mov_b64 exec, 0xffff")
        A(f"buffer_store_short v{vt0}, v{vAO}, {SOUT}, {sOUTO} offen")
        A(f"buffer_store_short_d16_hi v{vt0}, v{vAO}, {SOUT}, {sOUTO} offen offset:16")
        A("s_mov_b64 exec, -1")
        A.label("L_tail_end")
        stamp(7)
        A("s_endpgm")

    NBLK = 8 // NSW
    def qprod_issue():
        A(f"s_cmp_lt_u32 {sS}, 2")
        A("s_cselect_b32 s12, s38, s48"); A("s_cselect_b32 s13, s39, s49"); A("s_mov_b32 s14, 0x400000"); A("s_mov_b32 s15, 0x00020000")
        A("s_cselect_b32 s20, s32, s42"); A("s_cselect_b32 s21, s33, s43"); A("s_mov_b32 s22, 1024"); A("s_mov_b32 s23, 0x00020000")
        A(f"v_lshrrev_b32 v{vT}, 3, v{vN}"); A(f"v_lshl_add_u32 v{vT}, v{vG}, 1, v{vT}")
        A(f"v_lshlrev_b32 v{vT+1}, 4, v{vT}")
        A(f"v_lshlrev_b32 v{vT}, 16, v{vT}")
        A(f"v_and_b32 v{vT+2}, 7, v{vN}"); A(f"v_lshl_add_u32 v{vT}, v{vT+2}, 4, v{vT}")
        A(f"s_mul_i32 {sT1}, {sWAVE}, {128*NBLK}")
        for bk in range(NBLK):
            A(f"buffer_load_dwordx4 {vr(vX+4*bk,4)}, v{vT+1}, {SX}, {sT1} offen offset:{128*bk}")
        A(f"s_mul_i32 {sT0}, {sWAVE}, {NBLK << 19}"); A(f"s_lshl_b32 {sT1}, {sH}, 8"); A(f"s_add_u32 {sT0}, {sT0}, {sT1}")
        A(f"s_and_b32 {sT1}, {sS}, 1"); A(f"s_lshl_b32 {sT1}, {sT1}, 7"); A(f"s_add_u32 {sT0}, {sT0}, {sT1}")
        for bk in range(NBLK):
            for t in range(8):
                A(f"buffer_load_dwordx4 {vr(WQ+32*bk+4*t,4)}, v{vT}, {SW}, {sT0} offen {wflags}")
                if t < 7: A(f"s_add_u32 {sT0}, {sT0}, 8192")
            if bk < NBLK - 1: A(f"s_add_u32 {sT0}, {sT0}, {(64-7)*8192}")
    def qprod_compute():
        for bk in range(NBLK):
            for t in range(8):
                B = vB0 if t % 2 == 0 else vB1
                sel = sSELLO if t % 2 == 0 else sSELHI
                A(f"v_perm_b32 v{vt0}, v{vX+4*bk+t//2}, v{vX+4*bk+t//2}, {sel}")
                for r in range(4): A(f"v_and_b32 v{B+r}, v{vt0}, v{vM+r}")
                A("s_nop 1")
                mfma(vS, WQ + 32 * bk + 4 * t, B, None if (t == 0 and bk == 0) else vS)
        A(f"v_and_b32 v{vt1}, 7, v{vN}"); A(f"v_lshl_add_u32 v{vt1}, v{vG}, 5, v{vt1}"); A(f"v_lshlrev_b32 v{vt1}, 2, v{vt1}")
        A(f"s_lshl_b32 {sT0}, {sWAVE}, 9"); A(f"v_add_u32 v{vt1}, {sT0}, v{vt1}")
        A("s_mov_b32 exec_lo, 0x00ff00ff"); A("s_mov_b32 exec_hi, 0xff00ff00")
        A("s_nop 3")
        for r in range(4): A(f"ds_write_b32 v{vt1}, v{vS+r} offset:{L_QPART + r*32}")
        A("s_mov_b64 exec, -1")
        A("s_waitcnt lgkmcnt(0)")
        A("s_barrier")
    def masks():
        A(f"v_and_b32 v{vt0}, 1, v{vN}")
        A(f"v_mov_b32 v{vt1}, 0xffff")
        A(f"v_lshlrev_b32 v{vt0}, 4, v{vt0}")
        A(f"v_lshlrev_b32 v{vt1}, v{vt0}, v{vt1}")
        A(f"v_bfe_u32 v{vt0}, v{vN}, 1, 2")
        for r in range(4):
            A(f"v_cmp_eq_u32 vcc, {r}, v{vt0}"); A("s_nop 1")
            A(f"v_cndmask_b32 v{vM+r}, 0, v{vt1}, vcc")
        A(f"v_cmp_lt_u32 {sHALF}, 7, v{vN}")
        A(f"s_mov_b32 {sC}, {hex(f2u(CSCALE))}")
        A(f"s_mov_b32 {sSELLO}, 0x01000100"); A(f"s_mov_b32 {sSELHI}, 0x03020302")

    if ts: A("s_memrealtime s[86:87]")
    A(f"s_cmp_ge_u32 {sWG}, 256"); A("s_cbranch_scc1 L_end")
    A("s_load_dwordx16 s[32:47], s[0:1], 0")
    A("s_load_dwordx8 s[48:55], s[0:1], 64")
    A("s_load_dwordx2 s[56:57], s[0:1], 96")
    A(f"v_lshrrev_b32 v1, 6, v0"); A("v_and_b32 v0, 63, v0"); A("s_nop 0")
    A(f"v_readfirstlane_b32 {sWAVE}, v1")
    A(f"v_and_b32 v{vN}, 15, v0"); A(f"v_lshrrev_b32 v{vG}, 4, v0")
    A(f"v_lshlrev_b32 v{vKO}, 8, v{vN}"); A(f"v_lshl_add_u32 v{vKO}, v{vG}, 4, v{vKO}")
    A(f"v_lshlrev_b32 v{vVO}, 10, v{vG}"); A(f"v_lshl_add_u32 v{vVO}, v{vN}, 4, v{vVO}")
    A(f"s_lshr_b32 {sH}, {sWG}, 3")
    if hmap == 1: A(f"s_and_b32 {sS}, {sWG}, 7")
    else: A(f"s_add_u32 {sS}, {sWG}, {sH}"); A(f"s_and_b32 {sS}, {sS}, 7")
    A(f"s_lshl_b32 {sBASE}, {sH}, 23")
    a_, b_, c_ = STR
    A(f"s_mul_i32 {sSB}, {sS}, {a_}"); A(f"s_mov_b32 {sSTC}, {a_}")
    A(f"s_mul_i32 {sT0}, {sS}, {b_}"); A(f"s_add_u32 {sT0}, {sT0}, {4*a_ - 4*b_ & 0xffffffff}")
    A(f"s_cmp_ge_u32 {sS}, 4"); A(f"s_cselect_b32 {sSB}, {sT0}, {sSB}"); A(f"s_cselect_b32 {sSTC}, {b_}, {sSTC}")
    A(f"s_mul_i32 {sT0}, {sS}, {c_}"); A(f"s_add_u32 {sT0}, {sT0}, {(4*a_ + 2*b_ - 6*c_) & 0xffffffff}")
    A(f"s_cmp_ge_u32 {sS}, 6"); A(f"s_cselect_b32 {sSB}, {sT0}, {sSB}"); A(f"s_cselect_b32 {sSTC}, {c_}, {sSTC}")
    if ilv: A(f"s_lshl_b32 {sSB}, {sS}, 2")
    A(f"s_add_u32 {sT0}, {sSB}, {sWAVE}"); A(f"s_lshl_b32 {sKOFF}, {sT0}, 12"); A(f"s_add_u32 {sKOFF}, {sKOFF}, {sBASE}")
    A("s_waitcnt lgkmcnt(0)")
    srd(SWS, 56, WS_SIZE)
    stamp(0)
    if ts:
        A(f"s_add_u32 s92, s92, {13*4}"); A(f"v_mov_b32 v{sreg[0]}, s86")
        A(f"buffer_store_dword v{sreg[0]}, v{sreg[1]}, {SWS}, s92 offen")
    A(f"s_cmp_eq_u32 {sWAVE}, {NSW}"); A("s_cbranch_scc1 L_service")

    srd(SK, 34, 0x10000000); srd(SV, 36, 0x10000000)
    vNEXT, vCA, vONE = vT + 2, vT + 1, vT
    vNX = [56 + k for k in range(D)]
    def issue_tile(s):
        issue_k(s, sKOFF); issue_v(s, sKOFF); A(f"s_add_u32 {sKOFF}, {sKOFF}, {NSW*4096*(8 if ilv else 1)}")
    A(f"s_cmp_lt_u32 {sS}, 4"); A("s_cbranch_scc1 L_s_prod")
    if bstream and not noB:
        A(f"s_cmp_ge_u32 {sS}, 6"); A("s_cbranch_scc1 L_s_bwg")
    for s in range(D + XS):
        issue_tile(s)
        if s == 0: stamp(14)
    masks()
    A.label("L_s_join")
    A(f"v_mov_b32 v{vm}, 0xff800000"); A(f"v_mov_b32 v{vl}, 0")
    for r in range(4): A(f"v_mov_b32 v{vO+r}, 0")
    for s in range(D):
        A(f"s_mov_b32 s{sVAL+s}, 1")
    A(f"s_mov_b32 {sSTOP}, 0")
    sDB, sDN = "s82", "s83"
    A(f"s_mov_b32 {sDB}, -1"); A(f"s_mov_b32 {sDN}, 0")
    A(f"s_mov_b32 {sNREC}, 0x10000000")
    A(f"v_lshlrev_b32 v{vt3}, 4, v{vG}")
    A(f"v_mov_b32 v{vCA}, 0"); A(f"v_mov_b32 v{vONE}, 1")
    A("s_barrier")
    A.label("L_s_join2")
    for i in range(4): A(f"ds_read_b128 {vr(vQ+4*i,4)}, v{vt3} offset:{L_QA + i*64}")
    def grab():
        A("s_mov_b64 exec, 1")
        A(f"ds_add_rtn_u32 v{vNEXT}, v{vCA}, v{vONE} offset:{L_CNT}")
        A("s_mov_b64 exec, -1")
    grab()
    sWOF = "s101"
    if latewo & 2:
        A(f"s_cmp_lg_u32 {sWAVE}, 0"); A(f"s_cselect_b32 {sWOF}, 0, 1")
    if not noB and not early and not (latewo & 2):
        A(f"s_cmp_lg_u32 {sWAVE}, 0"); A("s_cbranch_scc1 L_s_nowo")
        wo_issue(50)
        A.label("L_s_nowo")
    A("s_waitcnt lgkmcnt(0)")
    stamp(1)
    NW = 8 * D - 4
    def step(s, nwk, nwv, refill=True, check=True):
        if check and not drain: A(f"s_cmp_eq_u32 s{sVAL+s}, 0"); A("s_cbranch_scc1 L_sdone")
        A(f"s_waitcnt vmcnt({nwk})")
        for i in range(4): mfma(vS, kreg(s, i), vQ + 4 * i, None if i == 0 else vS)
        if not refill:
            A("s_nop 7")
            softmax_update(vS, vP, vm, vl, vO, vt0, vt1, vt2)
            A(f"s_waitcnt vmcnt({nwv})")
            pv(vO, vP, lambda t: vreg(s, t))
            return
        A("s_waitcnt lgkmcnt(0)")
        A(f"v_readfirstlane_b32 {sT1}, v{vNEXT}")
        grab()
        ldyn = A.newlabel("L_dyn"); ldec = A.newlabel("L_dec"); lhave = A.newlabel("L_have"); lsp = A.newlabel("L_sp")
        if ts:
            lab = A.newlabel("L_nots")
            A(f"s_and_b32 s92, {sT1}, 15"); A("s_cmp_lg_u32 s92, 0"); A(f"s_cbranch_scc1 {lab}")
            A("s_memrealtime s[90:91]")
            A(f"s_lshl_b32 s92, s2, 7"); A(f"s_lshr_b32 s94, {sT1}, 2"); A("s_add_u32 s92, s92, s94"); A(f"s_add_u32 s92, s92, {WS_TS + 0x100000}")
            A("s_waitcnt lgkmcnt(0)")
            A(f"v_mov_b32 v{vt3}, s90")
            A(f"buffer_store_dword v{vt3}, v{vCA}, {SWS}, s92 offen")
            A.label(lab)
        if ilv:
            A(f"s_lshr_b32 {sT2}, {sT1}, 2"); A(f"s_lshl_b32 {sT2}, {sT2}, 5"); A(f"s_and_b32 {sT3}, {sT1}, 3"); A(f"s_add_u32 {sT2}, {sT2}, {sT3}"); A(f"s_add_u32 {sT2}, {sT2}, {sSB}")
        else:
            A(f"s_add_u32 {sT2}, {sT1}, {sSB}")
        A(f"s_cmp_lt_u32 {sT1}, {sSTC}"); A(f"s_cbranch_scc1 {ldec}")
        A(f"s_cmp_lg_u32 {sDB}, -1"); A(f"s_cbranch_scc1 {lhave}")
        A(f"s_mov_b32 {sTO}, {TMO*16}")
        A.label(lsp)
        A(f"ds_read_b64 {vr(vt2,2)}, v{vCA} offset:{L_DYN}")
        A("s_waitcnt lgkmcnt(0)")
        A(f"v_readfirstlane_b32 {sDB}, v{vt2}"); A(f"v_readfirstlane_b32 {sDN}, v{vt3}")
        A("s_nop 3")
        A(f"s_cmp_lg_u32 {sDB}, -1"); A(f"s_cbranch_scc1 {lhave}")
        A("s_sleep 2")
        A(f"s_sub_u32 {sTO}, {sTO}, 1"); A(f"s_cmp_lg_u32 {sTO}, 0"); A(f"s_cbranch_scc1 {lsp}")
        A(f"s_mov_b32 {sDB}, 0"); A(f"s_mov_b32 {sDN}, 0")
        A.label(lhave)
        A(f"s_sub_u32 {sT0}, {sT1}, {sSTC}")
        A(f"s_add_u32 {sT2}, {sT0}, {sDB}"); A(f"s_and_b32 {sT2}, {sT2}, 2047")
        if drain:
            A(f"s_add_u32 {sT3}, {sT0}, {WOK}"); A(f"s_cmp_lt_u32 {sT3}, {sDN}"); A(f"s_cselect_b32 {sSTOP}, {sSTOP}, 1")
            A(f"s_cmp_lt_u32 {sT0}, {sDN}"); A(f"s_cbranch_scc0 L_drain{s}")
            A.label(ldec)
        else:
            A(f"s_cmp_lt_u32 {sT0}, {sDN}")
            A(f"s_cselect_b32 {sSTOP}, {sSTOP}, 1")
            A.label(ldec)
            A(f"s_cselect_b32 s{sVAL+s}, 1, 0"); A(f"s_cselect_b32 s6, {sNREC}, 0"); A(f"s_cselect_b32 s10, {sNREC}, 0")
        A(f"s_lshl_b32 {sKOFF}, {sT2}, 12"); A(f"s_add_u32 {sKOFF}, {sKOFF}, {sBASE}")
        issue_k(s, sKOFF)
        softmax_update(vS, vP, vm, vl, vO, vt0, vt1, vt2)
        A(f"s_waitcnt vmcnt({nwv})")
        pv(vO, vP, lambda t: vreg(s, t))
        issue_v(s, sKOFF)
    if XS:
        NX = 8 * (D + XS) - 4
        for s in range(D): step(s, NX, NX, True, False)
        out = 8 * (D + XS)
        for s in range(D, D + XS):
            step(s, out - 4, out - 8, False, False); out -= 8
    A.label("L_loop")
    if latewo & 2:
        A(f"s_and_b32 {sT0}, {sWOF}, {sSTOP}"); A("s_cbranch_scc0 L_s_nowo2")
        wo_issue(50)
        A(f"s_mov_b32 {sWOF}, 0")
        A.label("L_s_nowo2")
    for s in range(D): step(s, NW, NW)
    A("s_branch L_loop")
    if drain:
        assert XS == 0
        for s0 in range(D):
            A.label(f"L_drain{s0}")
            stamp(15)
            softmax_update(vS, vP, vm, vl, vO, vt0, vt1, vt2)
            A(f"s_waitcnt vmcnt({8*(D-1)})")
            pv(vO, vP, lambda t: vreg(s0, t))
            for j in range(1, D):
                step((s0 + j) % D, 8 * (D - j) - 4, 8 * (D - j - 1), False, False)
            if s0 < D - 1: A("s_branch L_sdone")
        A("s_nop 3")
    A.label("L_sdone")
    xgroup_reduce("v_add_f32", vl, vt0)
    A(f"v_and_b32 v{vt1}, 7, v{vN}"); A(f"v_lshl_add_u32 v{vt1}, v{vG}, 5, v{vt1}"); A(f"v_lshlrev_b32 v{vt1}, 2, v{vt1}")
    A(f"s_lshl_b32 {sT0}, {sWAVE}, 9"); A(f"v_add_u32 v{vt1}, {sT0}, v{vt1}")
    A(f"s_lshl_b32 {sT0}, {sWAVE}, 3"); A(f"v_mov_b32 v{vt2}, {sT0}")
    for r in range(4): A(f"ds_write_b32 v{vt1}, v{vO+r} offset:{L_OPART + r*32}")
    A(f"ds_write_b64 v{vt2}, {vr(vm,2)} offset:{L_ML}")
    A("s_waitcnt lgkmcnt(0)")
    stamp(2)
    A("s_barrier")
    if noB:
        A("s_endpgm")
    else:
        A(f"s_cmp_eq_u32 {sWAVE}, 0"); A("s_cbranch_scc1 L_btail")
        A("s_endpgm")
        A.label("L_btail")
        sreg[0], sreg[1] = 20, 21
        A("s_setprio 3")
        if latewo & 2:
            A(f"s_cmp_eq_u32 {sWOF}, 0"); A("s_cbranch_scc1 L_s_nowo3")
            wo_issue(50)
            A.label("L_s_nowo3")
        A(f"v_mov_b32 v{vt1}, 0")
        A(f"ds_read_b32 v{vt0}, v{vt1} offset:{L_EP}")
        A(f"s_add_u32 {sHD}, {sH}, 32")
        tail_prep()
        A("s_waitcnt lgkmcnt(0)")
        A(f"v_readfirstlane_b32 {sE}, v{vt0}")
        A("s_branch L_tail2" if early else "s_branch L_tail")
    sreg[0], sreg[1] = 54, 55
    A.label("L_s_prod")
    A("s_setprio 2")
    qprod_issue()
    masks()
    A("s_waitcnt vmcnt(0)")
    stamp(12)
    qprod_compute()
    A("s_setprio 0")
    for s in range(D + XS): issue_tile(s)
    A("s_branch L_s_join")

    if bstream and not noB:
        assert D == 4 and XS == 0
        A.label("L_s_bwg")
        sAK = "s84"
        A(f"s_mov_b32 {sAK}, {sKOFF}")
        srd(SK, 44, 0x4000000); srd(SV, 46, 0x4000000)
        A(f"s_lshl_b32 {sT0}, {sH}, 1"); A(f"s_add_u32 {sT0}, {sT0}, {sS}"); A(f"s_sub_u32 {sT0}, {sT0}, 6")
        A(f"s_lshr_b32 {sT1}, {sT0}, 3"); A(f"s_and_b32 {sBU}, {sT0}, 7")
        A(f"s_lshl_b32 {sBB}, {sT1}, 23"); A(f"s_add_u32 {sBB}, {sBB}, {28672*256}"); A(f"s_lshl_b32 {sT2}, {sBU}, 12"); A(f"s_add_u32 {sBB}, {sBB}, {sT2}")
        A(f"s_mul_i32 {sBJ}, {sT0}, {brot}"); A(f"s_add_u32 {sBJ}, {sBJ}, {sWAVE}")
        def boff4():
            A(f"s_and_b32 {sKOFF}, {sBJ}, 31"); A(f"s_lshl_b32 {sKOFF}, {sKOFF}, 15"); A(f"s_add_u32 {sKOFF}, {sKOFF}, {sBB}"); A(f"s_add_u32 {sBJ}, {sBJ}, 4")
        for sl in range(4):
            boff4(); issue_k(sl, sKOFF); issue_v(sl, sKOFF)
        masks()
        QBp = [vQ, 192]
        stO = [vO, 208]; stS = [vS, 212]; stP = [vP, 216]; stm = [vm, 220]; stl = [vl, 221]
        for pp in range(2):
            A(f"v_mov_b32 v{stm[pp]}, 0xff800000"); A(f"v_mov_b32 v{stl[pp]}, 0")
            for r in range(4): A(f"v_mov_b32 v{stO[pp]+r}, 0")
        A(f"v_lshrrev_b32 v{vt3}, 3, v{vN}"); A(f"v_lshlrev_b32 v{vt3}, 8, v{vt3}"); A(f"v_lshl_add_u32 v{vt3}, v{vG}, 4, v{vt3}")
        A("s_barrier")
        for pp in range(2):
            for i in range(4): A(f"ds_read_b128 {vr(QBp[pp]+4*i,4)}, v{vt3} offset:{L_QB + pp*512 + i*64}")
        A("s_waitcnt lgkmcnt(0)")
        for i in range(8):
            sl = i % 4
            A("s_waitcnt vmcnt(28)")
            for pp in range(2):
                for q in range(4): mfma(stS[pp], kreg(sl, q), QBp[pp] + 4 * q, None if q == 0 else stS[pp])
            if i < 4: boff4()
            elif i == 4:
                srd(SK, 34, 0x10000000); srd(SV, 36, 0x10000000); A(f"s_mov_b32 {sKOFF}, {sAK}")
            else: A(f"s_add_u32 {sKOFF}, {sKOFF}, {NSW*4096}")
            issue_k(sl, sKOFF)
            for pp in range(2): softmax_update(stS[pp], stP[pp], stm[pp], stl[pp], stO[pp], vt0, vt1, vt2)
            A("s_waitcnt vmcnt(28)")
            for pp in range(2): pv(stO[pp], stP[pp], lambda t: vreg(sl, t))
            issue_v(sl, sKOFF)
        A(f"v_and_b32 v{vt1}, 7, v{vN}"); A(f"v_lshl_add_u32 v{vt1}, v{vG}, 5, v{vt1}"); A(f"v_lshrrev_b32 v{vt2}, 3, v{vN}"); A(f"v_lshl_add_u32 v{vt1}, v{vt2}, 7, v{vt1}")
        A(f"v_lshlrev_b32 v{vt1}, 2, v{vt1}"); A(f"s_lshl_b32 {sT0}, {sWAVE}, 11"); A(f"v_add_u32 v{vt1}, {sT0}, v{vt1}")
        A(f"v_lshlrev_b32 v{vt2}, 3, v{vt2}"); A(f"s_lshl_b32 {sT0}, {sWAVE}, 5"); A(f"v_add_u32 v{vt2}, {sT0}, v{vt2}")
        for pp in range(2):
            xgroup_reduce("v_add_f32", stl[pp], vt0)
            for r in range(4): A(f"ds_write_b32 v{vt1}, v{stO[pp]+r} offset:{L_OBW + pp*1024 + r*32}")
            A(f"ds_write_b64 v{vt2}, {vr(stm[pp],2)} offset:{L_MLB + pp*16}")
        A(f"v_mov_b32 v{vCA}, 0"); A(f"v_mov_b32 v{vONE}, 1")
        A("s_waitcnt lgkmcnt(0)")
        A("s_mov_b64 exec, 1")
        A(f"ds_add_u32 v{vCA}, v{vONE} offset:{L_BD}")
        A("s_mov_b64 exec, -1")
        A(f"v_mov_b32 v{vm}, 0xff800000"); A(f"v_mov_b32 v{vl}, 0")
        for r in range(4): A(f"v_mov_b32 v{vO+r}, 0")
        A(f"s_mov_b32 {sSTOP}, 0"); A(f"s_mov_b32 {sDB}, -1"); A(f"s_mov_b32 {sDN}, 0")
        A(f"v_lshlrev_b32 v{vt3}, 4, v{vG}")
        A("s_branch L_s_join2")

    A.label("L_service")
    cur[0] = bflags
    sreg[0], sreg[1] = 254, 255
    A("s_setprio 3")
    srd(SDBG, 54, 256)
    A(f"v_mov_b32 v{vt1}, 0")
    A(f"s_cmp_lg_u32 {sWG}, 0"); A("s_cbranch_scc1 L_v_noep0")
    A("s_memrealtime s[90:91]")
    A("s_waitcnt lgkmcnt(0)")
    A(f"s_max_u32 {sE}, s90, 1")
    A(f"v_mov_b32 v{vt0}, {sE}")
    A("s_mov_b64 exec, 1")
    A(f"buffer_store_dword v{vt0}, v{vt1}, {SDBG}, 0 offen sc1")
    A("s_mov_b64 exec, -1")
    A.label("L_v_noep0")
    masks()
    A(f"v_mov_b32 v{vt0}, {(D+XS)*NSW}"); A(f"v_mov_b32 v{vt1}, 0"); A(f"v_mov_b32 v{vt2}, -1")
    A(f"ds_write_b32 v{vt1}, v{vt0} offset:{L_CNT}")
    A(f"ds_write_b32 v{vt1}, v{vt2} offset:{L_DYN}")
    A(f"ds_write_b32 v{vt1}, v{vt1} offset:{L_BD}")
    A(f"s_mov_b32 {sTO}, {TMO}")
    A.label("L_ep_loop")
    A(f"buffer_load_dword v{vt0}, v{vt1}, {SDBG}, 0 offen sc1")
    A("s_waitcnt vmcnt(0)")
    A(f"v_readfirstlane_b32 {sE}, v{vt0}")
    A("s_nop 3")
    A(f"s_cmp_lg_u32 {sE}, 0"); A("s_cbranch_scc1 L_ep_done")
    A(f"s_sleep {sleep}")
    A(f"s_sub_u32 {sTO}, {sTO}, 1"); A(f"s_cmp_lg_u32 {sTO}, 0"); A("s_cbranch_scc1 L_ep_loop")
    A.label("L_ep_done")
    stamp(11)
    vLO8 = vt5
    A(f"v_lshlrev_b32 v{vLO8}, 3, v{vLANE}")
    A(f"s_cmp_ge_u32 {sS}, 4"); A("s_cbranch_scc1 L_v_noprod3")
    A(f"v_and_b32 v{vt1}, 31, v{vLANE}"); A(f"v_lshlrev_b32 v{vt1}, 3, v{vt1}")
    A(f"s_lshr_b32 {sT0}, {sS}, 1"); A(f"s_lshl_b32 {sT0}, {sT0}, 5"); A(f"s_add_u32 {sT0}, {sT0}, {sH}"); A(f"s_lshl_b32 {sT0}, {sT0}, 9")
    A(f"s_and_b32 {sT1}, {sS}, 1"); A(f"s_lshl_b32 {sT1}, {sT1}, 8"); A(f"s_add_u32 {sT0}, {sT0}, {sT1}"); A(f"s_add_u32 {sT0}, {sT0}, {WS_QF}")
    A("s_barrier")
    for k in range(2*NSW): A(f"ds_read_b64 {vr(WQ+2*k,2)}, v{vt1} offset:{L_QPART + k*256}")
    A("s_waitcnt lgkmcnt(0)")
    for k in range(1, 2*NSW):
        A(f"v_add_f32 v{WQ}, v{WQ}, v{WQ+2*k}"); A(f"v_add_f32 v{WQ+1}, v{WQ+1}, v{WQ+2*k+1}")
    A(f"v_cvt_pk_bf16_f32 v{vB0}, v{WQ}, v{WQ+1}"); A(f"v_mov_b32 v{vB0+1}, {sE}")
    A("s_mov_b32 exec_hi, 0")
    A(f"buffer_store_dwordx2 {vr(vB0,2)}, v{vt1}, {SWS}, {sT0} offen sc1")
    A("s_mov_b64 exec, -1")
    stamp(3)
    A.label("L_v_noprod3")
    A(f"s_lshl_b32 {sT0}, {sH}, 9"); A(f"s_add_u32 {sT0}, {sT0}, {WS_QF}")
    lab = poll_begin()
    A(f"buffer_load_dwordx2 {vr(vQ,2)}, v{vLO8}, {SWS}, {sT0} offen sc1")
    poll_end(lab, [vQ + 1], sleep)
    A(f"v_lshlrev_b32 v{vt2}, 2, v{vLANE}")
    A(f"ds_write_b32 v{vt2}, v{vQ} offset:{L_QA}")
    A(f"v_mov_b32 v{vt0}, {sE}"); A(f"v_mov_b32 v{vt1}, 0")
    A(f"ds_write_b32 v{vt1}, v{vt0} offset:{L_EP}")
    if bstream and not noB:
        A(f"s_cmp_lt_u32 {sS}, 6"); A("s_cbranch_scc1 L_v_noqb")
        A(f"s_lshr_b32 {sT0}, {sH}, 2"); A(f"s_lshl_b32 {sT0}, {sT0}, 11"); A(f"s_add_u32 {sT0}, {sT0}, {WS_QF + 32*512}")
        lab = poll_begin()
        for hh in range(4):
            A(f"buffer_load_dwordx2 {vr(vQ+2*hh,2)}, v{vLO8}, {SWS}, {sT0} offen offset:{hh*512} sc1")
        poll_end(lab, [vQ + 2 * hh + 1 for hh in range(4)], sleep)
        for hh in range(4): A(f"ds_write_b32 v{vt2}, v{vQ+2*hh} offset:{L_QB + hh*256}")
        A.label("L_v_noqb")
    A("s_waitcnt lgkmcnt(0)")
    A("s_barrier")
    if noB:
        A("s_barrier"); A("s_endpgm")
    PBR = 64
    A(f"s_cmp_lt_u32 {sS}, 6"); A("s_cbranch_scc1 L_v_noB")
    if bstream:
        A(f"s_lshl_b32 {sT0}, {sH}, 1"); A(f"s_add_u32 {sT0}, {sT0}, {sS}"); A(f"s_sub_u32 {sT0}, {sT0}, 6"); A(f"s_and_b32 {sBU}, {sT0}, 7")
        A(f"v_mov_b32 v{vt1}, 0"); A(f"s_mov_b32 {sTO}, {TMO}")
        A.label("L_v_bd")
        A(f"ds_read_b32 v{vt0}, v{vt1} offset:{L_BD}")
        A("s_waitcnt lgkmcnt(0)")
        A(f"v_readfirstlane_b32 {sT0}, v{vt0}")
        A("s_nop 3")
        A(f"s_cmp_ge_u32 {sT0}, {NSW}"); A("s_cbranch_scc1 L_v_bdok")
        A("s_sleep 16")
        A(f"s_sub_u32 {sTO}, {sTO}, 1"); A(f"s_cmp_lg_u32 {sTO}, 0"); A("s_cbranch_scc1 L_v_bd")
        A.label("L_v_bdok")
        stamp(10)
        for hh in range(4):
            MW = 128; OW = 144
            for w in range(4):
                A(f"ds_read_b64 {vr(MW+2*w,2)}, v{vt1} offset:{L_MLB + w*32 + hh*8}")
                A(f"ds_read_b64 {vr(OW+2*w,2)}, v{vLO8} offset:{L_OBW + w*2048 + hh*512}")
            A("s_waitcnt lgkmcnt(0)")
            A(f"v_max_f32 v{vt0}, v{MW}, v{MW+2}"); A(f"v_max3_f32 v{vt0}, v{MW+4}, v{MW+6}, v{vt0}")
            for w in range(4): A(f"v_sub_f32 v{MW+2*w}, v{MW+2*w}, v{vt0}")
            for w in range(4): A(f"v_mul_f32 v{MW+2*w}, {sC}, v{MW+2*w}")
            for w in range(4): A(f"v_exp_f32 v{MW+2*w}, v{MW+2*w}")
            A("s_nop 0")
            R = PBR + hh * 4
            A(f"v_mul_f32 v{R}, v{OW}, v{MW}"); A(f"v_mul_f32 v{R+2}, v{OW+1}, v{MW}"); A(f"v_mul_f32 v{vt2}, v{MW+1}, v{MW}")
            for w in range(1, 4):
                A(f"v_fma_f32 v{R}, v{OW+2*w}, v{MW+2*w}, v{R}"); A(f"v_fma_f32 v{R+2}, v{OW+2*w+1}, v{MW+2*w}, v{R+2}"); A(f"v_fma_f32 v{vt2}, v{MW+2*w+1}, v{MW+2*w}, v{vt2}")
            A(f"v_mov_b32 v{R+1}, {sE}"); A(f"v_mov_b32 v{R+3}, {sE}")
            RM = PBR + 16 + (hh // 2) * 4
            if hh % 2 == 0:
                A(f"v_mov_b32 v{RM}, v{vt0}"); A(f"v_mov_b32 v{RM+2}, v{vt2}"); A(f"v_mov_b32 v{RM+1}, {sE}"); A(f"v_mov_b32 v{RM+3}, {sE}")
            else:
                A(f"v_cndmask_b32 v{RM}, v{RM}, v{vt0}, {sHALF}"); A(f"v_cndmask_b32 v{RM+2}, v{RM+2}, v{vt2}, {sHALF}")
    else:
        srd(SK, 44, 0x4000000); srd(SV, 46, 0x4000000)
        A(f"s_lshl_b32 {sT0}, {sH}, 1"); A(f"s_add_u32 {sT0}, {sT0}, {sS}"); A(f"s_sub_u32 {sT0}, {sT0}, 6")
        A(f"s_lshr_b32 {sT1}, {sT0}, 3"); A(f"s_and_b32 {sBU}, {sT0}, 7")
        A(f"s_lshl_b32 {sBB}, {sT1}, 23"); A(f"s_add_u32 {sBB}, {sBB}, {28672*256}"); A(f"s_lshl_b32 {sT2}, {sBU}, 12"); A(f"s_add_u32 {sBB}, {sBB}, {sT2}")
        A(f"s_mul_i32 {sBJ}, {sT0}, {brot}")
        A(f"s_mov_b32 {sBN}, 28")
        A(f"s_mov_b32 {sNREC}, 0x4000000")
        def boff():
            A(f"s_and_b32 {sKOFF}, {sBJ}, 31"); A(f"s_lshl_b32 {sKOFF}, {sKOFF}, 15"); A(f"s_add_u32 {sKOFF}, {sKOFF}, {sBB}"); A(f"s_add_u32 {sBJ}, {sBJ}, 1")
        for s in range(4):
            boff(); issue_k(s, sKOFF); issue_v(s, sKOFF)
        A(f"s_lshl_b32 {sT0}, {sT1}, 11"); A(f"s_add_u32 {sT0}, {sT0}, {WS_QF + 32*512}")
        lab = poll_begin()
        for hh in range(4):
            A(f"buffer_load_dwordx2 {vr(vQ+2*hh,2)}, v{vLO8}, {SWS}, {sT0} offen offset:{hh*512} sc1")
        poll_end(lab, [vQ + 2 * hh + 1 for hh in range(4)], 16)
        for hh in range(4): A(f"ds_write_b32 v{vt2}, v{vQ+2*hh} offset:{L_QB + hh*256}")
        A("s_waitcnt lgkmcnt(0)")
        QBp = [vQ, WQ]
        stO = [vO, 232]; stS = [vS, 236]; stP = [vP, 240]; stm = [vm, 244]; stl = [vl, 245]
        A(f"v_lshrrev_b32 v{vt3}, 3, v{vN}"); A(f"v_lshlrev_b32 v{vt3}, 8, v{vt3}"); A(f"v_lshl_add_u32 v{vt3}, v{vG}, 4, v{vt3}")
        for pp in range(2):
            for i in range(4): A(f"ds_read_b128 {vr(QBp[pp]+4*i,4)}, v{vt3} offset:{L_QB + pp*512 + i*64}")
            A(f"v_mov_b32 v{stm[pp]}, 0xff800000"); A(f"v_mov_b32 v{stl[pp]}, 0")
            for r in range(4): A(f"v_mov_b32 v{stO[pp]+r}, 0")
        A("s_waitcnt lgkmcnt(0)")
        stamp(4)
        A.label("L_bloop")
        for s in range(4):
            A("s_waitcnt vmcnt(28)")
            for pp in range(2):
                for i in range(4): mfma(stS[pp], kreg(s, i), QBp[pp] + 4 * i, None if i == 0 else stS[pp])
            A(f"s_cmp_gt_i32 {sBN}, 0"); A(f"s_cselect_b32 s6, {sNREC}, 0"); A(f"s_cselect_b32 s10, {sNREC}, 0")
            boff(); issue_k(s, sKOFF)
            for pp in range(2): softmax_update(stS[pp], stP[pp], stm[pp], stl[pp], stO[pp], vt0, vt1, vt2)
            A("s_waitcnt vmcnt(28)")
            for pp in range(2): pv(stO[pp], stP[pp], lambda t: vreg(s, t))
            issue_v(s, sKOFF)
            A(f"s_sub_u32 {sBN}, {sBN}, 1")
        A(f"s_cmp_gt_i32 {sBN}, -4"); A("s_cbranch_scc1 L_bloop")
        stamp(10)
        A("s_waitcnt vmcnt(0)")
        A(f"v_and_b32 v{vt1}, 7, v{vN}"); A(f"v_lshl_add_u32 v{vt1}, v{vG}, 5, v{vt1}"); A(f"v_lshrrev_b32 v{vt2}, 3, v{vN}"); A(f"v_lshl_add_u32 v{vt1}, v{vt2}, 7, v{vt1}")
        A(f"v_lshlrev_b32 v{vt1}, 2, v{vt1}")
        A("s_nop 3")
        for pp in range(2):
            for r in range(4): A(f"ds_write_b32 v{vt1}, v{stO[pp]+r} offset:{L_OB + pp*1024 + r*32}")
            xgroup_reduce("v_add_f32", stl[pp], vt0)
            R = PBR + 16 + pp * 4
            A(f"v_mov_b32 v{R}, v{stm[pp]}"); A(f"v_mov_b32 v{R+1}, {sE}"); A(f"v_mov_b32 v{R+2}, v{stl[pp]}"); A(f"v_mov_b32 v{R+3}, {sE}")
        A("s_waitcnt lgkmcnt(0)")
        for hh in range(4): A(f"ds_read_b64 {vr(vQ+2*hh,2)}, v{vLO8} offset:{L_OB + hh*512}")
        A("s_waitcnt lgkmcnt(0)")
        for hh in range(4):
            R = PBR + hh * 4
            A(f"v_mov_b32 v{R}, v{vQ+2*hh}"); A(f"v_mov_b32 v{R+1}, {sE}"); A(f"v_mov_b32 v{R+2}, v{vQ+2*hh+1}"); A(f"v_mov_b32 v{R+3}, {sE}")
    sPB0, sPB1, sML0 = "s76", "s77", "s78"
    vBML = 88
    A(f"s_lshr_b32 {sT0}, {sH}, 2"); A(f"s_lshl_b32 {sT0}, {sT0}, 5"); A(f"s_add_u32 {sT0}, {sT0}, {sBU}"); A(f"s_add_u32 {sT0}, {sT0}, 256")
    A(f"s_lshl_b32 {sPB0}, {sT0}, 10"); A(f"s_add_u32 {sPB0}, {sPB0}, {WS_P}")
    A(f"s_lshl_b32 {sML0}, {sT0}, 4"); A(f"s_add_u32 {sML0}, {sML0}, {WS_ML}")
    A.label("L_v_noB")
    sreg[0], sreg[1] = 20, 21
    A(f"v_lshrrev_b32 v{vBML}, 3, v{vN}"); A(f"v_lshlrev_b32 v{vBML}, 7, v{vBML}")
    def pb_publish(lab):
        A(f"s_cmp_lt_u32 {sS}, 6"); A(f"s_cbranch_scc1 {lab}")
        for hh in range(4):
            A(f"buffer_store_dwordx4 {vr(PBR+hh*4,4)}, v{vA16}, {SWS}, {sPB0} offen sc1")
            if hh < 3: A(f"s_add_u32 {sPB0}, {sPB0}, 8192")
        A("s_mov_b64 exec, 0x101")
        for pp in range(2):
            A(f"buffer_store_dwordx4 {vr(PBR+16+pp*4,4)}, v{vBML}, {SWS}, {sML0} offen offset:{pp*256} sc1")
        A("s_mov_b64 exec, -1")
        A.label(lab)
    def cntwait(thr_s):
        l1 = A.newlabel("L_cw"); l2 = A.newlabel("L_cwok")
        A(f"v_mov_b32 v{vt1}, 0"); A(f"s_mov_b32 {sTO}, {TMO}")
        A.label(l1)
        A(f"ds_read_b32 v{vt0}, v{vt1} offset:{L_CNT}")
        A("s_waitcnt lgkmcnt(0)")
        A(f"v_readfirstlane_b32 {sT0}, v{vt0}")
        A("s_nop 3")
        A(f"s_cmp_ge_u32 {sT0}, {thr_s}"); A(f"s_cbranch_scc1 {l2}")
        A(f"s_sleep {bsl}")
        A(f"s_sub_u32 {sTO}, {sTO}, 1"); A(f"s_cmp_lg_u32 {sTO}, 0"); A(f"s_cbranch_scc1 {l1}")
        A.label(l2)
    sK1, sTT1 = "s80", "s81"
    A(f"s_mov_b32 {sHD}, {sH}")
    tail_prep()
    if diag:
        A("s_mov_b32 s101, 0")
        A(f"s_cmp_lg_u32 {sWG}, 68"); A("s_cbranch_scc1 L_nodiag")
        cntwait(32)
        A("s_memrealtime s[90:91]"); A("s_waitcnt lgkmcnt(0)"); A("s_mov_b32 s100, s90")
        for wi, thr in enumerate((80, 128, 176)):
            cntwait(thr)
            A("s_memrealtime s[90:91]"); A("s_waitcnt lgkmcnt(0)")
            A("s_sub_u32 s99, s90, s100"); A("s_mov_b32 s100, s90")
            A("s_sub_i32 s99, s99, 1280"); A("s_max_i32 s99, s99, 0")
            A("s_lshr_b32 s99, s99, 5"); A("s_min_u32 s99, s99, 7")
            A(f"s_mul_i32 s99, s99, {150 * 8**wi}"); A("s_add_u32 s101, s101, s99")
        A.label("L_nodiag")
    sSMP = "s79"
    A(f"s_mov_b32 {sSMP}, {sSTC}")
    if ilv:
        A(f"s_cmp_lt_u32 {sS}, 4"); A(f"s_cselect_b32 {sT0}, {KP}, 0"); A(f"s_cmp_ge_u32 {sS}, 6"); A(f"s_cselect_b32 {sT0}, {KB}, {sT0}"); A(f"s_sub_u32 {sSMP}, {sSTC}, {sT0}")
    A(f"s_sub_u32 {sT3}, {sSMP}, {K1}")
    cntwait(sT3)
    A("s_memrealtime s[90:91]"); A(f"s_mov_b32 {sK1}, {sT0}"); A("s_waitcnt lgkmcnt(0)"); A(f"s_mov_b32 {sTT1}, s90")
    A(f"s_sub_u32 {sT3}, {sSMP}, {K2}"); A(f"s_add_u32 {sT1}, {sK1}, 16"); A(f"s_max_u32 {sT3}, {sT3}, {sT1}"); A(f"s_min_u32 {sT3}, {sT3}, {sSTC}")
    cntwait(sT3)
    A("s_memrealtime s[90:91]"); A("s_waitcnt lgkmcnt(0)")
    A(f"s_sub_u32 {sT1}, {sT0}, {sK1}"); A(f"s_max_u32 {sT1}, {sT1}, 1")
    A(f"s_sub_u32 {sT2}, s90, {sTT1}")
    A(f"s_max_u32 {sT2}, {sT2}, 1")
    A(f"s_sub_u32 {sT3}, s90, {sE}")
    A(f"s_sub_i32 {sT0}, {sSTC}, {sT0}")
    A(f"v_cvt_f32_u32 v{vt0}, {sT1}"); A(f"v_cvt_f32_u32 v{vt1}, {sT2}"); A(f"v_cvt_f32_u32 v{vt2}, {sT3}"); A(f"v_cvt_f32_i32 v{vt3}, {sT0}")
    A(f"v_rcp_f32 v{vt4}, v{vt1}"); A(f"v_rcp_f32 v{vT}, v{vt0}"); A("s_nop 0")
    A(f"v_mul_f32 v{vB0}, v{vt0}, v{vt4}")
    A(f"v_mul_f32 v{vT}, v{vT}, v{vt1}")
    A(f"v_fma_f32 v{vB0+2}, v{vt3}, v{vT}, v{vt2}")
    A(f"v_mov_b32 v{vB0+1}, {sE}"); A(f"v_mov_b32 v{vB0+3}, {sE}")
    A(f"s_lshl_b32 {sT2}, {sH}, 7"); A(f"s_add_u32 {sT2}, {sT2}, {WS_BAL}"); A(f"s_lshl_b32 {sT1}, {sS}, 4"); A(f"s_add_u32 {sT1}, {sT1}, {sT2}")
    A(f"v_mov_b32 v{vt1}, 0")
    A("s_mov_b64 exec, 1")
    A(f"buffer_store_dwordx4 {vr(vB0,4)}, v{vt1}, {SWS}, {sT1} offen sc1")
    A("s_mov_b64 exec, -1")
    pb_publish("L_v_pbdone")
    lab = poll_begin()
    A(f"buffer_load_dwordx4 {vr(vML,4)}, v{vAML}, {SWS}, {sT2} offen sc1")
    poll_end(lab, [vML + 1, vML + 3], 4)
    def bsum8(v):
        A("s_nop 1"); A(f"v_add_f32_dpp v{v}, v{v}, v{v} quad_perm:[1,0,3,2] {DPP}")
        A("s_nop 1"); A(f"v_add_f32_dpp v{v}, v{v}, v{v} quad_perm:[2,3,0,1] {DPP}")
        A("s_nop 1"); A(f"v_add_f32_dpp v{v}, v{v}, v{v} row_half_mirror {DPP}")
    A(f"v_mov_b32 v{vt0}, v{vML}"); A(f"v_mul_f32 v{vt1}, v{vML}, v{vML+2}")
    bsum8(vt0); bsum8(vt1)
    A(f"v_add_f32 v{vt1}, {hex(f2u(float(RT)))}, v{vt1}")
    A(f"v_rcp_f32 v{vt0}, v{vt0}"); A("s_nop 0")
    A(f"v_mul_f32 v{vt1}, v{vt1}, v{vt0}")
    A(f"v_sub_f32 v{vt1}, v{vt1}, v{vML+2}"); A(f"v_mul_f32 v{vt1}, v{vt1}, v{vML}")
    A(f"v_max_f32 v{vt1}, 0, v{vt1}")
    A(f"v_min_f32 v{vt1}, {hex(f2u(4096.0))}, v{vt1}")
    A(f"v_add_f32 v{vt1}, {hex(f2u(1e-3))}, v{vt1}")
    for sh in (1, 2, 4):
        A("s_nop 1"); A(f"v_add_f32_dpp v{vt1}, v{vt1}, v{vt1} row_shr:{sh} row_mask:0xf bank_mask:0xf bound_ctrl:0")
    A("s_nop 1")
    A(f"v_readlane_b32 {sT0}, v{vt1}, 7"); A("s_nop 1")
    A(f"v_rcp_f32 v{vt0}, {sT0}"); A("s_nop 0")
    A(f"v_mul_f32 v{vt0}, {hex(f2u(float(RT)))}, v{vt0}")
    A(f"v_mul_f32 v{vt1}, v{vt1}, v{vt0}"); A(f"v_rndne_f32 v{vt1}, v{vt1}"); A(f"v_cvt_u32_f32 v{vt1}, v{vt1}")
    A(f"v_min_u32 v{vt1}, {RT}, v{vt1}")
    A(f"s_sub_u32 {sT1}, {sS}, 1"); A(f"s_and_b32 {sT1}, {sT1}, 7"); A("s_nop 1")
    A(f"v_readlane_b32 {sT2}, v{vt1}, {sS}"); A(f"v_readlane_b32 {sT3}, v{vt1}, {sT1}")
    A("s_nop 3")
    A(f"s_cmp_eq_u32 {sS}, 7"); A(f"s_cselect_b32 {sT2}, {RT}, {sT2}")
    A(f"s_cmp_eq_u32 {sS}, 0"); A(f"s_cselect_b32 {sT3}, 0, {sT3}")
    A(f"s_sub_u32 {sT2}, {sT2}, {sT3}")
    A(f"s_add_u32 {sT3}, {sT3}, {DYN0}")
    A(f"v_mov_b32 v{vt2}, {sT3}"); A(f"v_mov_b32 v{vt3}, {sT2}"); A(f"v_mov_b32 v{vt1}, 0")
    A(f"ds_write_b64 v{vt1}, {vr(vt2,2)} offset:{L_DYN}")
    if ts:
        A(f"s_lshl_b32 s92, s2, 6"); A(f"s_add_u32 s92, s92, {WS_TS + 0x200000}")
        A(f"buffer_store_dword v{vt3}, v{vt1}, {SWS}, s92 offen")
    stamp(9)
    A(f"s_add_u32 {sT3}, {sT2}, {sSTC}"); A(f"s_add_u32 {sT3}, {sT3}, {X2}")
    cntwait(sT3)
    wo_issue(40)
    A(f"v_mov_b32 v{vt2}, 0")
    A(f"s_lshl_b32 {sT0}, {sH}, 3"); A(f"s_add_u32 {sT0}, {sT0}, {sS}"); A(f"s_lshl_b32 {sT1}, {sT0}, 4"); A(f"s_lshl_b32 {sT0}, {sT0}, 10")
    A(f"s_add_u32 {sT0}, {sT0}, {WS_P}"); A(f"s_add_u32 {sT1}, {sT1}, {WS_ML}")
    A(f"v_mov_b32 v{vB0+1}, {sE}"); A(f"v_mov_b32 v{vB0+3}, {sE}"); A(f"v_mov_b32 v{vB1+1}, {sE}"); A(f"v_mov_b32 v{vB1+3}, {sE}")
    A("s_barrier")
    stamp(8)
    MLW = PO + 16
    for w in range(NSW):
        A(f"ds_read_b64 {vr(MLW+2*w,2)}, v{vt2} offset:{L_ML + w*8}")
    for w in range(NSW):
        A(f"ds_read_b64 {vr(PO+2*w,2)}, v{vA8} offset:{L_OPART + w*512}")
    A(f"s_waitcnt lgkmcnt({NSW})")
    A(f"v_max_f32 v{vB1}, v{MLW}, v{MLW+2}")
    A(f"v_max3_f32 v{vB1}, v{MLW+4}, v{MLW+6}, v{vB1}")
    for w in range(NSW): A(f"v_sub_f32 v{MLW+2*w}, v{MLW+2*w}, v{vB1}")
    for w in range(NSW): A(f"v_mul_f32 v{MLW+2*w}, {sC}, v{MLW+2*w}")
    for w in range(NSW): A(f"v_exp_f32 v{MLW+2*w}, v{MLW+2*w}")
    A("s_waitcnt lgkmcnt(0)")
    A(f"v_mul_f32 v{vB0}, v{PO}, v{MLW}"); A(f"v_mul_f32 v{vB0+2}, v{PO+1}, v{MLW}"); A(f"v_mul_f32 v{vB1+2}, v{MLW+1}, v{MLW}")
    for w in range(1, NSW):
        A(f"v_fma_f32 v{vB0}, v{PO+2*w}, v{MLW+2*w}, v{vB0}"); A(f"v_fma_f32 v{vB0+2}, v{PO+2*w+1}, v{MLW+2*w}, v{vB0+2}")
        A(f"v_fma_f32 v{vB1+2}, v{MLW+2*w+1}, v{MLW+2*w}, v{vB1+2}")
    A(f"buffer_store_dwordx4 {vr(vB0,4)}, v{vA16}, {SWS}, {sT0} offen sc1")
    A("s_mov_b64 exec, 1")
    A(f"buffer_store_dwordx4 {vr(vB1,4)}, v{vt2}, {SWS}, {sT1} offen sc1")
    A("s_mov_b64 exec, -1")
    A.label("L_tail")
    tail()
    A.label("L_end")
    A("s_endpgm")

    out = HEADER + f"; @launch grid=(256,1,1) block=({(NSW+1)*64},1,1) lds={LDS_SIZE}\n"
    out += '.amdgcn_target "amdgcn-amd-amdhsa--gfx950"\n.text\n' + f".globl {KNAME}\n.p2align 8\n.type {KNAME},@function\n{KNAME}:\n"
    out += "\n".join(A.L) + "\n"
    out += f""".section .rodata,"a"
.p2align 6
.amdhsa_kernel {KNAME}
  .amdhsa_next_free_vgpr 256
  .amdhsa_next_free_sgpr 102
  .amdhsa_accum_offset 256
  .amdhsa_group_segment_fixed_size 0
  .amdhsa_kernarg_size 104
  .amdhsa_user_sgpr_count 2
  .amdhsa_user_sgpr_kernarg_segment_ptr 1
  .amdhsa_system_sgpr_workgroup_id_x 1
.end_amdhsa_kernel
"""
    return out

if __name__ == "__main__":
    cfg = json.loads(sys.argv[2]) if len(sys.argv) > 2 else {}
    open(sys.argv[1], "w").write(gen(**cfg))
```

```python
import sys, json, math, struct
from gen import HEADER, KNAME, G, vr, f2u, CSCALE

WS_CNT  = 0x1000
WS_QF   = 0x10000
WS_BAL  = 0x18000
WS_ML   = 0x20000
WS_P    = 0x100000
WS_Y    = 0x200000
WS_TS   = 0x800000
WS_SIZE = 0x1000000

L_QPART = 0
L_QA    = 4096
L_QB    = 4352
L_OPART = 6144
L_OB    = 8192
L_ML    = 10240
L_CNT   = 10304
L_EP    = 10312
L_DYN   = 10320
L_BD    = 10328
L_MLB   = 10496
L_OBW   = 12288
LDS_SIZE = 20480

def gen(ts=False, kflags="nt", sleep=2, tsleep=1, hmap=1, ST=224, noB=False, D=4, pbthr=0, TMO=0x8000, NSW=4, brot=5, STR=None, xflag=True, early=False, X1=16, X2=0, bsl=4, latewo=3, K1=64, K2=24, XS=0, ilv=False, KB=32, KP=8, fixed=0, drain=True, WOK=0, pp2=False, stag=4, diag=0, bflags=None, wflags=None, bstream=True, dg2=None):
    A = G()
    if STR is None: STR = [ST] * 3
    roles = True
    RT = 2048 - (4 * STR[0] + 2 * STR[1] + 2 * STR[2])
    DYN0 = 2048 - RT
    sreg = [54, 55]
    sWG, sWAVE = "s2", "s3"
    SK, SV, SW, SWS, SX, SDBG, SOUT = "s[4:7]", "s[8:11]", "s[12:15]", "s[16:19]", "s[20:23]", "s[24:27]", "s[28:31]"
    sC = "s58"; sHD = "s59"; sH, sS = "s60", "s61"; sKOFF = "s62"; sSTOP = "s63"; sCOFF = "s64"
    sT0, sT1, sT2, sT3 = "s65", "s66", "s67", "s68"
    sE = "s69"; sSELLO, sSELHI = "s70", "s71"; sHALF = "s[72:73]"; sTO = "s74"; sNREC = "s75"
    sVAL = 76
    sBASE, sSB, sBB, sBU, sBJ, sBN = "s95", "s96", "s97", "s98", "s99", "s100"
    sSTC = "s93"
    vLANE, vN, vG, vKO, vVO = 0, 1, 2, 3, 4
    vM = 5; vT = 9
    vQ = 12; vO = 28; vS = 32; vP = 36; vB0 = 40; vB1 = 44; vm = 48; vl = 49
    vt0, vt1, vt2, vt3, vt4, vt5 = 50, 51, 52, 53, 54, 55
    vX = 56; vML = 60
    RING = 64
    def kreg(slot, i): return RING + slot * 32 + i * 4
    def vreg(slot, i): return RING + slot * 32 + 16 + i * 4
    WQ = 192
    WO = 192; PO = RING + 64
    assert D <= 4
    DPP = "row_mask:0xf bank_mask:0xf"

    def srd(dst, ptr_lo, nbytes):
        b = int(dst[2:].split(":")[0])
        A(f"s_mov_b32 s{b}, s{ptr_lo}"); A(f"s_mov_b32 s{b+1}, s{ptr_lo+1}")
        A(f"s_mov_b32 s{b+2}, {hex(nbytes)}"); A(f"s_mov_b32 s{b+3}, 0x00020000")
    def stamp(idx):
        if not ts: return
        A("s_memrealtime s[90:91]")
        A("s_lshl_b32 s92, s2, 3"); A("s_add_u32 s92, s92, s3"); A("s_lshl_b32 s92, s92, 6")
        A(f"s_add_u32 s92, s92, {WS_TS + idx*4}")
        A("s_waitcnt lgkmcnt(0)")
        A(f"v_mov_b32 v{sreg[0]}, s90"); A(f"v_mov_b32 v{sreg[1]}, 0")
        A(f"buffer_store_dword v{sreg[0]}, v{sreg[1]}, {SWS}, s92 offen")
    def xgroup_reduce(op, v, tmp):
        A(f"v_mov_b32 v{tmp}, v{v}"); A("s_nop 1")
        A(f"v_permlane16_swap_b32 v{v}, v{tmp}")
        A(f"{op} v{v}, v{v}, v{tmp}")
        A(f"v_mov_b32 v{tmp}, v{v}"); A("s_nop 1")
        A(f"v_permlane32_swap_b32 v{v}, v{tmp}")
        A(f"{op} v{v}, v{v}, v{tmp}")
    def mfma(d, a, b, c):
        cs = "0" if c is None else vr(c, 4)
        A(f"v_mfma_f32_16x16x32_bf16 {vr(d,4)}, {vr(a,4)}, {vr(b,4)}, {cs}")
    def softmax_update(S, P, m, l, O, t0, t1, t2):
        A(f"v_max_f32 v{t0}, v{S}, v{S+1}")
        A(f"v_max3_f32 v{t0}, v{S+2}, v{S+3}, v{t0}")
        A(f"v_mov_b32 v{t1}, v{t0}"); A("s_nop 1")
        A(f"v_permlane16_swap_b32 v{t0}, v{t1}")
        A(f"v_max_f32 v{t0}, v{t0}, v{t1}")
        A(f"v_mov_b32 v{t1}, v{t0}"); A("s_nop 1")
        A(f"v_permlane32_swap_b32 v{t0}, v{t1}")
        A(f"v_max3_f32 v{t0}, v{t0}, v{t1}, v{m}")
        A(f"v_mul_f32 v{t1}, {sC}, v{t0}")
        A(f"v_fma_f32 v{t2}, v{m}, {sC}, -v{t1}")
        for r in range(4): A(f"v_fma_f32 v{P+r}, v{S+r}, {sC}, -v{t1}")
        A(f"v_exp_f32 v{t2}, v{t2}")
        for r in range(4): A(f"v_exp_f32 v{P+r}, v{P+r}")
        A(f"v_mov_b32 v{m}, v{t0}")
        A(f"v_fma_f32 v{l}, v{l}, v{t2}, v{P}")
        A(f"v_add_f32 v{t1}, v{P+1}, v{P+2}")
        for r in range(4): A(f"v_mul_f32 v{O+r}, v{O+r}, v{t2}")
        A(f"v_add_f32 v{l}, v{l}, v{P+3}")
        A(f"v_add_f32 v{l}, v{l}, v{t1}")
    def pv(O, P, vbase_fn):
        for t in range(4):
            B = vB0 if t % 2 == 0 else vB1
            A(f"v_cvt_pk_bf16_f32 v{vt0}, v{P+t}, v{P+t}")
            for r in range(4): A(f"v_and_b32 v{B+r}, v{vt0}, v{vM+r}")
            A("s_nop 1")
            mfma(O, vbase_fn(t), B, O)
    cur = [kflags]
    if wflags is None: wflags = kflags
    if bflags is None: bflags = kflags
    def issue_k(slot, soff):
        for i in range(4):
            A(f"buffer_load_dwordx4 {vr(kreg(slot,i),4)}, v{vKO}, {SK}, {soff} offen offset:{i*64} {cur[0]}")
    def issue_v(slot, soff):
        for i in range(4):
            A(f"buffer_load_dwordx4 {vr(vreg(slot,i),4)}, v{vVO}, {SV}, {soff} offen offset:{i*256} {cur[0]}")
    def poll_begin():
        lab = A.newlabel("L_poll")
        A(f"s_mov_b32 {sTO}, {TMO}")
        A.label(lab)
        return lab
    def poll_end(lab, tagregs, sl):
        done = A.newlabel("L_pdone")
        A("s_waitcnt vmcnt(0)")
        tr = list(tagregs)
        A(f"v_xor_b32 v{vt0}, {sE}, v{tr[0]}")
        k = 1
        while k < len(tr):
            if k + 1 < len(tr):
                A(f"v_xor_b32 v{vt1}, {sE}, v{tr[k]}"); A(f"v_xor_b32 v{vT}, {sE}, v{tr[k+1]}")
                A(f"v_or3_b32 v{vt0}, v{vt0}, v{vt1}, v{vT}"); k += 2
            else:
                A(f"v_xor_b32 v{vt1}, {sE}, v{tr[k]}"); A(f"v_or_b32 v{vt0}, v{vt0}, v{vt1}"); k += 1
        A(f"v_cmp_ne_u32 vcc, 0, v{vt0}")
        A("s_nop 4")
        A(f"s_cbranch_vccz {done}")
        while sl > 0:
            A(f"s_sleep {min(sl,127)}"); sl -= 127
        A(f"s_sub_u32 {sTO}, {sTO}, 1")
        A(f"s_cmp_lg_u32 {sTO}, 0")
        A(f"s_cbranch_scc1 {lab}")
        A.label(done)
    def tagcheck(tagregs):
        tr = list(tagregs)
        A(f"v_xor_b32 v{vt0}, {sE}, v{tr[0]}")
        k = 1
        while k < len(tr):
            if k + 1 < len(tr):
                A(f"v_xor_b32 v{vt1}, {sE}, v{tr[k]}"); A(f"v_xor_b32 v{vT}, {sE}, v{tr[k+1]}")
                A(f"v_or3_b32 v{vt0}, v{vt0}, v{vt1}, v{vT}"); k += 2
            else:
                A(f"v_xor_b32 v{vt1}, {sE}, v{tr[k]}"); A(f"v_or_b32 v{vt0}, v{vt0}, v{vt1}"); k += 1
        A(f"v_cmp_ne_u32 vcc, 0, v{vt0}")
        A("s_nop 4")
    def poll2(issue, tags, n, finish):
        lab = A.newlabel("L_pp"); d0 = A.newlabel("L_pp0"); d1 = A.newlabel("L_pp1"); dn = A.newlabel("L_ppd")
        A(f"s_mov_b32 {sTO}, {TMO}")
        issue(0)
        A(f"s_sleep {stag}")
        A.label(lab)
        issue(1)
        A(f"s_waitcnt vmcnt({n})")
        tagcheck(tags(0)); A(f"s_cbranch_vccz {d0}")
        issue(0)
        A(f"s_waitcnt vmcnt({n})")
        tagcheck(tags(1)); A(f"s_cbranch_vccz {d1}")
        A(f"s_sub_u32 {sTO}, {sTO}, 1"); A(f"s_cmp_lg_u32 {sTO}, 0"); A(f"s_cbranch_scc1 {lab}")
        A.label(d1)
        finish(1)
        A(f"s_branch {dn}")
        A.label(d0)
        finish(0)
        A.label(dn)
    def wo_issue(ptr_lo):
        srd(SW, ptr_lo, 0x400000)
        A(f"v_lshlrev_b32 v{vt1}, 14, v{vG}")
        A(f"v_lshl_add_u32 v{vt1}, v{vN}, 4, v{vt1}")
        A(f"s_lshl_b32 {sT0}, {sH}, 17")
        A(f"s_lshr_b32 {sT1}, {sS}, 2"); A(f"s_lshl_b32 {sT1}, {sT1}, 16"); A(f"s_add_u32 {sT0}, {sT0}, {sT1}")
        A(f"s_and_b32 {sT1}, {sS}, 3"); A(f"s_lshl_b32 {sT1}, {sT1}, 8"); A(f"s_add_u32 {sT0}, {sT0}, {sT1}")
        for a in range(4):
            if a: A(f"s_add_u32 {sT0}, {sT0}, 4096")
            for b in range(4):
                t = a * 4 + b
                A(f"buffer_load_dwordx4 {vr(WO+4*t,4)}, v{vt1}, {SW}, {sT0} offen offset:{b*1024} {wflags}")
    sPA0, sPA1, sMLA, sYP, sYG, sOUTO, sRED = "s84", "s85", "s86", "s87", "s88", "s89", "s94"
    vAML, vA8, vAY, vA16, vAO = 12, 13, 14, 15, 16
    def tail_prep():
        srd(SOUT, 52, 2048)
        A(f"v_and_b32 v{vAML}, 7, v{vLANE}"); A(f"v_lshlrev_b32 v{vAML}, 4, v{vAML}")
        A(f"v_lshlrev_b32 v{vA8}, 3, v{vLANE}")
        A(f"v_lshlrev_b32 v{vAY}, 4, v{vN}"); A(f"v_lshl_add_u32 v{vAY}, v{vG}, 14, v{vAY}")
        A(f"v_lshlrev_b32 v{vA16}, 4, v{vLANE}")
        A(f"v_and_b32 v{vAO}, 7, v{vN}"); A(f"v_lshrrev_b32 v{vt2}, 3, v{vN}"); A(f"v_lshl_add_u32 v{vAO}, v{vt2}, 4, v{vAO}"); A(f"v_lshlrev_b32 v{vAO}, 1, v{vAO}")
        A(f"s_lshl_b32 {sMLA}, {sHD}, 7"); A(f"s_add_u32 {sMLA}, {sMLA}, {WS_ML}")
        A(f"s_lshl_b32 {sPA0}, {sHD}, 13"); A(f"s_lshr_b32 {sT1}, {sS}, 2"); A(f"s_lshl_b32 {sT1}, {sT1}, 9")
        A(f"s_add_u32 {sPA0}, {sPA0}, {sT1}"); A(f"s_add_u32 {sPA0}, {sPA0}, {WS_P}"); A(f"s_add_u32 {sPA1}, {sPA0}, 4096")
        A(f"s_lshr_b32 {sT2}, {sHD}, 5")
        A(f"s_lshl_b32 {sYP}, {sT2}, 18"); A(f"s_add_u32 {sYP}, {sYP}, {WS_Y}"); A(f"s_mov_b32 {sYG}, {sYP}")
        A(f"s_and_b32 {sT0}, {sS}, 3"); A(f"s_lshl_b32 {sT0}, {sT0}, 16"); A(f"s_add_u32 {sYP}, {sYP}, {sT0}")
        A(f"s_lshl_b32 {sT0}, {sH}, 1"); A(f"s_lshr_b32 {sT1}, {sS}, 2"); A(f"s_add_u32 {sT0}, {sT0}, {sT1}"); A(f"s_lshl_b32 {sT0}, {sT0}, 8"); A(f"s_add_u32 {sYP}, {sYP}, {sT0}")
        A(f"s_lshr_b32 {sT3}, {sWG}, 4"); A(f"s_lshl_b32 {sT0}, {sT3}, 14"); A(f"s_add_u32 {sYG}, {sYG}, {sT0}")
        A(f"s_lshl_b32 {sOUTO}, {sT3}, 6"); A(f"s_lshl_b32 {sT0}, {sT2}, 10"); A(f"s_add_u32 {sOUTO}, {sOUTO}, {sT0}")
        A(f"s_and_b32 {sT0}, {sT3}, 7"); A(f"s_lshl_b32 {sT1}, {sT2}, 3"); A(f"s_add_u32 {sT0}, {sT0}, {sT1}")
        A(f"s_and_b32 {sT1}, {sWG}, 15"); A(f"s_cmp_eq_u32 {sT0}, {sT1}"); A(f"s_cselect_b32 {sRED}, 1, 0")
    def tail():
        NP = 8
        if pp2:
            ML2 = [100, 160]; PO2 = [104, 164]
            def iss(k):
                A(f"buffer_load_dwordx4 {vr(ML2[k],4)}, v{vAML}, {SWS}, {sMLA} offen sc1")
                for p in range(NP):
                    A(f"buffer_load_dwordx2 {vr(PO2[k]+2*p,2)}, v{vA8}, {SWS}, {sPA0 if p < 4 else sPA1} offen offset:{(p%4)*1024} sc1")
            def fin(k):
                A(f"v_mov_b32 v{vML}, v{ML2[k]}"); A(f"v_mov_b32 v{vML+2}, v{ML2[k]+2}")
                for p in range(NP): A(f"v_mov_b32 v{PO+2*p}, v{PO2[k]+2*p}")
            poll2(iss, lambda k: [ML2[k] + 1, ML2[k] + 3] + [PO2[k] + 2 * p + 1 for p in range(NP)], 9, fin)
            A("s_nop 1")
        else:
            lab = poll_begin()
            A(f"buffer_load_dwordx4 {vr(vML,4)}, v{vAML}, {SWS}, {sMLA} offen sc1")
            for p in range(NP):
                A(f"buffer_load_dwordx2 {vr(PO+2*p,2)}, v{vA8}, {SWS}, {sPA0 if p < 4 else sPA1} offen offset:{(p%4)*1024} sc1")
            poll_end(lab, [vML + 1, vML + 3] + [PO + 2 * p + 1 for p in range(NP)], tsleep)
        if not early: stamp(5)
        A(f"v_max_f32_dpp v{vt0}, v{vML}, v{vML} quad_perm:[1,0,3,2] {DPP}"); A("s_nop 1")
        A(f"v_max_f32_dpp v{vt0}, v{vt0}, v{vt0} quad_perm:[2,3,0,1] {DPP}"); A("s_nop 1")
        A(f"v_max_f32_dpp v{vt0}, v{vt0}, v{vt0} row_half_mirror {DPP}")
        A(f"v_sub_f32 v{vt1}, v{vML}, v{vt0}"); A(f"v_mul_f32 v{vt1}, {sC}, v{vt1}"); A(f"v_exp_f32 v{vt1}, v{vt1}")
        A("s_nop 0")
        A(f"v_mul_f32 v{vt2}, v{vt1}, v{vML+2}"); A("s_nop 0")
        A(f"v_mul_f32_dpp v{vt3}, v{vt1}, v{PO} row_newbcast:0 {DPP}")
        A(f"v_add_f32_dpp v{vt2}, v{vt2}, v{vt2} quad_perm:[1,0,3,2] {DPP}")
        A(f"v_fmac_f32_dpp v{vt3}, v{vt1}, v{PO+2} row_newbcast:1 {DPP}")
        A(f"v_fmac_f32_dpp v{vt3}, v{vt1}, v{PO+4} row_newbcast:2 {DPP}")
        A(f"v_add_f32_dpp v{vt2}, v{vt2}, v{vt2} quad_perm:[2,3,0,1] {DPP}")
        A(f"v_fmac_f32_dpp v{vt3}, v{vt1}, v{PO+6} row_newbcast:3 {DPP}")
        A(f"v_fmac_f32_dpp v{vt3}, v{vt1}, v{PO+8} row_newbcast:4 {DPP}")
        A(f"v_add_f32_dpp v{vt2}, v{vt2}, v{vt2} row_half_mirror {DPP}")
        A(f"v_fmac_f32_dpp v{vt3}, v{vt1}, v{PO+10} row_newbcast:5 {DPP}")
        A(f"v_rcp_f32 v{vt2}, v{vt2}")
        A(f"v_fmac_f32_dpp v{vt3}, v{vt1}, v{PO+12} row_newbcast:6 {DPP}")
        A(f"v_fmac_f32_dpp v{vt3}, v{vt1}, v{PO+14} row_newbcast:7 {DPP}")
        A(f"v_mul_f32 v{vt3}, v{vt3}, v{vt2}")
        A(f"v_cvt_pk_bf16_f32 v{vt3}, v{vt3}, v{vt3}")
        A("s_nop 1")
        BS = [PO + 16, PO + 20, PO + 24, PO + 28]
        def build(t):
            for r in range(4): A(f"v_and_b32_dpp v{BS[t%4]+r}, v{vt3}, v{vM+r} row_newbcast:{t} {DPP}")
        build(0); build(1)
        for t in range(16):
            acc = vS if t % 2 == 0 else vP
            mfma(acc, WO + 4 * t, BS[t % 4], None if t < 2 else acc)
            if t + 2 < 16: build(t + 2)
        A(f"v_mov_b32 v{vB0+1}, {sE}"); A(f"v_mov_b32 v{vB0+3}, {sE}")
        A("s_nop 6")
        for r in range(4): A(f"v_add_f32 v{vS+r}, v{vS+r}, v{vP+r}")
        A(f"v_cndmask_b32 v{vB0}, v{vS}, v{vS+2}, {sHALF}")
        A(f"v_cndmask_b32 v{vB0+2}, v{vS+1}, v{vS+3}, {sHALF}")
        A(f"buffer_store_dwordx4 {vr(vB0,4)}, v{vAY}, {SWS}, {sYP} offen sc1")
        if early:
            A(f"s_cmp_ge_u32 {sHD}, 32"); A("s_cbranch_scc1 L_afterB")
        stamp(6)
        A.label("L_tail2")
        A(f"s_cmp_eq_u32 {sRED}, 0"); A("s_cbranch_scc1 L_tail_end")
        A(f"s_add_u32 {sT0}, {sYG}, 4096"); A(f"s_add_u32 {sT1}, {sYG}, 8192"); A(f"s_add_u32 {sT2}, {sYG}, 12288")
        if pp2:
            Y2 = [64, 192]
            A("s_waitcnt vmcnt(0)")
            def issy(k):
                for u in range(16):
                    A(f"buffer_load_dwordx4 {vr(Y2[k]+4*u,4)}, v{vA16}, {SWS}, {[sYG,sT0,sT1,sT2][u//4]} offen offset:{(u%4)*1024} sc1")
            def finy(k):
                for u in range(8):
                    A(f"v_add_f32 v{PO+4*u}, v{Y2[k]+4*u}, v{Y2[k]+4*(u+8)}"); A(f"v_add_f32 v{PO+4*u+2}, v{Y2[k]+4*u+2}, v{Y2[k]+4*(u+8)+2}")
            poll2(issy, lambda k: [Y2[k] + 4 * u + o for u in range(16) for o in (1, 3)], 16, finy)
        else:
            lab = poll_begin()
            for u in range(16):
                A(f"buffer_load_dwordx4 {vr(PO+4*u,4)}, v{vA16}, {SWS}, {[sYG,sT0,sT1,sT2][u//4]} offen offset:{(u%4)*1024} sc1")
            poll_end(lab, [PO + 4 * u + o for u in range(16) for o in (1, 3)], tsleep)
        for u in range(8):
            if not pp2: A(f"v_add_f32 v{PO+4*u}, v{PO+4*u}, v{PO+4*(u+8)}"); A(f"v_add_f32 v{PO+4*u+2}, v{PO+4*u+2}, v{PO+4*(u+8)+2}")
        for u in range(1, 8):
            A(f"v_add_f32 v{PO}, v{PO}, v{PO+4*u}"); A(f"v_add_f32 v{PO+2}, v{PO+2}, v{PO+4*u+2}")
        A(f"v_mov_b32 v{vt0}, v{PO}"); A(f"v_mov_b32 v{vt1}, v{PO+2}"); A("s_nop 0")
        A(f"v_permlane16_swap_b32 v{PO}, v{vt0}"); A(f"v_permlane16_swap_b32 v{PO+2}, v{vt1}")
        A(f"v_add_f32 v{PO}, v{PO}, v{vt0}"); A(f"v_add_f32 v{PO+2}, v{PO+2}, v{vt1}")
        A(f"v_mov_b32 v{vt0}, v{PO}"); A(f"v_mov_b32 v{vt1}, v{PO+2}"); A("s_nop 0")
        A(f"v_permlane32_swap_b32 v{PO}, v{vt0}"); A(f"v_permlane32_swap_b32 v{PO+2}, v{vt1}")
        A(f"v_add_f32 v{PO}, v{PO}, v{vt0}"); A(f"v_add_f32 v{PO+2}, v{PO+2}, v{vt1}")
        A(f"v_cvt_pk_bf16_f32 v{vt0}, v{PO}, v{PO+2}")
        if dg2:
            wg, kind, thr = dg2
            A(f"s_cmp_lg_u32 {sWG}, {wg}"); A("s_cbranch_scc1 L_nofix"); A(f"s_cmp_lg_u32 {sWAVE}, {NSW}"); A("s_cbranch_scc1 L_nofix")
            A("s_memrealtime s[90:91]"); A("s_waitcnt lgkmcnt(0)"); A(f"s_sub_u32 s100, s90, {sE}")
            if kind == "end": A("s_mov_b32 s101, s100")
            A("s_add_u32 s101, s101, 12000")
            A(f"s_bitcmp1_b32 {sE}, 2"); A("s_cselect_b32 s99, 40000, 0")
            A(f"s_cmp_lt_u32 s100, {thr}"); A("s_cselect_b32 s101, s99, s101")
            A.label("L_fix2")
            A("s_memrealtime s[90:91]"); A("s_waitcnt lgkmcnt(0)")
            A(f"s_sub_u32 s90, s90, {sE}"); A("s_cmp_lt_u32 s90, s101"); A("s_cbranch_scc1 L_fix2")
            A.label("L_nofix")
        if fixed:
            A.label("L_fix")
            A("s_memrealtime s[90:91]"); A("s_waitcnt lgkmcnt(0)")
            A(f"s_sub_u32 s90, s90, {sE}")
            if diag: A("s_sub_u32 s90, s90, s101")
            A(f"s_cmp_lt_i32 s90, {fixed}"); A("s_cbranch_scc1 L_fix")
        A("s_mov_b64 exec, 0xffff")
        A(f"buffer_store_short v{vt0}, v{vAO}, {SOUT}, {sOUTO} offen")
        A(f"buffer_store_short_d16_hi v{vt0}, v{vAO}, {SOUT}, {sOUTO} offen offset:16")
        A("s_mov_b64 exec, -1")
        A.label("L_tail_end")
        stamp(7)
        A("s_endpgm")

    NBLK = 8 // NSW
    def qprod_issue():
        A(f"s_cmp_lt_u32 {sS}, 2")
        A("s_cselect_b32 s12, s38, s48"); A("s_cselect_b32 s13, s39, s49"); A("s_mov_b32 s14, 0x400000"); A("s_mov_b32 s15, 0x00020000")
        A("s_cselect_b32 s20, s32, s42"); A("s_cselect_b32 s21, s33, s43"); A("s_mov_b32 s22, 1024"); A("s_mov_b32 s23, 0x00020000")
        A(f"v_lshrrev_b32 v{vT}, 3, v{vN}"); A(f"v_lshl_add_u32 v{vT}, v{vG}, 1, v{vT}")
        A(f"v_lshlrev_b32 v{vT+1}, 4, v{vT}")
        A(f"v_lshlrev_b32 v{vT}, 16, v{vT}")
        A(f"v_and_b32 v{vT+2}, 7, v{vN}"); A(f"v_lshl_add_u32 v{vT}, v{vT+2}, 4, v{vT}")
        A(f"s_mul_i32 {sT1}, {sWAVE}, {128*NBLK}")
        for bk in range(NBLK):
            A(f"buffer_load_dwordx4 {vr(vX+4*bk,4)}, v{vT+1}, {SX}, {sT1} offen offset:{128*bk}")
        A(f"s_mul_i32 {sT0}, {sWAVE}, {NBLK << 19}"); A(f"s_lshl_b32 {sT1}, {sH}, 8"); A(f"s_add_u32 {sT0}, {sT0}, {sT1}")
        A(f"s_and_b32 {sT1}, {sS}, 1"); A(f"s_lshl_b32 {sT1}, {sT1}, 7"); A(f"s_add_u32 {sT0}, {sT0}, {sT1}")
        for bk in range(NBLK):
            for t in range(8):
                A(f"buffer_load_dwordx4 {vr(WQ+32*bk+4*t,4)}, v{vT}, {SW}, {sT0} offen {wflags}")
                if t < 7: A(f"s_add_u32 {sT0}, {sT0}, 8192")
            if bk < NBLK - 1: A(f"s_add_u32 {sT0}, {sT0}, {(64-7)*8192}")
    def qprod_compute():
        for bk in range(NBLK):
            for t in range(8):
                B = vB0 if t % 2 == 0 else vB1
                sel = sSELLO if t % 2 == 0 else sSELHI
                A(f"v_perm_b32 v{vt0}, v{vX+4*bk+t//2}, v{vX+4*bk+t//2}, {sel}")
                for r in range(4): A(f"v_and_b32 v{B+r}, v{vt0}, v{vM+r}")
                A("s_nop 1")
                mfma(vS, WQ + 32 * bk + 4 * t, B, None if (t == 0 and bk == 0) else vS)
        A(f"v_and_b32 v{vt1}, 7, v{vN}"); A(f"v_lshl_add_u32 v{vt1}, v{vG}, 5, v{vt1}"); A(f"v_lshlrev_b32 v{vt1}, 2, v{vt1}")
        A(f"s_lshl_b32 {sT0}, {sWAVE}, 9"); A(f"v_add_u32 v{vt1}, {sT0}, v{vt1}")
        A("s_mov_b32 exec_lo, 0x00ff00ff"); A("s_mov_b32 exec_hi, 0xff00ff00")
        A("s_nop 3")
        for r in range(4): A(f"ds_write_b32 v{vt1}, v{vS+r} offset:{L_QPART + r*32}")
        A("s_mov_b64 exec, -1")
        A("s_waitcnt lgkmcnt(0)")
        A("s_barrier")
    def masks():
        A(f"v_and_b32 v{vt0}, 1, v{vN}")
        A(f"v_mov_b32 v{vt1}, 0xffff")
        A(f"v_lshlrev_b32 v{vt0}, 4, v{vt0}")
        A(f"v_lshlrev_b32 v{vt1}, v{vt0}, v{vt1}")
        A(f"v_bfe_u32 v{vt0}, v{vN}, 1, 2")
        for r in range(4):
            A(f"v_cmp_eq_u32 vcc, {r}, v{vt0}"); A("s_nop 1")
            A(f"v_cndmask_b32 v{vM+r}, 0, v{vt1}, vcc")
        A(f"v_cmp_lt_u32 {sHALF}, 7, v{vN}")
        A(f"s_mov_b32 {sC}, {hex(f2u(CSCALE))}")
        A(f"s_mov_b32 {sSELLO}, 0x01000100"); A(f"s_mov_b32 {sSELHI}, 0x03020302")

    if ts: A("s_memrealtime s[86:87]")
    A(f"s_cmp_ge_u32 {sWG}, 256"); A("s_cbranch_scc1 L_end")
    A("s_load_dwordx16 s[32:47], s[0:1], 0")
    A("s_load_dwordx8 s[48:55], s[0:1], 64")
    A("s_load_dwordx2 s[56:57], s[0:1], 96")
    A(f"v_lshrrev_b32 v1, 6, v0"); A("v_and_b32 v0, 63, v0"); A("s_nop 0")
    A(f"v_readfirstlane_b32 {sWAVE}, v1")
    A(f"v_and_b32 v{vN}, 15, v0"); A(f"v_lshrrev_b32 v{vG}, 4, v0")
    A(f"v_lshlrev_b32 v{vKO}, 8, v{vN}"); A(f"v_lshl_add_u32 v{vKO}, v{vG}, 4, v{vKO}")
    A(f"v_lshlrev_b32 v{vVO}, 10, v{vG}"); A(f"v_lshl_add_u32 v{vVO}, v{vN}, 4, v{vVO}")
    A(f"s_lshr_b32 {sH}, {sWG}, 3")
    if hmap == 1: A(f"s_and_b32 {sS}, {sWG}, 7")
    else: A(f"s_add_u32 {sS}, {sWG}, {sH}"); A(f"s_and_b32 {sS}, {sS}, 7")
    A(f"s_lshl_b32 {sBASE}, {sH}, 23")
    a_, b_, c_ = STR
    A(f"s_mul_i32 {sSB}, {sS}, {a_}"); A(f"s_mov_b32 {sSTC}, {a_}")
    A(f"s_mul_i32 {sT0}, {sS}, {b_}"); A(f"s_add_u32 {sT0}, {sT0}, {4*a_ - 4*b_ & 0xffffffff}")
    A(f"s_cmp_ge_u32 {sS}, 4"); A(f"s_cselect_b32 {sSB}, {sT0}, {sSB}"); A(f"s_cselect_b32 {sSTC}, {b_}, {sSTC}")
    A(f"s_mul_i32 {sT0}, {sS}, {c_}"); A(f"s_add_u32 {sT0}, {sT0}, {(4*a_ + 2*b_ - 6*c_) & 0xffffffff}")
    A(f"s_cmp_ge_u32 {sS}, 6"); A(f"s_cselect_b32 {sSB}, {sT0}, {sSB}"); A(f"s_cselect_b32 {sSTC}, {c_}, {sSTC}")
    if ilv: A(f"s_lshl_b32 {sSB}, {sS}, 2")
    A(f"s_add_u32 {sT0}, {sSB}, {sWAVE}"); A(f"s_lshl_b32 {sKOFF}, {sT0}, 12"); A(f"s_add_u32 {sKOFF}, {sKOFF}, {sBASE}")
    A("s_waitcnt lgkmcnt(0)")
    srd(SWS, 56, WS_SIZE)
    stamp(0)
    if ts:
        A(f"s_add_u32 s92, s92, {13*4}"); A(f"v_mov_b32 v{sreg[0]}, s86")
        A(f"buffer_store_dword v{sreg[0]}, v{sreg[1]}, {SWS}, s92 offen")
    A(f"s_cmp_eq_u32 {sWAVE}, {NSW}"); A("s_cbranch_scc1 L_service")

    srd(SK, 34, 0x10000000); srd(SV, 36, 0x10000000)
    vNEXT, vCA, vONE = vT + 2, vT + 1, vT
    vNX = [56 + k for k in range(D)]
    def issue_tile(s):
        issue_k(s, sKOFF); issue_v(s, sKOFF); A(f"s_add_u32 {sKOFF}, {sKOFF}, {NSW*4096*(8 if ilv else 1)}")
    A(f"s_cmp_lt_u32 {sS}, 4"); A("s_cbranch_scc1 L_s_prod")
    if bstream and not noB:
        A(f"s_cmp_ge_u32 {sS}, 6"); A("s_cbranch_scc1 L_s_bwg")
    for s in range(D + XS):
        issue_tile(s)
        if s == 0: stamp(14)
    masks()
    A.label("L_s_join")
    A(f"v_mov_b32 v{vm}, 0xff800000"); A(f"v_mov_b32 v{vl}, 0")
    for r in range(4): A(f"v_mov_b32 v{vO+r}, 0")
    for s in range(D):
        A(f"s_mov_b32 s{sVAL+s}, 1")
    A(f"s_mov_b32 {sSTOP}, 0")
    sDB, sDN = "s82", "s83"
    A(f"s_mov_b32 {sDB}, -1"); A(f"s_mov_b32 {sDN}, 0")
    A(f"s_mov_b32 {sNREC}, 0x10000000")
    A(f"v_lshlrev_b32 v{vt3}, 4, v{vG}")
    A(f"v_mov_b32 v{vCA}, 0"); A(f"v_mov_b32 v{vONE}, 1")
    A("s_barrier")
    A.label("L_s_join2")
    for i in range(4): A(f"ds_read_b128 {vr(vQ+4*i,4)}, v{vt3} offset:{L_QA + i*64}")
    def grab():
        A("s_mov_b64 exec, 1")
        A(f"ds_add_rtn_u32 v{vNEXT}, v{vCA}, v{vONE} offset:{L_CNT}")
        A("s_mov_b64 exec, -1")
    grab()
    sWOF = "s101"
    if latewo & 2:
        A(f"s_cmp_lg_u32 {sWAVE}, 0"); A(f"s_cselect_b32 {sWOF}, 0, 1")
    if not noB and not early and not (latewo & 2):
        A(f"s_cmp_lg_u32 {sWAVE}, 0"); A("s_cbranch_scc1 L_s_nowo")
        wo_issue(50)
        A.label("L_s_nowo")
    A("s_waitcnt lgkmcnt(0)")
    stamp(1)
    NW = 8 * D - 4
    def step(s, nwk, nwv, refill=True, check=True):
        if check and not drain: A(f"s_cmp_eq_u32 s{sVAL+s}, 0"); A("s_cbranch_scc1 L_sdone")
        A(f"s_waitcnt vmcnt({nwk})")
        for i in range(4): mfma(vS, kreg(s, i), vQ + 4 * i, None if i == 0 else vS)
        if not refill:
            A("s_nop 7")
            softmax_update(vS, vP, vm, vl, vO, vt0, vt1, vt2)
            A(f"s_waitcnt vmcnt({nwv})")
            pv(vO, vP, lambda t: vreg(s, t))
            return
        A("s_waitcnt lgkmcnt(0)")
        A(f"v_readfirstlane_b32 {sT1}, v{vNEXT}")
        grab()
        ldyn = A.newlabel("L_dyn"); ldec = A.newlabel("L_dec"); lhave = A.newlabel("L_have"); lsp = A.newlabel("L_sp")
        if ts:
            lab = A.newlabel("L_nots")
            A(f"s_and_b32 s92, {sT1}, 15"); A("s_cmp_lg_u32 s92, 0"); A(f"s_cbranch_scc1 {lab}")
            A("s_memrealtime s[90:91]")
            A(f"s_lshl_b32 s92, s2, 7"); A(f"s_lshr_b32 s94, {sT1}, 2"); A("s_add_u32 s92, s92, s94"); A(f"s_add_u32 s92, s92, {WS_TS + 0x100000}")
            A("s_waitcnt lgkmcnt(0)")
            A(f"v_mov_b32 v{vt3}, s90")
            A(f"buffer_store_dword v{vt3}, v{vCA}, {SWS}, s92 offen")
            A.label(lab)
        if ilv:
            A(f"s_lshr_b32 {sT2}, {sT1}, 2"); A(f"s_lshl_b32 {sT2}, {sT2}, 5"); A(f"s_and_b32 {sT3}, {sT1}, 3"); A(f"s_add_u32 {sT2}, {sT2}, {sT3}"); A(f"s_add_u32 {sT2}, {sT2}, {sSB}")
        else:
            A(f"s_add_u32 {sT2}, {sT1}, {sSB}")
        A(f"s_cmp_lt_u32 {sT1}, {sSTC}"); A(f"s_cbranch_scc1 {ldec}")
        A(f"s_cmp_lg_u32 {sDB}, -1"); A(f"s_cbranch_scc1 {lhave}")
        A(f"s_mov_b32 {sTO}, {TMO*16}")
        A.label(lsp)
        A(f"ds_read_b64 {vr(vt2,2)}, v{vCA} offset:{L_DYN}")
        A("s_waitcnt lgkmcnt(0)")
        A(f"v_readfirstlane_b32 {sDB}, v{vt2}"); A(f"v_readfirstlane_b32 {sDN}, v{vt3}")
        A("s_nop 3")
        A(f"s_cmp_lg_u32 {sDB}, -1"); A(f"s_cbranch_scc1 {lhave}")
        A("s_sleep 2")
        A(f"s_sub_u32 {sTO}, {sTO}, 1"); A(f"s_cmp_lg_u32 {sTO}, 0"); A(f"s_cbranch_scc1 {lsp}")
        A(f"s_mov_b32 {sDB}, 0"); A(f"s_mov_b32 {sDN}, 0")
        A.label(lhave)
        A(f"s_sub_u32 {sT0}, {sT1}, {sSTC}")
        A(f"s_add_u32 {sT2}, {sT0}, {sDB}"); A(f"s_and_b32 {sT2}, {sT2}, 2047")
        if drain:
            A(f"s_add_u32 {sT3}, {sT0}, {WOK}"); A(f"s_cmp_lt_u32 {sT3}, {sDN}"); A(f"s_cselect_b32 {sSTOP}, {sSTOP}, 1")
            A(f"s_cmp_lt_u32 {sT0}, {sDN}"); A(f"s_cbranch_scc0 L_drain{s}")
            A.label(ldec)
        else:
            A(f"s_cmp_lt_u32 {sT0}, {sDN}")
            A(f"s_cselect_b32 {sSTOP}, {sSTOP}, 1")
            A.label(ldec)
            A(f"s_cselect_b32 s{sVAL+s}, 1, 0"); A(f"s_cselect_b32 s6, {sNREC}, 0"); A(f"s_cselect_b32 s10, {sNREC}, 0")
        A(f"s_lshl_b32 {sKOFF}, {sT2}, 12"); A(f"s_add_u32 {sKOFF}, {sKOFF}, {sBASE}")
        issue_k(s, sKOFF)
        softmax_update(vS, vP, vm, vl, vO, vt0, vt1, vt2)
        A(f"s_waitcnt vmcnt({nwv})")
        pv(vO, vP, lambda t: vreg(s, t))
        issue_v(s, sKOFF)
    if XS:
        NX = 8 * (D + XS) - 4
        for s in range(D): step(s, NX, NX, True, False)
        out = 8 * (D + XS)
        for s in range(D, D + XS):
            step(s, out - 4, out - 8, False, False); out -= 8
    A.label("L_loop")
    if latewo & 2:
        A(f"s_and_b32 {sT0}, {sWOF}, {sSTOP}"); A("s_cbranch_scc0 L_s_nowo2")
        wo_issue(50)
        A(f"s_mov_b32 {sWOF}, 0")
        A.label("L_s_nowo2")
    for s in range(D): step(s, NW, NW)
    A("s_branch L_loop")
    if drain:
        assert XS == 0
        for s0 in range(D):
            A.label(f"L_drain{s0}")
            stamp(15)
            softmax_update(vS, vP, vm, vl, vO, vt0, vt1, vt2)
            A(f"s_waitcnt vmcnt({8*(D-1)})")
            pv(vO, vP, lambda t: vreg(s0, t))
            for j in range(1, D):
                step((s0 + j) % D, 8 * (D - j) - 4, 8 * (D - j - 1), False, False)
            if s0 < D - 1: A("s_branch L_sdone")
        A("s_nop 3")
    A.label("L_sdone")
    xgroup_reduce("v_add_f32", vl, vt0)
    A(f"v_and_b32 v{vt1}, 7, v{vN}"); A(f"v_lshl_add_u32 v{vt1}, v{vG}, 5, v{vt1}"); A(f"v_lshlrev_b32 v{vt1}, 2, v{vt1}")
    A(f"s_lshl_b32 {sT0}, {sWAVE}, 9"); A(f"v_add_u32 v{vt1}, {sT0}, v{vt1}")
    A(f"s_lshl_b32 {sT0}, {sWAVE}, 3"); A(f"v_mov_b32 v{vt2}, {sT0}")
    for r in range(4): A(f"ds_write_b32 v{vt1}, v{vO+r} offset:{L_OPART + r*32}")
    A(f"ds_write_b64 v{vt2}, {vr(vm,2)} offset:{L_ML}")
    A("s_waitcnt lgkmcnt(0)")
    stamp(2)
    A("s_barrier")
    if noB:
        A("s_endpgm")
    else:
        A(f"s_cmp_eq_u32 {sWAVE}, 0"); A("s_cbranch_scc1 L_btail")
        A("s_endpgm")
        A.label("L_btail")
        sreg[0], sreg[1] = 20, 21
        A("s_setprio 3")
        if latewo & 2:
            A(f"s_cmp_eq_u32 {sWOF}, 0"); A("s_cbranch_scc1 L_s_nowo3")
            wo_issue(50)
            A.label("L_s_nowo3")
        A(f"v_mov_b32 v{vt1}, 0")
        A(f"ds_read_b32 v{vt0}, v{vt1} offset:{L_EP}")
        A(f"s_add_u32 {sHD}, {sH}, 32")
        tail_prep()
        A("s_waitcnt lgkmcnt(0)")
        A(f"v_readfirstlane_b32 {sE}, v{vt0}")
        A("s_branch L_tail2" if early else "s_branch L_tail")
    sreg[0], sreg[1] = 54, 55
    A.label("L_s_prod")
    A("s_setprio 2")
    qprod_issue()
    masks()
    A("s_waitcnt vmcnt(0)")
    stamp(12)
    qprod_compute()
    A("s_setprio 0")
    for s in range(D + XS): issue_tile(s)
    A("s_branch L_s_join")

    if bstream and not noB:
        assert D == 4 and XS == 0
        A.label("L_s_bwg")
        sAK = "s84"
        A(f"s_mov_b32 {sAK}, {sKOFF}")
        srd(SK, 44, 0x4000000); srd(SV, 46, 0x4000000)
        A(f"s_lshl_b32 {sT0}, {sH}, 1"); A(f"s_add_u32 {sT0}, {sT0}, {sS}"); A(f"s_sub_u32 {sT0}, {sT0}, 6")
        A(f"s_lshr_b32 {sT1}, {sT0}, 3"); A(f"s_and_b32 {sBU}, {sT0}, 7")
        A(f"s_lshl_b32 {sBB}, {sT1}, 23"); A(f"s_add_u32 {sBB}, {sBB}, {28672*256}"); A(f"s_lshl_b32 {sT2}, {sBU}, 12"); A(f"s_add_u32 {sBB}, {sBB}, {sT2}")
        A(f"s_mul_i32 {sBJ}, {sT0}, {brot}"); A(f"s_add_u32 {sBJ}, {sBJ}, {sWAVE}")
        def boff4():
            A(f"s_and_b32 {sKOFF}, {sBJ}, 31"); A(f"s_lshl_b32 {sKOFF}, {sKOFF}, 15"); A(f"s_add_u32 {sKOFF}, {sKOFF}, {sBB}"); A(f"s_add_u32 {sBJ}, {sBJ}, 4")
        for sl in range(4):
            boff4(); issue_k(sl, sKOFF); issue_v(sl, sKOFF)
        masks()
        QBp = [vQ, 192]
        stO = [vO, 208]; stS = [vS, 212]; stP = [vP, 216]; stm = [vm, 220]; stl = [vl, 221]
        for pp in range(2):
            A(f"v_mov_b32 v{stm[pp]}, 0xff800000"); A(f"v_mov_b32 v{stl[pp]}, 0")
            for r in range(4): A(f"v_mov_b32 v{stO[pp]+r}, 0")
        A(f"v_lshrrev_b32 v{vt3}, 3, v{vN}"); A(f"v_lshlrev_b32 v{vt3}, 8, v{vt3}"); A(f"v_lshl_add_u32 v{vt3}, v{vG}, 4, v{vt3}")
        A("s_barrier")
        for pp in range(2):
            for i in range(4): A(f"ds_read_b128 {vr(QBp[pp]+4*i,4)}, v{vt3} offset:{L_QB + pp*512 + i*64}")
        A("s_waitcnt lgkmcnt(0)")
        for i in range(8):
            sl = i % 4
            A("s_waitcnt vmcnt(28)")
            for pp in range(2):
                for q in range(4): mfma(stS[pp], kreg(sl, q), QBp[pp] + 4 * q, None if q == 0 else stS[pp])
            if i < 4: boff4()
            elif i == 4:
                srd(SK, 34, 0x10000000); srd(SV, 36, 0x10000000); A(f"s_mov_b32 {sKOFF}, {sAK}")
            else: A(f"s_add_u32 {sKOFF}, {sKOFF}, {NSW*4096}")
            issue_k(sl, sKOFF)
            for pp in range(2): softmax_update(stS[pp], stP[pp], stm[pp], stl[pp], stO[pp], vt0, vt1, vt2)
            A("s_waitcnt vmcnt(28)")
            for pp in range(2): pv(stO[pp], stP[pp], lambda t: vreg(sl, t))
            issue_v(sl, sKOFF)
        A(f"v_and_b32 v{vt1}, 7, v{vN}"); A(f"v_lshl_add_u32 v{vt1}, v{vG}, 5, v{vt1}"); A(f"v_lshrrev_b32 v{vt2}, 3, v{vN}"); A(f"v_lshl_add_u32 v{vt1}, v{vt2}, 7, v{vt1}")
        A(f"v_lshlrev_b32 v{vt1}, 2, v{vt1}"); A(f"s_lshl_b32 {sT0}, {sWAVE}, 11"); A(f"v_add_u32 v{vt1}, {sT0}, v{vt1}")
        A(f"v_lshlrev_b32 v{vt2}, 3, v{vt2}"); A(f"s_lshl_b32 {sT0}, {sWAVE}, 5"); A(f"v_add_u32 v{vt2}, {sT0}, v{vt2}")
        for pp in range(2):
            xgroup_reduce("v_add_f32", stl[pp], vt0)
            for r in range(4): A(f"ds_write_b32 v{vt1}, v{stO[pp]+r} offset:{L_OBW + pp*1024 + r*32}")
            A(f"ds_write_b64 v{vt2}, {vr(stm[pp],2)} offset:{L_MLB + pp*16}")
        A(f"v_mov_b32 v{vCA}, 0"); A(f"v_mov_b32 v{vONE}, 1")
        A("s_waitcnt lgkmcnt(0)")
        A("s_mov_b64 exec, 1")
        A(f"ds_add_u32 v{vCA}, v{vONE} offset:{L_BD}")
        A("s_mov_b64 exec, -1")
        A(f"v_mov_b32 v{vm}, 0xff800000"); A(f"v_mov_b32 v{vl}, 0")
        for r in range(4): A(f"v_mov_b32 v{vO+r}, 0")
        A(f"s_mov_b32 {sSTOP}, 0"); A(f"s_mov_b32 {sDB}, -1"); A(f"s_mov_b32 {sDN}, 0")
        A(f"v_lshlrev_b32 v{vt3}, 4, v{vG}")
        A("s_branch L_s_join2")

    A.label("L_service")
    cur[0] = bflags
    sreg[0], sreg[1] = 254, 255
    A("s_setprio 3")
    srd(SDBG, 54, 256)
    A(f"v_mov_b32 v{vt1}, 0")
    A(f"s_cmp_lg_u32 {sWG}, 0"); A("s_cbranch_scc1 L_v_noep0")
    A("s_memrealtime s[90:91]")
    A("s_waitcnt lgkmcnt(0)")
    A(f"s_max_u32 {sE}, s90, 1")
    A(f"v_mov_b32 v{vt0}, {sE}")
    A("s_mov_b64 exec, 1")
    A(f"buffer_store_dword v{vt0}, v{vt1}, {SDBG}, 0 offen sc1")
    A("s_mov_b64 exec, -1")
    A.label("L_v_noep0")
    masks()
    A(f"v_mov_b32 v{vt0}, {(D+XS)*NSW}"); A(f"v_mov_b32 v{vt1}, 0"); A(f"v_mov_b32 v{vt2}, -1")
    A(f"ds_write_b32 v{vt1}, v{vt0} offset:{L_CNT}")
    A(f"ds_write_b32 v{vt1}, v{vt2} offset:{L_DYN}")
    A(f"ds_write_b32 v{vt1}, v{vt1} offset:{L_BD}")
    A(f"s_mov_b32 {sTO}, {TMO}")
    A.label("L_ep_loop")
    A(f"buffer_load_dword v{vt0}, v{vt1}, {SDBG}, 0 offen sc1")
    A("s_waitcnt vmcnt(0)")
    A(f"v_readfirstlane_b32 {sE}, v{vt0}")
    A("s_nop 3")
    A(f"s_cmp_lg_u32 {sE}, 0"); A("s_cbranch_scc1 L_ep_done")
    A(f"s_sleep {sleep}")
    A(f"s_sub_u32 {sTO}, {sTO}, 1"); A(f"s_cmp_lg_u32 {sTO}, 0"); A("s_cbranch_scc1 L_ep_loop")
    A.label("L_ep_done")
    stamp(11)
    vLO8 = vt5
    A(f"v_lshlrev_b32 v{vLO8}, 3, v{vLANE}")
    A(f"s_cmp_ge_u32 {sS}, 4"); A("s_cbranch_scc1 L_v_noprod3")
    A(f"v_and_b32 v{vt1}, 31, v{vLANE}"); A(f"v_lshlrev_b32 v{vt1}, 3, v{vt1}")
    A(f"s_lshr_b32 {sT0}, {sS}, 1"); A(f"s_lshl_b32 {sT0}, {sT0}, 5"); A(f"s_add_u32 {sT0}, {sT0}, {sH}"); A(f"s_lshl_b32 {sT0}, {sT0}, 9")
    A(f"s_and_b32 {sT1}, {sS}, 1"); A(f"s_lshl_b32 {sT1}, {sT1}, 8"); A(f"s_add_u32 {sT0}, {sT0}, {sT1}"); A(f"s_add_u32 {sT0}, {sT0}, {WS_QF}")
    A("s_barrier")
    for k in range(2*NSW): A(f"ds_read_b64 {vr(WQ+2*k,2)}, v{vt1} offset:{L_QPART + k*256}")
    A("s_waitcnt lgkmcnt(0)")
    for k in range(1, 2*NSW):
        A(f"v_add_f32 v{WQ}, v{WQ}, v{WQ+2*k}"); A(f"v_add_f32 v{WQ+1}, v{WQ+1}, v{WQ+2*k+1}")
    A(f"v_cvt_pk_bf16_f32 v{vB0}, v{WQ}, v{WQ+1}"); A(f"v_mov_b32 v{vB0+1}, {sE}")
    A("s_mov_b32 exec_hi, 0")
    A(f"buffer_store_dwordx2 {vr(vB0,2)}, v{vt1}, {SWS}, {sT0} offen sc1")
    A("s_mov_b64 exec, -1")
    stamp(3)
    A.label("L_v_noprod3")
    A(f"s_lshl_b32 {sT0}, {sH}, 9"); A(f"s_add_u32 {sT0}, {sT0}, {WS_QF}")
    lab = poll_begin()
    A(f"buffer_load_dwordx2 {vr(vQ,2)}, v{vLO8}, {SWS}, {sT0} offen sc1")
    poll_end(lab, [vQ + 1], sleep)
    A(f"v_lshlrev_b32 v{vt2}, 2, v{vLANE}")
    A(f"ds_write_b32 v{vt2}, v{vQ} offset:{L_QA}")
    A(f"v_mov_b32 v{vt0}, {sE}"); A(f"v_mov_b32 v{vt1}, 0")
    A(f"ds_write_b32 v{vt1}, v{vt0} offset:{L_EP}")
    if bstream and not noB:
        A(f"s_cmp_lt_u32 {sS}, 6"); A("s_cbranch_scc1 L_v_noqb")
        A(f"s_lshr_b32 {sT0}, {sH}, 2"); A(f"s_lshl_b32 {sT0}, {sT0}, 11"); A(f"s_add_u32 {sT0}, {sT0}, {WS_QF + 32*512}")
        lab = poll_begin()
        for hh in range(4):
            A(f"buffer_load_dwordx2 {vr(vQ+2*hh,2)}, v{vLO8}, {SWS}, {sT0} offen offset:{hh*512} sc1")
        poll_end(lab, [vQ + 2 * hh + 1 for hh in range(4)], sleep)
        for hh in range(4): A(f"ds_write_b32 v{vt2}, v{vQ+2*hh} offset:{L_QB + hh*256}")
        A.label("L_v_noqb")
    A("s_waitcnt lgkmcnt(0)")
    A("s_barrier")
    if noB:
        A("s_barrier"); A("s_endpgm")
    PBR = 64
    A(f"s_cmp_lt_u32 {sS}, 6"); A("s_cbranch_scc1 L_v_noB")
    if bstream:
        A(f"s_lshl_b32 {sT0}, {sH}, 1"); A(f"s_add_u32 {sT0}, {sT0}, {sS}"); A(f"s_sub_u32 {sT0}, {sT0}, 6"); A(f"s_and_b32 {sBU}, {sT0}, 7")
        A(f"v_mov_b32 v{vt1}, 0"); A(f"s_mov_b32 {sTO}, {TMO}")
        A.label("L_v_bd")
        A(f"ds_read_b32 v{vt0}, v{vt1} offset:{L_BD}")
        A("s_waitcnt lgkmcnt(0)")
        A(f"v_readfirstlane_b32 {sT0}, v{vt0}")
        A("s_nop 3")
        A(f"s_cmp_ge_u32 {sT0}, {NSW}"); A("s_cbranch_scc1 L_v_bdok")
        A("s_sleep 16")
        A(f"s_sub_u32 {sTO}, {sTO}, 1"); A(f"s_cmp_lg_u32 {sTO}, 0"); A("s_cbranch_scc1 L_v_bd")
        A.label("L_v_bdok")
        stamp(10)
        for hh in range(4):
            MW = 128; OW = 144
            for w in range(4):
                A(f"ds_read_b64 {vr(MW+2*w,2)}, v{vt1} offset:{L_MLB + w*32 + hh*8}")
                A(f"ds_read_b64 {vr(OW+2*w,2)}, v{vLO8} offset:{L_OBW + w*2048 + hh*512}")
            A("s_waitcnt lgkmcnt(0)")
            A(f"v_max_f32 v{vt0}, v{MW}, v{MW+2}"); A(f"v_max3_f32 v{vt0}, v{MW+4}, v{MW+6}, v{vt0}")
            for w in range(4): A(f"v_sub_f32 v{MW+2*w}, v{MW+2*w}, v{vt0}")
            for w in range(4): A(f"v_mul_f32 v{MW+2*w}, {sC}, v{MW+2*w}")
            for w in range(4): A(f"v_exp_f32 v{MW+2*w}, v{MW+2*w}")
            A("s_nop 0")
            R = PBR + hh * 4
            A(f"v_mul_f32 v{R}, v{OW}, v{MW}"); A(f"v_mul_f32 v{R+2}, v{OW+1}, v{MW}"); A(f"v_mul_f32 v{vt2}, v{MW+1}, v{MW}")
            for w in range(1, 4):
                A(f"v_fma_f32 v{R}, v{OW+2*w}, v{MW+2*w}, v{R}"); A(f"v_fma_f32 v{R+2}, v{OW+2*w+1}, v{MW+2*w}, v{R+2}"); A(f"v_fma_f32 v{vt2}, v{MW+2*w+1}, v{MW+2*w}, v{vt2}")
            A(f"v_mov_b32 v{R+1}, {sE}"); A(f"v_mov_b32 v{R+3}, {sE}")
            RM = PBR + 16 + (hh // 2) * 4
            if hh % 2 == 0:
                A(f"v_mov_b32 v{RM}, v{vt0}"); A(f"v_mov_b32 v{RM+2}, v{vt2}"); A(f"v_mov_b32 v{RM+1}, {sE}"); A(f"v_mov_b32 v{RM+3}, {sE}")
            else:
                A(f"v_cndmask_b32 v{RM}, v{RM}, v{vt0}, {sHALF}"); A(f"v_cndmask_b32 v{RM+2}, v{RM+2}, v{vt2}, {sHALF}")
    else:
        srd(SK, 44, 0x4000000); srd(SV, 46, 0x4000000)
        A(f"s_lshl_b32 {sT0}, {sH}, 1"); A(f"s_add_u32 {sT0}, {sT0}, {sS}"); A(f"s_sub_u32 {sT0}, {sT0}, 6")
        A(f"s_lshr_b32 {sT1}, {sT0}, 3"); A(f"s_and_b32 {sBU}, {sT0}, 7")
        A(f"s_lshl_b32 {sBB}, {sT1}, 23"); A(f"s_add_u32 {sBB}, {sBB}, {28672*256}"); A(f"s_lshl_b32 {sT2}, {sBU}, 12"); A(f"s_add_u32 {sBB}, {sBB}, {sT2}")
        A(f"s_mul_i32 {sBJ}, {sT0}, {brot}")
        A(f"s_mov_b32 {sBN}, 28")
        A(f"s_mov_b32 {sNREC}, 0x4000000")
        def boff():
            A(f"s_and_b32 {sKOFF}, {sBJ}, 31"); A(f"s_lshl_b32 {sKOFF}, {sKOFF}, 15"); A(f"s_add_u32 {sKOFF}, {sKOFF}, {sBB}"); A(f"s_add_u32 {sBJ}, {sBJ}, 1")
        for s in range(4):
            boff(); issue_k(s, sKOFF); issue_v(s, sKOFF)
        A(f"s_lshl_b32 {sT0}, {sT1}, 11"); A(f"s_add_u32 {sT0}, {sT0}, {WS_QF + 32*512}")
        lab = poll_begin()
        for hh in range(4):
            A(f"buffer_load_dwordx2 {vr(vQ+2*hh,2)}, v{vLO8}, {SWS}, {sT0} offen offset:{hh*512} sc1")
        poll_end(lab, [vQ + 2 * hh + 1 for hh in range(4)], 16)
        for hh in range(4): A(f"ds_write_b32 v{vt2}, v{vQ+2*hh} offset:{L_QB + hh*256}")
        A("s_waitcnt lgkmcnt(0)")
        QBp = [vQ, WQ]
        stO = [vO, 232]; stS = [vS, 236]; stP = [vP, 240]; stm = [vm, 244]; stl = [vl, 245]
        A(f"v_lshrrev_b32 v{vt3}, 3, v{vN}"); A(f"v_lshlrev_b32 v{vt3}, 8, v{vt3}"); A(f"v_lshl_add_u32 v{vt3}, v{vG}, 4, v{vt3}")
        for pp in range(2):
            for i in range(4): A(f"ds_read_b128 {vr(QBp[pp]+4*i,4)}, v{vt3} offset:{L_QB + pp*512 + i*64}")
            A(f"v_mov_b32 v{stm[pp]}, 0xff800000"); A(f"v_mov_b32 v{stl[pp]}, 0")
            for r in range(4): A(f"v_mov_b32 v{stO[pp]+r}, 0")
        A("s_waitcnt lgkmcnt(0)")
        stamp(4)
        A.label("L_bloop")
        for s in range(4):
            A("s_waitcnt vmcnt(28)")
            for pp in range(2):
                for i in range(4): mfma(stS[pp], kreg(s, i), QBp[pp] + 4 * i, None if i == 0 else stS[pp])
            A(f"s_cmp_gt_i32 {sBN}, 0"); A(f"s_cselect_b32 s6, {sNREC}, 0"); A(f"s_cselect_b32 s10, {sNREC}, 0")
            boff(); issue_k(s, sKOFF)
            for pp in range(2): softmax_update(stS[pp], stP[pp], stm[pp], stl[pp], stO[pp], vt0, vt1, vt2)
            A("s_waitcnt vmcnt(28)")
            for pp in range(2): pv(stO[pp], stP[pp], lambda t: vreg(s, t))
            issue_v(s, sKOFF)
            A(f"s_sub_u32 {sBN}, {sBN}, 1")
        A(f"s_cmp_gt_i32 {sBN}, -4"); A("s_cbranch_scc1 L_bloop")
        stamp(10)
        A("s_waitcnt vmcnt(0)")
        A(f"v_and_b32 v{vt1}, 7, v{vN}"); A(f"v_lshl_add_u32 v{vt1}, v{vG}, 5, v{vt1}"); A(f"v_lshrrev_b32 v{vt2}, 3, v{vN}"); A(f"v_lshl_add_u32 v{vt1}, v{vt2}, 7, v{vt1}")
        A(f"v_lshlrev_b32 v{vt1}, 2, v{vt1}")
        A("s_nop 3")
        for pp in range(2):
            for r in range(4): A(f"ds_write_b32 v{vt1}, v{stO[pp]+r} offset:{L_OB + pp*1024 + r*32}")
            xgroup_reduce("v_add_f32", stl[pp], vt0)
            R = PBR + 16 + pp * 4
            A(f"v_mov_b32 v{R}, v{stm[pp]}"); A(f"v_mov_b32 v{R+1}, {sE}"); A(f"v_mov_b32 v{R+2}, v{stl[pp]}"); A(f"v_mov_b32 v{R+3}, {sE}")
        A("s_waitcnt lgkmcnt(0)")
        for hh in range(4): A(f"ds_read_b64 {vr(vQ+2*hh,2)}, v{vLO8} offset:{L_OB + hh*512}")
        A("s_waitcnt lgkmcnt(0)")
        for hh in range(4):
            R = PBR + hh * 4
            A(f"v_mov_b32 v{R}, v{vQ+2*hh}"); A(f"v_mov_b32 v{R+1}, {sE}"); A(f"v_mov_b32 v{R+2}, v{vQ+2*hh+1}"); A(f"v_mov_b32 v{R+3}, {sE}")
    sPB0, sPB1, sML0 = "s76", "s77", "s78"
    vBML = 88
    A(f"s_lshr_b32 {sT0}, {sH}, 2"); A(f"s_lshl_b32 {sT0}, {sT0}, 5"); A(f"s_add_u32 {sT0}, {sT0}, {sBU}"); A(f"s_add_u32 {sT0}, {sT0}, 256")
    A(f"s_lshl_b32 {sPB0}, {sT0}, 10"); A(f"s_add_u32 {sPB0}, {sPB0}, {WS_P}")
    A(f"s_lshl_b32 {sML0}, {sT0}, 4"); A(f"s_add_u32 {sML0}, {sML0}, {WS_ML}")
    A.label("L_v_noB")
    sreg[0], sreg[1] = 20, 21
    A(f"v_lshrrev_b32 v{vBML}, 3, v{vN}"); A(f"v_lshlrev_b32 v{vBML}, 7, v{vBML}")
    def pb_publish(lab):
        A(f"s_cmp_lt_u32 {sS}, 6"); A(f"s_cbranch_scc1 {lab}")
        for hh in range(4):
            A(f"buffer_store_dwordx4 {vr(PBR+hh*4,4)}, v{vA16}, {SWS}, {sPB0} offen sc1")
            if hh < 3: A(f"s_add_u32 {sPB0}, {sPB0}, 8192")
        A("s_mov_b64 exec, 0x101")
        for pp in range(2):
            A(f"buffer_store_dwordx4 {vr(PBR+16+pp*4,4)}, v{vBML}, {SWS}, {sML0} offen offset:{pp*256} sc1")
        A("s_mov_b64 exec, -1")
        A.label(lab)
    def cntwait(thr_s):
        l1 = A.newlabel("L_cw"); l2 = A.newlabel("L_cwok")
        A(f"v_mov_b32 v{vt1}, 0"); A(f"s_mov_b32 {sTO}, {TMO}")
        A.label(l1)
        A(f"ds_read_b32 v{vt0}, v{vt1} offset:{L_CNT}")
        A("s_waitcnt lgkmcnt(0)")
        A(f"v_readfirstlane_b32 {sT0}, v{vt0}")
        A("s_nop 3")
        A(f"s_cmp_ge_u32 {sT0}, {thr_s}"); A(f"s_cbranch_scc1 {l2}")
        A(f"s_sleep {bsl}")
        A(f"s_sub_u32 {sTO}, {sTO}, 1"); A(f"s_cmp_lg_u32 {sTO}, 0"); A(f"s_cbranch_scc1 {l1}")
        A.label(l2)
    sK1, sTT1 = "s80", "s81"
    A(f"s_mov_b32 {sHD}, {sH}")
    tail_prep()
    if diag:
        A("s_mov_b32 s101, 0")
        A(f"s_cmp_lg_u32 {sWG}, 68"); A("s_cbranch_scc1 L_nodiag")
        cntwait(32)
        A("s_memrealtime s[90:91]"); A("s_waitcnt lgkmcnt(0)"); A("s_mov_b32 s100, s90")
        for wi, thr in enumerate((80, 128, 176)):
            cntwait(thr)
            A("s_memrealtime s[90:91]"); A("s_waitcnt lgkmcnt(0)")
            A("s_sub_u32 s99, s90, s100"); A("s_mov_b32 s100, s90")
            A("s_sub_i32 s99, s99, 1280"); A("s_max_i32 s99, s99, 0")
            A("s_lshr_b32 s99, s99, 5"); A("s_min_u32 s99, s99, 7")
            A(f"s_mul_i32 s99, s99, {150 * 8**wi}"); A("s_add_u32 s101, s101, s99")
        A.label("L_nodiag")
    sSMP = "s79"
    A(f"s_mov_b32 {sSMP}, {sSTC}")
    if ilv:
        A(f"s_cmp_lt_u32 {sS}, 4"); A(f"s_cselect_b32 {sT0}, {KP}, 0"); A(f"s_cmp_ge_u32 {sS}, 6"); A(f"s_cselect_b32 {sT0}, {KB}, {sT0}"); A(f"s_sub_u32 {sSMP}, {sSTC}, {sT0}")
    A(f"s_sub_u32 {sT3}, {sSMP}, {K1}")
    cntwait(sT3)
    A("s_memrealtime s[90:91]"); A(f"s_mov_b32 {sK1}, {sT0}"); A("s_waitcnt lgkmcnt(0)"); A(f"s_mov_b32 {sTT1}, s90")
    A(f"s_sub_u32 {sT3}, {sSMP}, {K2}"); A(f"s_add_u32 {sT1}, {sK1}, 16"); A(f"s_max_u32 {sT3}, {sT3}, {sT1}"); A(f"s_min_u32 {sT3}, {sT3}, {sSTC}")
    cntwait(sT3)
    A("s_memrealtime s[90:91]"); A("s_waitcnt lgkmcnt(0)")
    A(f"s_sub_u32 {sT1}, {sT0}, {sK1}"); A(f"s_max_u32 {sT1}, {sT1}, 1")
    A(f"s_sub_u32 {sT2}, s90, {sTT1}")
    A(f"s_max_u32 {sT2}, {sT2}, 1")
    A(f"s_sub_u32 {sT3}, s90, {sE}")
    A(f"s_sub_i32 {sT0}, {sSTC}, {sT0}")
    A(f"v_cvt_f32_u32 v{vt0}, {sT1}"); A(f"v_cvt_f32_u32 v{vt1}, {sT2}"); A(f"v_cvt_f32_u32 v{vt2}, {sT3}"); A(f"v_cvt_f32_i32 v{vt3}, {sT0}")
    A(f"v_rcp_f32 v{vt4}, v{vt1}"); A(f"v_rcp_f32 v{vT}, v{vt0}"); A("s_nop 0")
    A(f"v_mul_f32 v{vB0}, v{vt0}, v{vt4}")
    A(f"v_mul_f32 v{vT}, v{vT}, v{vt1}")
    A(f"v_fma_f32 v{vB0+2}, v{vt3}, v{vT}, v{vt2}")
    A(f"v_mov_b32 v{vB0+1}, {sE}"); A(f"v_mov_b32 v{vB0+3}, {sE}")
    A(f"s_lshl_b32 {sT2}, {sH}, 7"); A(f"s_add_u32 {sT2}, {sT2}, {WS_BAL}"); A(f"s_lshl_b32 {sT1}, {sS}, 4"); A(f"s_add_u32 {sT1}, {sT1}, {sT2}")
    A(f"v_mov_b32 v{vt1}, 0")
    A("s_mov_b64 exec, 1")
    A(f"buffer_store_dwordx4 {vr(vB0,4)}, v{vt1}, {SWS}, {sT1} offen sc1")
    A("s_mov_b64 exec, -1")
    pb_publish("L_v_pbdone")
    lab = poll_begin()
    A(f"buffer_load_dwordx4 {vr(vML,4)}, v{vAML}, {SWS}, {sT2} offen sc1")
    poll_end(lab, [vML + 1, vML + 3], 4)
    def bsum8(v):
        A("s_nop 1"); A(f"v_add_f32_dpp v{v}, v{v}, v{v} quad_perm:[1,0,3,2] {DPP}")
        A("s_nop 1"); A(f"v_add_f32_dpp v{v}, v{v}, v{v} quad_perm:[2,3,0,1] {DPP}")
        A("s_nop 1"); A(f"v_add_f32_dpp v{v}, v{v}, v{v} row_half_mirror {DPP}")
    A(f"v_mov_b32 v{vt0}, v{vML}"); A(f"v_mul_f32 v{vt1}, v{vML}, v{vML+2}")
    bsum8(vt0); bsum8(vt1)
    A(f"v_add_f32 v{vt1}, {hex(f2u(float(RT)))}, v{vt1}")
    A(f"v_rcp_f32 v{vt0}, v{vt0}"); A("s_nop 0")
    A(f"v_mul_f32 v{vt1}, v{vt1}, v{vt0}")
    A(f"v_sub_f32 v{vt1}, v{vt1}, v{vML+2}"); A(f"v_mul_f32 v{vt1}, v{vt1}, v{vML}")
    A(f"v_max_f32 v{vt1}, 0, v{vt1}")
    A(f"v_min_f32 v{vt1}, {hex(f2u(4096.0))}, v{vt1}")
    A(f"v_add_f32 v{vt1}, {hex(f2u(1e-3))}, v{vt1}")
    for sh in (1, 2, 4):
        A("s_nop 1"); A(f"v_add_f32_dpp v{vt1}, v{vt1}, v{vt1} row_shr:{sh} row_mask:0xf bank_mask:0xf bound_ctrl:0")
    A("s_nop 1")
    A(f"v_readlane_b32 {sT0}, v{vt1}, 7"); A("s_nop 1")
    A(f"v_rcp_f32 v{vt0}, {sT0}"); A("s_nop 0")
    A(f"v_mul_f32 v{vt0}, {hex(f2u(float(RT)))}, v{vt0}")
    A(f"v_mul_f32 v{vt1}, v{vt1}, v{vt0}"); A(f"v_rndne_f32 v{vt1}, v{vt1}"); A(f"v_cvt_u32_f32 v{vt1}, v{vt1}")
    A(f"v_min_u32 v{vt1}, {RT}, v{vt1}")
    A(f"s_sub_u32 {sT1}, {sS}, 1"); A(f"s_and_b32 {sT1}, {sT1}, 7"); A("s_nop 1")
    A(f"v_readlane_b32 {sT2}, v{vt1}, {sS}"); A(f"v_readlane_b32 {sT3}, v{vt1}, {sT1}")
    A("s_nop 3")
    A(f"s_cmp_eq_u32 {sS}, 7"); A(f"s_cselect_b32 {sT2}, {RT}, {sT2}")
    A(f"s_cmp_eq_u32 {sS}, 0"); A(f"s_cselect_b32 {sT3}, 0, {sT3}")
    A(f"s_sub_u32 {sT2}, {sT2}, {sT3}")
    A(f"s_add_u32 {sT3}, {sT3}, {DYN0}")
    A(f"v_mov_b32 v{vt2}, {sT3}"); A(f"v_mov_b32 v{vt3}, {sT2}"); A(f"v_mov_b32 v{vt1}, 0")
    A(f"ds_write_b64 v{vt1}, {vr(vt2,2)} offset:{L_DYN}")
    if ts:
        A(f"s_lshl_b32 s92, s2, 6"); A(f"s_add_u32 s92, s92, {WS_TS + 0x200000}")
        A(f"buffer_store_dword v{vt3}, v{vt1}, {SWS}, s92 offen")
    stamp(9)
    A(f"s_add_u32 {sT3}, {sT2}, {sSTC}"); A(f"s_add_u32 {sT3}, {sT3}, {X2}")
    cntwait(sT3)
    wo_issue(40)
    A(f"v_mov_b32 v{vt2}, 0")
    A(f"s_lshl_b32 {sT0}, {sH}, 3"); A(f"s_add_u32 {sT0}, {sT0}, {sS}"); A(f"s_lshl_b32 {sT1}, {sT0}, 4"); A(f"s_lshl_b32 {sT0}, {sT0}, 10")
    A(f"s_add_u32 {sT0}, {sT0}, {WS_P}"); A(f"s_add_u32 {sT1}, {sT1}, {WS_ML}")
    A(f"v_mov_b32 v{vB0+1}, {sE}"); A(f"v_mov_b32 v{vB0+3}, {sE}"); A(f"v_mov_b32 v{vB1+1}, {sE}"); A(f"v_mov_b32 v{vB1+3}, {sE}")
    A("s_barrier")
    if dg2:
        A("s_memrealtime s[90:91]"); A("s_waitcnt lgkmcnt(0)"); A(f"s_sub_u32 s101, s90, {sE}")
    stamp(8)
    MLW = PO + 16
    for w in range(NSW):
        A(f"ds_read_b64 {vr(MLW+2*w,2)}, v{vt2} offset:{L_ML + w*8}")
    for w in range(NSW):
        A(f"ds_read_b64 {vr(PO+2*w,2)}, v{vA8} offset:{L_OPART + w*512}")
    A(f"s_waitcnt lgkmcnt({NSW})")
    A(f"v_max_f32 v{vB1}, v{MLW}, v{MLW+2}")
    A(f"v_max3_f32 v{vB1}, v{MLW+4}, v{MLW+6}, v{vB1}")
    for w in range(NSW): A(f"v_sub_f32 v{MLW+2*w}, v{MLW+2*w}, v{vB1}")
    for w in range(NSW): A(f"v_mul_f32 v{MLW+2*w}, {sC}, v{MLW+2*w}")
    for w in range(NSW): A(f"v_exp_f32 v{MLW+2*w}, v{MLW+2*w}")
    A("s_waitcnt lgkmcnt(0)")
    A(f"v_mul_f32 v{vB0}, v{PO}, v{MLW}"); A(f"v_mul_f32 v{vB0+2}, v{PO+1}, v{MLW}"); A(f"v_mul_f32 v{vB1+2}, v{MLW+1}, v{MLW}")
    for w in range(1, NSW):
        A(f"v_fma_f32 v{vB0}, v{PO+2*w}, v{MLW+2*w}, v{vB0}"); A(f"v_fma_f32 v{vB0+2}, v{PO+2*w+1}, v{MLW+2*w}, v{vB0+2}")
        A(f"v_fma_f32 v{vB1+2}, v{MLW+2*w+1}, v{MLW+2*w}, v{vB1+2}")
    A(f"buffer_store_dwordx4 {vr(vB0,4)}, v{vA16}, {SWS}, {sT0} offen sc1")
    A("s_mov_b64 exec, 1")
    A(f"buffer_store_dwordx4 {vr(vB1,4)}, v{vt2}, {SWS}, {sT1} offen sc1")
    A("s_mov_b64 exec, -1")
    A.label("L_tail")
    tail()
    A.label("L_end")
    A("s_endpgm")

    out = HEADER + f"; @launch grid=(256,1,1) block=({(NSW+1)*64},1,1) lds={LDS_SIZE}\n"
    out += '.amdgcn_target "amdgcn-amd-amdhsa--gfx950"\n.text\n' + f".globl {KNAME}\n.p2align 8\n.type {KNAME},@function\n{KNAME}:\n"
    out += "\n".join(A.L) + "\n"
    out += f""".section .rodata,"a"
.p2align 6
.amdhsa_kernel {KNAME}
  .amdhsa_next_free_vgpr 256
  .amdhsa_next_free_sgpr 102
  .amdhsa_accum_offset 256
  .amdhsa_group_segment_fixed_size 0
  .amdhsa_kernarg_size 104
  .amdhsa_user_sgpr_count 2
  .amdhsa_user_sgpr_kernarg_segment_ptr 1
  .amdhsa_system_sgpr_workgroup_id_x 1
.end_amdhsa_kernel
"""
    return out

if __name__ == "__main__":
    cfg = json.loads(sys.argv[2]) if len(sys.argv) > 2 else {}
    open(sys.argv[1], "w").write(gen(**cfg))
```
